```python
import torch

def _softmax(x, axis=-1):
    return torch.softmax(x, dim=axis)
def _gelu(x):
    return torch.nn.functional.gelu(x, approximate="tanh")
def _silu(x):
    return torch.nn.functional.silu(x)
def _sigmoid(x):
    return torch.sigmoid(x)
def _layernorm(x, axis=-1, eps=1e-5):
    m = x.mean(dim=axis, keepdim=True)
    v = x.var(dim=axis, keepdim=True, unbiased=False)
    return (x - m) / torch.sqrt(v + eps)
def _scatter_add(tgt, idx, src, axis=0):
    return tgt.clone().index_add_(axis, idx, src)
def _segment_sum(src, seg, n):
    out = torch.zeros((n,) + src.shape[1:], dtype=src.dtype)
    return out.index_add_(0, seg, src)
def _pad(x, pw):
    flat = tuple(v for pair in reversed(pw) for v in pair)
    return torch.nn.functional.pad(x, flat)

kernel_name = 'sequential_preLN__grouped_kv_mqa__geglu_ffn__prompt'

def setup_inputs():

    _w = (lambda a: (lambda t: t.to(torch.bfloat16) if t.is_floating_point() else t)(torch.as_tensor(a)))
    def _A_setup():
        B, S, D, H = 1, 2048, 1024, 32
        Dh = D // H
        return {
            "x": _w((lambda *s: torch.randn(*s, dtype=torch.bfloat16) * 0.05)(B, S, D)),
            "wq": _w((lambda *s: torch.randn(*s, dtype=torch.bfloat16) * 0.05)(D, H * Dh)),
            "wk": _w((lambda *s: torch.randn(*s, dtype=torch.bfloat16) * 0.05)(D, Dh)),
            "wv": _w((lambda *s: torch.randn(*s, dtype=torch.bfloat16) * 0.05)(D, Dh)),
            "wo": _w((lambda *s: torch.randn(*s, dtype=torch.bfloat16) * 0.05)(H * Dh, D)),
        }
    _A_in = _A_setup()

    def _B_setup():
        B, S, D, F = 1, 2048, 1024, 3584
        return {
            "x": _w((lambda *s: torch.randn(*s, dtype=torch.bfloat16) * 0.05)(B, S, D)),
            "w_gate": _w((lambda *s: torch.randn(*s, dtype=torch.bfloat16) * 0.05)(D, F)),
            "w_up": _w((lambda *s: torch.randn(*s, dtype=torch.bfloat16) * 0.05)(D, F)),
            "w_down": _w((lambda *s: torch.randn(*s, dtype=torch.bfloat16) * 0.05)(F, D)),
        }
    _B_in = _B_setup()

    return {
        "A_x": _A_in["x"],
        "A_wq": _A_in["wq"],
        "A_wk": _A_in["wk"],
        "A_wv": _A_in["wv"],
        "A_wo": _A_in["wo"],
        "B_x": _B_in["x"],
        "B_w_gate": _B_in["w_gate"],
        "B_w_up": _B_in["w_up"],
        "B_w_down": _B_in["w_down"],
    }

def reference(A_x, A_wq, A_wk, A_wv, A_wo, B_x, B_w_gate, B_w_up, B_w_down):
    def _A_ref(x, wq, wk, wv, wo):
        B, S, D = x.shape
        H = 32
        Dh = D // H
        q = (lambda x, *d: x.permute(*d))((x @ wq).reshape(B, S, H, Dh), 0, 2, 1, 3)
        k = x @ wk
        v = x @ wv
        scores = torch.einsum("bhqd,bkd->bhqk", q, k) * (Dh ** -0.5)
        p = _softmax(scores, axis=-1)
        o = torch.einsum("bhqk,bkd->bhqd", p, v)
        return (lambda x, *d: x.permute(*d))(o, 0, 2, 1, 3).reshape(B, S, H * Dh) @ wo

    def _B_ref(x, w_gate, w_up, w_down):
        return (_gelu(x @ w_gate) * (x @ w_up)) @ w_down

    x = A_x
    h = x + _A_ref(_layernorm(x, axis=-1), A_wq, A_wk, A_wv, A_wo)
    h2 = h + _B_ref(_layernorm(h, axis=-1), B_w_gate, B_w_up, B_w_down)
    return h2
```

```python
import math

KA = dict(x=0, wq=8, wk=16, wv=24, wo=32, bx=40, wg=48, wu=56, wd=64, out=72, dbg=80, ws=88)

MB = 1 << 20
WS_XN  = 0
WS_KV  = 4*MB
WS_O   = 5*MB
WS_H   = 9*MB
WS_ST  = 13*MB
WS_CS  = 13*MB + 512*1024
WS_ACT = 14*MB
WS_END = 30*MB
WS_STAMP = 31*MB
import os
STAMP = os.environ.get('STAMP','0')=='1'

class Kern:
    def __init__(self, name, grid, block, lds, vgpr, agpr=0, sgpr=102):
        self.name=name; self.grid=grid; self.block=block; self.lds=lds
        self.vgpr=vgpr; self.agpr=agpr; self.sgpr=sgpr
        self.L=[]; self._lab=0
    def e(self, s):
        for l in s.split('\n'):
            l=l.strip()
            if l: self.L.append(l)
    def c(self, s): self.L.append('; '+s)
    def lab(self, p='L'):
        self._lab+=1; return f"{p}_{self.name}_{self._lab}"
    def nop(self, n):
        while n>0:
            k=min(n,16); self.e(f"s_nop {k-1}"); n-=k
    def text(self):
        acc = (self.vgpr+3)//4*4
        hdr=f".globl {self.name}\n.p2align 8\n.type {self.name},@function\n{self.name}:\n"
        return hdr+"\n".join(("    "+l if not l.endswith(':') else l) for l in self.L)+"\n"
    def desc(self):
        acc=(self.vgpr+3)//4*4
        nfv = acc+self.agpr if self.agpr else self.vgpr
        return f""".p2align 6
.amdhsa_kernel {self.name}
  .amdhsa_next_free_vgpr {nfv}
  .amdhsa_next_free_sgpr {self.sgpr}
  .amdhsa_accum_offset {acc}
  .amdhsa_group_segment_fixed_size 0
  .amdhsa_kernarg_size 96
  .amdhsa_user_sgpr_count 2
  .amdhsa_user_sgpr_kernarg_segment_ptr 1
  .amdhsa_system_sgpr_workgroup_id_x 1
{'' if os.environ.get('NODENORM') else '  .amdhsa_float_denorm_mode_32 3'}
.end_amdhsa_kernel
"""
    def stamp_begin(self):
        if STAMP:
            self.sgpr=102
            self.e("s_memrealtime s[88:89]\ns_memtime s[90:91]")
    def stamp_mid(self, idx):
        if STAMP: self.e(f"s_memtime s[{96+2*idx}:{97+2*idx}]")
    def stamp_end(self, kidx):
        if not STAMP: return
        e=self.e
        L=self.lab("STMP")
        e("s_waitcnt vmcnt(0) lgkmcnt(0)")
        e("s_memrealtime s[92:93]\ns_memtime s[94:95]")
        e(f"s_load_dwordx2 s[86:87], s[0:1], {KA['ws']}")
        e("s_waitcnt lgkmcnt(0)")
        e(f"s_add_u32 s86, s86, {WS_STAMP+kidx*8192}\ns_addc_u32 s87, s87, 0")
        e("v_cmp_eq_u32 vcc, 0, v0\ns_and_saveexec_b64 s[84:85], vcc")
        e(f"s_cbranch_execz {L}")
        e("s_lshl_b32 s83, s2, 5\nv_mov_b32 v1, s83")
        e("v_mov_b32 v4, s88\nv_mov_b32 v5, s92\nv_mov_b32 v6, s90\nv_mov_b32 v7, s94")
        e("global_store_dwordx4 v1, v[4:7], s[86:87]")
        e("v_mov_b32 v8, s96\nv_mov_b32 v9, s98")
        e("global_store_dwordx2 v1, v[8:9], s[86:87] offset:16")
        e("s_waitcnt vmcnt(0)")
        e(f"{L}:")
    def load_ptr(self, sreg, name):
        self.e(f"s_load_dwordx2 s[{sreg}:{sreg+1}], s[0:1], {KA[name]}")
    def srd(self, s, nbytes, src=None, add=0):
        if src is None: src=s
        if add:
            self.e(f"s_add_u32 s{s}, s{src}, {add}")
            self.e(f"s_addc_u32 s{s+1}, s{src+1}, 0")
        elif src!=s:
            self.e(f"s_mov_b32 s{s}, s{src}\ns_mov_b32 s{s+1}, s{src+1}")
        self.e(f"s_mov_b32 s{s+2}, {nbytes}")
        self.e(f"s_mov_b32 s{s+3}, 0x20000")

def vr(a,n=1): return f"v{a}" if n==1 else f"v[{a}:{a+n-1}]"
def ar(a,n=1): return f"a{a}" if n==1 else f"a[{a}:{a+n-1}]"
def sr(a,n=1): return f"s{a}" if n==1 else f"s[{a}:{a+n-1}]"

def build(kernels, header_comments):
    out=list(header_comments)
    for k in kernels:
        out.append(f"; @launch kernel={k.name} grid=({k.grid},1,1) block=({k.block},1,1) lds={k.lds}")
    out.append('.amdgcn_target "amdgcn-amd-amdhsa--gfx950"')
    out.append('.text')
    seen=[]
    for k in kernels:
        if k.name in seen: continue
        seen.append(k.name); out.append(k.text())
    out.append('.section .rodata,"a"')
    seen=[]
    for k in kernels:
        if k.name in seen: continue
        seen.append(k.name); out.append(k.desc())
    return "\n".join(out)+"\n"

def f2u(x):
    import struct
    return struct.unpack('<I',struct.pack('<f',x))[0]
```

```python
import re, sys

TRANS = ("v_exp_f32","v_log_f32","v_rcp_f32","v_rsq_f32","v_sqrt_f32","v_sin_f32","v_cos_f32","v_rcp_iflag_f32")
def regs_of(tok):
    tok = tok.strip()
    neg = tok.lstrip('-')
    if neg.startswith('abs(') or neg.startswith('|'):
        neg = neg.replace('abs(','').replace(')','').replace('|','')
    tok = neg
    m = re.fullmatch(r'([vas])(\d+)', tok)
    if m: return [(m.group(1), int(m.group(2)))]
    m = re.fullmatch(r'([vas])\[(\d+):(\d+)\]', tok)
    if m: return [(m.group(1), i) for i in range(int(m.group(2)), int(m.group(3))+1)]
    if tok == 'vcc': return [('s','vcc')]
    if tok in ('vcc_lo','vcc_hi'): return [('s','vcc')]
    if tok == 'exec': return [('s','exec')]
    if tok == 'm0': return [('s','m0')]
    return []

class I:
    __slots__=('txt','op','ops','rd','wr','kind','passes','line','ws','isC','mods')
def split_ops(s):
    out=[];depth=0;cur=''
    for ch in s:
        if ch=='[': depth+=1
        if ch==']': depth-=1
        if ch==',' and depth==0: out.append(cur.strip()); cur=''
        else: cur+=ch
    if cur.strip(): out.append(cur.strip())
    return out

def parse(line, ln):
    t = line.split(';')[0].split('//')[0].strip()
    if not t or t.startswith('.') : return None
    if t.endswith(':'):
        i=I(); i.kind='label'; i.op=t[:-1]; i.txt=t; i.line=ln; i.rd=[]; i.wr=[]; i.ws=0; return i
    parts=t.split(None,1)
    op=parts[0]; rest=parts[1] if len(parts)>1 else ''
    ops=split_ops(rest)
    mods=''
    if ops:
        lp=ops[-1].split(None,1)
        if len(lp)>1 and not ops[-1].startswith('vmcnt') and not ops[-1].startswith('lgkmcnt'):
            ops[-1]=lp[0]; mods=lp[1]
    i=I(); i.txt=t+''.join(' '+a for a in ('@exit','@alt','@g1') if a in line); i.op=op; i.ops=ops; i.line=ln; i.rd=[]; i.wr=[]; i.passes=0; i.ws=1; i.isC=[]; i.mods=mods
    R=lambda k: regs_of(ops[k]) if k<len(ops) else []
    base=op.replace('_e32','').replace('_e64','').replace('_dpp','').replace('_sdwa','')
    if op=='s_nop':
        i.kind='nop'; i.ws=int(ops[0],0)+1
    elif op=='s_waitcnt':
        i.kind='wait'
    elif op.startswith('s_cbranch') or op=='s_branch':
        i.kind='branch'
    elif op in('s_barrier','s_endpgm','s_setprio','s_sleep'):
        i.kind='salu'
    elif op.startswith('s_load') or op.startswith('s_memtime') or op.startswith('s_memrealtime') or op.startswith('s_buffer_load'):
        i.kind='smem'; i.wr=R(0); i.rd=sum((R(k) for k in range(1,len(ops))),[])
    elif op.startswith('s_'):
        i.kind='salu'
        if op.startswith('s_cmp') or op.startswith('s_bitcmp'):
            i.rd=sum((R(k) for k in range(len(ops))),[])
        else:
            i.wr=R(0); i.rd=sum((R(k) for k in range(1,len(ops))),[])
            if 'saveexec' in op: i.wr=i.wr+[('s','exec')]; i.rd=i.rd+[('s','exec')]
            if op in('s_addk_i32','s_mulk_i32'): i.rd=i.rd+R(0)
    elif op.startswith('v_mfma'):
        i.kind='mfma'
        i.passes = 8 if '32x32x16' in op else 4 if '16x16x32' in op else None
        assert i.passes, op
        i.wr=R(0); i.rd=R(1)+R(2)+R(3); i.isC=R(3)
    elif op.startswith('ds_'):
        i.kind='ds'
        if op.startswith('ds_read') or op.startswith('ds_bpermute') or op.startswith('ds_swizzle') or op.startswith('ds_permute'):
            i.wr=R(0); i.rd=sum((R(k) for k in range(1,len(ops))),[])
        else:
            i.rd=sum((R(k) for k in range(len(ops))),[])
    elif op.startswith('buffer_') or op.startswith('global_'):
        i.kind='vmem'
        full=t
        lds = ' lds' in (' '+mods) or op.startswith('global_load_lds')
        if op in('buffer_wbl2','buffer_inv'):
            pass
        elif op.startswith('buffer_load'):
            if lds: i.rd=sum((R(k) for k in range(len(ops))),[])+[('s','m0')]
            else: i.wr=R(0); i.rd=sum((R(k) for k in range(1,len(ops))),[])
        elif op.startswith('buffer_store'):
            i.rd=sum((R(k) for k in range(len(ops))),[])
        elif op.startswith('global_load_lds'):
            i.rd=sum((R(k) for k in range(len(ops))),[])+[('s','m0')]
        elif op.startswith('global_load'):
            i.wr=R(0); i.rd=sum((R(k) for k in range(1,len(ops))),[])
        elif op.startswith('global_store'):
            i.rd=sum((R(k) for k in range(len(ops))),[])
        elif 'atomic' in op:
            if 'sc0' in mods and op.startswith('global'):
                i.wr=R(0); i.rd=sum((R(k) for k in range(1,len(ops))),[])
            elif 'sc0' in mods:
                i.wr=R(0); i.rd=sum((R(k) for k in range(len(ops))),[])
            else: i.rd=sum((R(k) for k in range(len(ops))),[])
        else: raise Exception("unknown vmem "+t)
    elif op.startswith('v_'):
        i.kind='valu'
        if base.startswith('v_cmp'):
            i.wr=R(0); i.rd=R(1)+R(2)
            if base.startswith('v_cmpx'): i.wr=i.wr+[('s','exec')]
        elif base in('v_permlane32_swap_b32','v_permlane16_swap_b32','v_swap_b32'):
            i.wr=R(0)+R(1); i.rd=R(0)+R(1)
        elif base in('v_add_co_u32','v_sub_co_u32','v_addc_co_u32','v_subb_co_u32','v_subrev_co_u32'):
            i.wr=R(0)+R(1); i.rd=sum((R(k) for k in range(2,len(ops))),[])
        else:
            i.wr=R(0); i.rd=sum((R(k) for k in range(1,len(ops))),[])
            if base in('v_fmac_f32','v_dot2c_f32_bf16','v_pk_fmac_f16','v_writelane_b32') : i.rd=i.rd+R(0)
            if base=='v_cndmask_b32' and len(ops)==3: i.rd=i.rd+[('s','vcc')]
            if '_dpp' in op or 'row_' in mods or 'quad_perm' in mods: i.rd=i.rd+R(0)
    else:
        raise Exception("unknown op "+t)
    return i

def is_dpp(i): return i.kind=='valu' and ('_dpp' in i.op or 'row_' in i.mods or 'quad_perm' in i.mods)
def base(i): return i.op.replace('_e32','').replace('_e64','').replace('_dpp','')
def isv(r): return r[0] in 'va'

def trace(instrs, mode='A'):
    labels={i.op:k for k,i in enumerate(instrs) if i.kind=='label'}
    out=[]; k=0; taken=set(); visits={}
    while k<len(instrs):
        i=instrs[k]
        out.append(i)
        if i.kind=='branch':
            tgt=labels.get(i.ops[0])
            visits[k]=visits.get(k,0)+1
            if mode=='L':
                k+=1; continue
            if '@alt' in i.txt and mode=='B':
                k=tgt; continue
            if '@g1' in i.txt and mode=='A':
                k=tgt; continue
            if '@exit' in i.txt and visits[k]>=2:
                k=tgt; continue
            if tgt is not None and tgt<=k and k not in taken and i.op!='s_branch':
                taken.add(k); k=tgt; continue
            if i.op=='s_branch' and tgt is not None and tgt<=k and visits[k]<=2:
                k=tgt; continue
            if i.op=='s_branch' and tgt is not None and tgt>k:
                k=tgt; continue
        if i.op=='s_endpgm' :
            out.append(None)
        k+=1
    return out

def check(text, verbose=True):
    es=[]
    for mode in 'ABL':
        es+=check1(text,mode)
    es=sorted(set(es))
    if verbose:
        for _,e in es[:60]: print("CHK:",e)
        print(f"checker: {len(es)} issue(s)")
    return es

def check1(text, mode):
    instrs=[]
    for ln,l in enumerate(text.split('\n'),1):
        for piece in [l]:
            i=parse(piece,ln)
            if i: instrs.append(i)
    tr=trace(instrs,mode)
    errs=set()
    def err(i,p,need,have,what):
        errs.add((i.line,f"line {i.line}: [{what}] need {need} ws have {have}: '{p.txt}' (line {p.line}) -> '{i.txt}'"))
    hist=[]
    vm=[]; lg=[]; pend={}
    for i in tr:
        if i is None:
            hist=[]; vm=[]; lg=[]; pend={}; continue
        if i.kind=='label': continue
        if i.kind=='wait':
            m=re.search(r'vmcnt\((\d+)\)',i.txt)
            if m:
                n=int(m.group(1))
                while len(vm)>n:
                    tok=vm.pop(0)
                    for r in tok[1]:
                        if pend.get(r)==tok[0]: del pend[r]
            m=re.search(r'lgkmcnt\((\d+)\)',i.txt)
            if m:
                n=int(m.group(1))
                has_smem=any(t[2] for t in lg)
                if has_smem and n>0: errs.add((i.line,f"line {i.line}: lgkmcnt({n}) with SMEM outstanding"))
                while len(lg)>n:
                    tok=lg.pop(0)
                    for r in tok[1]:
                        if pend.get(r)==tok[0]: del pend[r]
        else:
            for r in list(i.rd)+list(i.wr):
                if r in pend and not (i.kind in('ds','vmem','smem') and r in i.wr and r not in i.rd):
                    errs.add((i.line,f"line {i.line}: reg {r} touched while load pending: '{i.txt}'"))
            for r in i.wr:
                if r in pend and i.kind in('ds','vmem','smem'):
                    errs.add((i.line,f"line {i.line}: second load to {r} while pending: '{i.txt}'"))
        if i.kind=='vmem' and i.op not in('buffer_wbl2','buffer_inv'):
            tok=(id(i),len(hist)); vm.append((tok,list(i.wr)))
            for r in i.wr: pend[r]=tok
            if len(vm)>63: errs.add((i.line,f"line {i.line}: >63 vmem outstanding"))
        if i.kind in('ds','smem'):
            tok=(id(i),len(hist));
            lg.append((tok,list(i.wr),i.kind=='smem'))
            if i.kind=='smem' and len(i.wr)>1: lg.append(((id(i),-1),[],True))
            for r in i.wr: pend[r]=tok
        dist=0
        for p in reversed(hist):
            if dist>=20: break
            need=0; what=''
            pw=set(p.wr); pc=set(p.isC) if p.kind=='mfma' else set()
            ird=set(i.rd); iwr=set(i.wr)
            vw={r for r in pw if isv(r)}; sw={r for r in pw if r[0]=='s'}
            if p.kind=='valu':
                if i.kind=='mfma' and vw&ird: need,what=2,'valu->mfma'
                if i.kind=='valu' and base(p) in TRANS and base(i) not in TRANS and vw&ird: need,what=max(need,1),'trans->valu'
                if i.kind=='valu' and base(i) in('v_readlane_b32','v_readfirstlane_b32') and vw&ird: need,what=max(need,1),'valu->readlane'
                if i.kind=='valu' and 'permlane' in i.op and vw&ird: need,what=max(need,2),'valu->permlane'
                if is_dpp(i) and vw&ird: need,what=max(need,2),'valu->dpp'
                if i.kind=='vmem' and sw&ird: need,what=max(need,5),'valu sgpr->vmem'
                if i.kind=='valu' and sw&ird:
                    need,what=max(need,4 if base(i) in('v_readlane_b32','v_writelane_b32') else 2),'valu sgpr->valu'
            if p.kind=='salu' and ('s','m0') in pw and i.kind=='vmem' and ('s','m0') in ird: need,what=1,'m0->dma'
            if p.kind=='mfma':
                P={4:0,8:1}[p.passes]
                if i.kind=='mfma':
                    c=set(i.isC)
                    if vw&c:
                        if not (c==vw and i.passes==p.passes): need,what=(6,10)[P],'mfma->mfmaC overlap'
                    ab=set(regs_of(i.ops[1])+regs_of(i.ops[2]))
                    if vw&ab: need,what=max(need,(8,12)[P]),'mfma->mfmaAB'
                    if vw&set(i.wr) and not (c==vw and i.passes==p.passes) and not (vw&c): need,what=max(need,(8,12)[P]),'mfma WAW'
                elif i.kind in('valu','vmem','ds'):
                    if vw&(ird|iwr): need,what=(8,12)[P],'mfma->use'
                    if i.kind=='valu' and pc&iwr: need,what=max(need,(3,7)[P]),'mfmaC WAR'
            if p.kind=='vmem' and ('store' in p.op) and ('x4' in p.op or 'x3' in p.op):
                data=set(regs_of(p.ops[0] if p.op.startswith('buffer') else p.ops[1]))
                if data&iwr: need,what=max(need,2 if i.kind=='valu' else 1),'store WAR'
            if need>dist: err(i,p,need,dist,what)
            dist+=p.ws
        hist.append(i)
        if len(hist)>64: hist=hist[-40:]
    es=sorted(errs)
    if mode=='L': es=[(l,'[linear] '+m) for l,m in es if 'pending' not in m and 'outstanding' not in m]
    return es

if __name__=='__main__':
    check(open(sys.argv[1]).read())
```

```python
from base import *
STG=24576

class G128:
    NDMA=6
    def __init__(s,k,R,S,srdA,srdB,NS,lds_base,a_step,b_step,a_blocked):
        s.k=k; s.R=R; s.S=S; s.srdA=srdA; s.srdB=srdB; s.NS=NS; s.base=lds_base
        s.a_step=a_step; s.b_step=b_step; s.a_blocked=a_blocked
    def setup_loader(s, vlane, tmp, lda, ldb, s_arow0, s_bcol0):
        k=s.k; e=k.e; R=s.R; S=s.S; t0,t1,t2,t3=tmp,tmp+1,tmp+2,tmp+3
        w=S['w']
        if s.a_blocked:
            e(f"s_lshl_b32 s{S['t']}, s{w}, 12\ns_add_u32 s{S['t']}, s{S['t']}, s{s_arow0}")
            e(f"v_lshlrev_b32 v{t0}, 4, v{vlane}\nv_add_u32 v{R['vA']}, s{S['t']}, v{t0}")
        else:
            e(f"v_lshrrev_b32 v{t0}, 3, v{vlane}")
            e(f"s_lshl_b32 s{S['t']}, s{w}, 5\nv_add_u32 v{t0}, s{S['t']}, v{t0}")
            e(f"s_mov_b32 s{S['t']}, {lda}\nv_mul_lo_u32 v{t0}, v{t0}, s{S['t']}\nv_add_u32 v{t0}, s{s_arow0}, v{t0}")
            e(f"v_and_b32 v{t1}, 7, v{vlane}\nv_lshrrev_b32 v{t2}, 4, v{vlane}\nv_xor_b32 v{t1}, v{t1}, v{t2}")
            e(f"v_xor_b32 v{t2}, 4, v{t1}")
            for i in range(4):
                u = t1 if i%2==0 else t2
                e(f"v_lshl_add_u32 v{R['vA']+i}, v{u}, 4, v{t0}")
                if i: e(f"v_add_u32 v{R['vA']+i}, {i*8*lda}, v{R['vA']+i}")
        e(f"v_lshrrev_b32 v{t0}, 3, v{vlane}\ns_lshl_b32 s{S['t']}, s{w}, 4\nv_add_u32 v{t0}, s{S['t']}, v{t0}")
        e(f"s_mov_b32 s{S['t']}, {ldb}\nv_mul_lo_u32 v{t0}, v{t0}, s{S['t']}\nv_add_u32 v{t0}, s{s_bcol0}, v{t0}")
        e(f"v_bfe_u32 v{t1}, v{vlane}, 4, 1\nv_lshlrev_b32 v{t1}, 2, v{t1}\nv_and_b32 v{t2}, 7, v{vlane}\nv_xor_b32 v{t1}, v{t1}, v{t2}")
        e(f"v_lshl_add_u32 v{R['vB']}, v{t1}, 4, v{t0}\nv_add_u32 v{R['vB']+1}, {8*ldb}, v{R['vB']}")
        e(f"s_lshl_b32 s{S['wA']}, s{w}, 12\ns_lshl_b32 s{S['wB']}, s{w}, 11\ns_add_u32 s{S['wB']}, s{S['wB']}, 16384")
        e(f"s_mov_b32 s{S['wr']}, {s.base}\ns_mov_b32 s{S['sA']}, 0\ns_mov_b32 s{S['sB']}, 0")
    def setup_consumer(s, vlane, tmp):
        k=s.k; e=k.e; R=s.R; S=s.S; t0,t1,t2,t3=tmp,tmp+1,tmp+2,tmp+3
        w=S['w']
        e(f"v_and_b32 v{t0}, 31, v{vlane}\nv_bfe_u32 v{t1}, v{vlane}, 1, 3\nv_lshrrev_b32 v{t2}, 5, v{vlane}\nv_xor_b32 v{t1}, v{t1}, v{t2}")
        e(f"s_lshl_b32 s{S['t']}, s{w}, 12\ns_add_u32 s{S['t']}, s{S['t']}, {s.base}")
        e(f"v_lshlrev_b32 v{t0}, 7, v{t0}\nv_add_u32 v{t0}, s{S['t']}, v{t0}")
        for st in range(4):
            e(f"v_xor_b32 v{t2}, {2*st}, v{t1}\nv_lshl_add_u32 v{R['vT']+st}, v{t2}, 4, v{t0}")
        e(f"v_lshrrev_b32 v{t0}, 5, v{vlane}\nv_lshlrev_b32 v{t0}, 3, v{t0}\nv_bfe_u32 v{t1}, v{vlane}, 2, 2\nv_add_u32 v{t0}, v{t0}, v{t1}\nv_lshlrev_b32 v{t0}, 7, v{t0}")
        e(f"v_and_b32 v{t1}, 1, v{vlane}\nv_lshlrev_b32 v{t1}, 1, v{t1}\nv_bfe_u32 v{t2}, v{vlane}, 4, 1\nv_add_u32 v{t1}, v{t1}, v{t2}")
        e(f"v_bfe_u32 v{t2}, v{vlane}, 3, 1\nv_lshlrev_b32 v{t2}, 2, v{t2}\nv_xor_b32 v{t1}, v{t1}, v{t2}")
        e(f"v_bfe_u32 v{t2}, v{vlane}, 1, 1\nv_lshlrev_b32 v{t2}, 3, v{t2}\nv_add_u32 v{t0}, v{t0}, v{t2}\nv_add_u32 v{t0}, {s.base+16384}, v{t0}")
        e(f"v_lshl_add_u32 v{R['vW']}, v{t1}, 4, v{t0}")
        e(f"v_xor_b32 v{t1}, 4, v{t1}\nv_lshl_add_u32 v{R['vW']+1}, v{t1}, 4, v{t0}")
        e(f"s_mov_b32 s{S['rd']}, {s.base}")
        for i in range(32): e(f"v_mov_b32 v{R['acc']+i}, 0")
    def dma(s):
        k=s.k; e=k.e; R=s.R; S=s.S
        if s.a_blocked:
            e(f"s_add_u32 m0, s{S['wr']}, s{S['wA']}\ns_add_u32 s{S['t']}, s{S['wr']}, s{S['wB']}")
            for i in range(4):
                e(f"buffer_load_dwordx4 v{R['vA']}, s[{s.srdA}:{s.srdA+3}], s{S['sA']} offen offset:{i*1024} lds")
        else:
            e(f"s_add_u32 s{S['t']}, s{S['wr']}, s{S['wA']}")
            for i in range(4):
                e(f"s_add_u32 m0, s{S['t']}, {i*1024}\ns_nop 0")
                e(f"buffer_load_dwordx4 v{R['vA']+i}, s[{s.srdA}:{s.srdA+3}], s{S['sA']} offen lds")
            e(f"s_add_u32 s{S['t']}, s{S['wr']}, s{S['wB']}")
        for i in range(2):
            e(f"s_add_u32 m0, s{S['t']}, {i*1024}\ns_nop 0")
            e(f"buffer_load_dwordx4 v{R['vB']+i}, s[{s.srdB}:{s.srdB+3}], s{S['sB']} offen lds")
        e(f"s_add_u32 s{S['sA']}, s{S['sA']}, {s.a_step}\ns_add_u32 s{S['sB']}, s{S['sB']}, {s.b_step}")
        e(f"s_add_u32 s{S['wr']}, s{S['wr']}, {STG}\ns_cmp_eq_u32 s{S['wr']}, {s.base+s.NS*STG}\ns_cselect_b32 s{S['wr']}, {s.base}, s{S['wr']}")
    def loader(s, nst, cnt, hooks=None, pre_hook=None):
        k=s.k; e=k.e; NS=s.NS; hooks=hooks or {}
        for i in range(NS-1): s.dma()
        n_pre=0
        if pre_hook: n_pre=pre_hook()
        assert n_pre==0
        e(f"s_waitcnt vmcnt({(NS-2)*s.NDMA})\ns_barrier")
        nloop=nst-(NS-1)
        L=k.lab("LD")
        e(f"s_mov_b32 s{cnt}, {nloop}")
        e(f"{L}:")
        e(f"s_waitcnt vmcnt({(NS-3)*s.NDMA})\ns_barrier")
        s.dma()
        e(f"s_sub_u32 s{cnt}, s{cnt}, 1\ns_cmp_lg_u32 s{cnt}, 0\ns_cbranch_scc1 {L}")
        extra=0
        for st in range(nloop, nst-1):
            rem = (nst-1)-(st+1)
            e(f"s_waitcnt vmcnt({rem*s.NDMA+extra})\ns_barrier")
            if st in hooks:
                fn,n=hooks[st]; fn(); extra+=n
        return extra
    def reads(s, ks, buf):
        e=s.k.e; R=s.R
        T=R['T']+4*buf; W=R['W']+8*buf
        e(f"ds_read_b128 v[{T}:{T+3}], v{R['vT']+ks}")
        for f in range(2):
            for t in range(2):
                e(f"ds_read_b64_tr_b16 v[{W+4*f+2*t}:{W+4*f+2*t+1}], v{R['vW']+f} offset:{ks*2048+t*512}")
    def mfmas(s, buf):
        e=s.k.e; R=s.R
        T=R['T']+4*buf; W=R['W']+8*buf
        for f in range(2):
            a=R['acc']+16*f
            e(f"v_mfma_f32_32x32x16_bf16 v[{a}:{a+15}], v[{W+4*f}:{W+4*f+3}], v[{T}:{T+3}], v[{a}:{a+15}]")
    def advance_read(s):
        e=s.k.e; R=s.R; S=s.S
        e(f"s_add_u32 s{S['t']}, s{S['rd']}, {STG}\ns_cmp_eq_u32 s{S['t']}, {s.base+s.NS*STG}\ns_cselect_b32 s{S['t']}, {s.base}, s{S['t']}")
        e(f"s_sub_u32 s{S['inc']}, s{S['t']}, s{S['rd']}\ns_mov_b32 s{S['rd']}, s{S['t']}")
        for i in range(4): e(f"v_add_u32 v{R['vT']+i}, s{S['inc']}, v{R['vT']+i}")
        for i in range(2): e(f"v_add_u32 v{R['vW']+i}, s{S['inc']}, v{R['vW']+i}")
    def cstage(s, last=False):
        e=s.k.e
        for ks in range(3):
            s.reads(ks+1,(ks+1)&1)
            e("s_waitcnt lgkmcnt(5)")
            s.mfmas(ks&1)
        if not last:
            e("s_barrier")
            s.advance_read()
            s.reads(0,0)
            e("s_waitcnt lgkmcnt(5)")
        else:
            e("s_waitcnt lgkmcnt(0)")
        s.mfmas(1)
    def consumer(s, nst, cnt):
        k=s.k; e=k.e
        e("s_barrier")
        s.reads(0,0)
        L=k.lab("CS")
        e(f"s_mov_b32 s{cnt}, {nst-1}")
        e(f"{L}:")
        s.cstage()
        e(f"s_sub_u32 s{cnt}, s{cnt}, 1\ns_cmp_lg_u32 s{cnt}, 0\ns_cbranch_scc1 {L}")
        s.cstage(last=True)
```

```python
from base import *

def dpp_reduce(k, regs):
    seq=["row_shr:1 row_mask:0xf bank_mask:0xf","row_shr:2 row_mask:0xf bank_mask:0xf",
         "row_shr:4 row_mask:0xf bank_mask:0xf","row_shr:8 row_mask:0xf bank_mask:0xf",
         "row_bcast:15 row_mask:0xa bank_mask:0xf","row_bcast:31 row_mask:0xc bank_mask:0xf"]
    for s in seq:
        k.nop(max(0,2-(len(regs)-1)))
        for r in regs:
            k.e(f"v_add_f32_dpp v{r}, v{r}, v{r} {s}")

def gen_k0():
    XL=131072; XLS=2080; DUMMY=XL+8*XLS
    k=Kern("k0_ln_kv_kernel", 256, 256, DUMMY+4096, vgpr=96, sgpr=64)
    e=k.e
    END=k.lab("END")
    e(f"s_cmp_ge_u32 s2, 256\ns_cbranch_scc1 {END}")
    k.stamp_begin()
    k.load_ptr(4,'x'); k.load_ptr(8,'wk'); k.load_ptr(12,'wv'); k.load_ptr(24,'wq'); k.load_ptr(28,'ws')
    e("v_lshrrev_b32 v1, 6, v0\nv_and_b32 v2, 63, v0")
    e("s_and_b32 s40, s2, 7\ns_lshr_b32 s41, s2, 3\ns_lshl_b32 s40, s40, 5\ns_add_u32 s32, s40, s41")
    e("v_readfirstlane_b32 s33, v1")
    e("v_lshlrev_b32 v3, 4, v2")
    e("v_lshrrev_b32 v4, 2, v2\nv_lshlrev_b32 v4, 6, v4\nv_lshrrev_b32 v5, 5, v2\nv_lshlrev_b32 v5, 1, v5\nv_and_b32 v6, 3, v2\nv_xor_b32 v5, v5, v6\nv_lshl_add_u32 v4, v5, 4, v4")
    e("s_waitcnt lgkmcnt(0)")
    k.srd(4, 2048*2048); k.srd(8, 65536); k.srd(12, 65536); k.srd(24, 2*MB)
    k.srd(16, 4*MB, src=28, add=WS_XN) ; k.srd(20, 64*4096, src=28, add=WS_KV)
    e("s_lshl_b32 s40, s32, 3\ns_lshl_b32 s41, s33, 1\ns_add_u32 s40, s40, s41\ns_lshl_b32 s34, s40, 11")
    for j in range(4):
        e(f"buffer_load_dwordx4 v[{8+4*j}:{11+4*j}], v3, s[4:7], s34 offen offset:{1024*j}")
    e("s_lshl_b32 s35, s33, 14")
    for mat,srd in ((0,8),(1,12)):
        for g in range(4):
            e(f"s_add_u32 s36, s35, {g*4096}")
            e(f"s_add_u32 m0, s36, {mat*65536}")
            e("s_nop 0")
            for i in range(4):
                e(f"buffer_load_dwordx4 v4, s[{srd}:{srd+3}], s36 offen offset:{1024*i} lds")
    e("s_lshr_b32 s40, s2, 3\ns_lshl_b32 s40, s40, 16\ns_add_u32 s37, s40, s35")
    e(f"s_mov_b32 m0, {DUMMY}")
    for g in range(4):
        e(f"s_add_u32 s36, s37, {g*4096}")
        for i in range(4):
            e(f"buffer_load_dwordx4 v3, s[24:27], s36 offen offset:{1024*i} lds")
    e("s_waitcnt vmcnt(48)")
    for row in range(2):
        for j in range(8):
            e(f"v_lshlrev_b32 v{32+16*row+2*j}, 16, v{8+8*row+j}")
            e(f"v_and_b32 v{33+16*row+2*j}, 0xffff0000, v{8+8*row+j}")
    for row in range(2):
        b=32+16*row; d=24+row
        e(f"v_add_f32 v{d}, v{b}, v{b+1}")
        for i in range(2,16): e(f"v_add_f32 v{d}, v{d}, v{b+i}")
    dpp_reduce(k,[24,25])
    e(f"v_mov_b32 v28, {hex(f2u(1/1024.))}\nv_mov_b32 v29, {hex(f2u(1e-5))}")
    e("v_readlane_b32 s38, v24, 63\nv_readlane_b32 s39, v25, 63")
    e("s_nop 1")
    e("v_mul_f32 v26, s38, v28\nv_mul_f32 v27, s39, v28")
    for row in range(2):
        b=32+16*row
        for i in range(16): e(f"v_sub_f32 v{b+i}, v{b+i}, v{26+row}")
    for row in range(2):
        b=32+16*row; d=24+row
        e(f"v_mul_f32 v{d}, v{b}, v{b}")
        for i in range(1,16): e(f"v_fmac_f32 v{d}, v{b+i}, v{b+i}")
    dpp_reduce(k,[24,25])
    e("s_nop 0")
    e("v_readlane_b32 s38, v24, 63\nv_readlane_b32 s39, v25, 63")
    e("s_nop 1")
    e("v_fma_f32 v26, s38, v28, v29\nv_fma_f32 v27, s39, v28, v29")
    e("v_rsq_f32 v26, v26\nv_rsq_f32 v27, v27")
    e("s_nop 0")
    for row in range(2):
        b=32+16*row
        for i in range(16): e(f"v_mul_f32 v{b+i}, v{b+i}, v{26+row}")
    for row in range(2):
        b=32+16*row
        for j in range(8): e(f"v_cvt_pk_bf16_f32 v{8+8*row+j}, v{b+2*j}, v{b+2*j+1}")
    e(f"s_lshl_b32 s40, s33, 1\ns_mul_i32 s40, s40, {XLS}\ns_add_u32 s40, s40, {XL}")
    e("v_add_u32 v5, s40, v3")
    for j in range(4):
        e(f"buffer_store_dwordx4 v[{8+4*j}:{11+4*j}], v3, s[16:19], s34 offen offset:{1024*j}")
    e("ds_write_b128 v5, v[8:11]")
    e("ds_write_b128 v5, v[12:15] offset:1024")
    e(f"ds_write_b128 v5, v[16:19] offset:{XLS}")
    e(f"ds_write_b128 v5, v[20:23] offset:{XLS+1024}")
    e("s_lshr_b32 s40, s33, 1\ns_and_b32 s41, s33, 1")
    e("v_lshrrev_b32 v6, 4, v2")
    e("v_and_b32 v7, 15, v2")
    e("v_lshrrev_b32 v30, 2, v7")
    e("v_and_b32 v31, 3, v2")
    e("v_lshl_add_u32 v30, v6, 3, v30\nv_lshlrev_b32 v30, 6, v30")
    e("v_lshrrev_b32 v64, 1, v31\ns_lshl_b32 s42, s41, 1\nv_add_u32 v64, s42, v64")
    e("v_and_b32 v65, 1, v6\nv_lshlrev_b32 v65, 1, v65\nv_xor_b32 v64, v64, v65")
    e("v_lshl_add_u32 v30, v64, 4, v30")
    e("v_and_b32 v65, 1, v31\nv_lshl_add_u32 v30, v65, 3, v30")
    e("s_lshl_b32 s42, s40, 16\nv_add_u32 v30, s42, v30")
    e(f"v_and_b32 v64, 7, v2\nv_mul_u32_u24 v64, {XLS}, v64\nv_lshl_add_u32 v64, v6, 4, v64\nv_add_u32 v31, {XL}, v64")
    e("s_waitcnt vmcnt(20) lgkmcnt(0)")
    e("s_barrier")
    LK=k.lab("V"); LE=k.lab("EPI")
    def gemm(swap):
        D=4
        def rd(s):
            b=32+8*(s%D)
            e(f"ds_read_b64_tr_b16 v[{b}:{b+1}], v30 offset:{s*2048}")
            e(f"ds_read_b64_tr_b16 v[{b+2}:{b+3}], v30 offset:{s*2048+256}")
            e(f"ds_read_b128 v[{b+4}:{b+7}], v31 offset:{s*64}")
        for s in range(D-1): rd(s)
        for s in range(32):
            if s+D-1<32: rd(s+D-1)
            left=min(D-1,31-s)
            e(f"s_waitcnt lgkmcnt({3*left})")
            b=32+8*(s%D)
            c = "0" if s==0 else "v[24:27]"
            if not swap: e(f"v_mfma_f32_16x16x32_bf16 v[24:27], v[{b}:{b+3}], v[{b+4}:{b+7}], {c}")
            else:        e(f"v_mfma_f32_16x16x32_bf16 v[24:27], v[{b+4}:{b+7}], v[{b}:{b+3}], {c}")
    e(f"s_cmp_eq_u32 s40, 1\ns_cbranch_scc1 {LK}")
    gemm(False)
    e("s_bfe_u32 s42, s32, 0x10001\ns_and_b32 s43, s32, 1")
    e("v_and_b32 v64, 7, v2\nv_lshrrev_b32 v65, 2, v64\nv_and_b32 v66, 3, v64")
    e("s_lshl_b32 s44, s42, 4\ns_lshl_b32 s45, s43, 2\ns_add_u32 s44, s44, s45")
    e("v_lshl_add_u32 v66, v65, 3, v66\nv_add_u32 v66, s44, v66")
    e("v_lshlrev_b32 v67, 6, v66")
    e("v_lshrrev_b32 v68, 1, v6\nv_lshlrev_b32 v68, 1, v68\nv_add_u32 v68, s41, v68")
    e("v_lshlrev_b32 v65, 1, v65\nv_add_u32 v65, s43, v65\nv_xor_b32 v68, v68, v65")
    e("v_lshl_add_u32 v67, v68, 4, v67\nv_and_b32 v68, 1, v6\nv_lshl_add_u32 v67, v68, 3, v67")
    e("s_lshr_b32 s44, s32, 2\ns_lshl_b32 s44, s44, 12")
    e("v_cvt_pk_bf16_f32 v24, v24, v25\nv_cvt_pk_bf16_f32 v25, v26, v27")
    e("v_cmp_gt_u32 vcc, 8, v7")
    e("s_and_saveexec_b64 s[46:47], vcc")
    e("buffer_store_dwordx2 v[24:25], v67, s[20:23], s44 offen")
    e(f"s_branch {LE}")
    e(f"{LK}:")
    gemm(True)
    e("v_lshrrev_b32 v65, 2, v7\nv_and_b32 v66, 3, v7\nv_lshl_add_u32 v66, v65, 3, v66\ns_lshl_b32 s44, s41, 2\nv_add_u32 v66, s44, v66")
    e("v_lshlrev_b32 v67, 6, v66")
    e("v_lshlrev_b32 v65, 1, v65\nv_add_u32 v65, s41, v65\nv_and_b32 v65, 3, v65\ns_and_b32 s43, s32, 3\nv_xor_b32 v65, s43, v65")
    e("v_lshl_add_u32 v67, v65, 4, v67\nv_lshl_add_u32 v67, v6, 3, v67")
    e("s_lshr_b32 s44, s32, 2\ns_lshl_b32 s44, s44, 12\ns_add_u32 s44, s44, 2048")
    e("v_cvt_pk_bf16_f32 v24, v24, v25\nv_cvt_pk_bf16_f32 v25, v26, v27")
    e("v_cmp_gt_u32 vcc, 32, v2")
    e("s_and_saveexec_b64 s[46:47], vcc")
    e("buffer_store_dwordx2 v[24:25], v67, s[20:23], s44 offen")
    e(f"{LE}:")
    e("s_mov_b64 exec, -1")
    e("s_waitcnt vmcnt(0)")
    k.stamp_end(0)
    e(f"{END}:")
    e("s_endpgm")
    return k
```

```python
from base import *
from gemm128 import *
import os
VAR=os.environ.get('K1VAR','')

QSCALE = (32**-0.5)*1.4426950408889634

def gen_k1():
    k=Kern("k1_q_attn_kernel", 256, 512, 163840, vgpr=176, sgpr=96)
    e=k.e
    END=k.lab("END")
    R=dict(vA=4,vB=8,vT=10,vW=14,T=16,W=24,acc=40)
    S=dict(w=33,sA=40,sB=41,wr=42,rd=43,inc=44,wA=45,wB=46,t=47)
    Q=72; SS=80; P=112; O=120; Lr=136; KF=140; V0=148; V1=152; SEL=156; AK=160; AV0=162; AV1=163; CSA=164
    VCS=172; VO=173; VCSW=174; CSD=8
    QX=98304; CSS=131072; DUM=139264
    e(f"s_cmp_ge_u32 s2, 256\ns_cbranch_scc1 {END}")
    k.stamp_begin()
    k.load_ptr(8,'wq'); k.load_ptr(28,'ws'); k.load_ptr(20,'wg'); k.load_ptr(22,'wu'); k.load_ptr(48,'wo'); k.load_ptr(52,'wd')
    e("v_lshrrev_b32 v1, 6, v0\nv_and_b32 v2, 63, v0")
    e("s_and_b32 s30, s2, 7\ns_lshr_b32 s31, s2, 3")
    e("s_and_b32 s32, s31, 1\ns_lshl_b32 s30, s30, 1\ns_add_u32 s34, s30, s32")
    e("s_lshr_b32 s35, s31, 1")
    e("v_readfirstlane_b32 s58, v1")
    e("v_lshlrev_b32 v3, 4, v2")
    e("s_and_b32 s33, s58, 3")
    e("s_lshl_b32 s36, s34, 18\ns_lshl_b32 s37, s35, 7")
    e("s_lshl_b32 s38, s33, 13")
    e("s_waitcnt lgkmcnt(0)")
    k.srd(8, 2*MB)
    k.srd(4, 4*MB, src=28, add=WS_XN); k.srd(12, 64*4096, src=28, add=WS_KV); k.srd(16, 4*MB, src=28, add=WS_O)
    g=G128(k,R,S,4,8,4,65536,128,64*2048,False)
    LCONS=k.lab("CONS"); LJ=k.lab("JOIN")
    e(f"s_cmp_lt_u32 s58, 4\ns_cbranch_scc1 {LCONS} ; @alt")
    def kv_dma(c):
        for gi in range(2):
            e(f"s_add_u32 s47, s38, {c*32768+gi*4096}")
            e(f"s_add_u32 m0, s38, {(c&3)*32768+gi*4096}\ns_nop 0")
            for i in range(4):
                e(f"buffer_load_dwordx4 v3, s[12:15], s47 offen offset:{i*1024} lds")
    g.setup_loader(2, 60, 2048, 2048, 36, 37)
    g.loader(16, 39, hooks={13:(lambda:(kv_dma(0),kv_dma(1)),16), 14:(lambda:kv_dma(2),8)})
    e("s_waitcnt vmcnt(16)\ns_barrier")
    e(f"s_lshl_b32 s47, s33, 11\ns_add_u32 s47, s47, {QX}\nv_add_u32 v4, s47, v3")
    e(f"ds_read_b128 v[{Q}:{Q+3}], v4\nds_read_b128 v[{Q+4}:{Q+7}], v4 offset:1024")
    e(f"s_branch {LJ}")
    e(f"{LCONS}:")
    g.setup_consumer(2, 60)
    e("s_cmp_ge_u32 s2, 128\ns_cselect_b32 s20, s22, s20\ns_cselect_b32 s21, s23, s21")
    k.srd(20, 3584*1024*2); k.srd(48, 2*MB); k.srd(52, 3584*1024*2)
    k.srd(24, 4*7168*4, src=28, add=WS_CS)
    g.consumer(16, 39)
    e("v_min_u32 v16, 55, v2\nv_mul_u32_u24 v17, 4682, v16\nv_lshrrev_b32 v17, 16, v17")
    e("v_mul_u32_u24 v18, 14, v17\nv_sub_u32 v18, v16, v18")
    e("s_and_b32 s30, s2, 3\ns_lshl_b32 s30, s30, 8\ns_lshl_b32 s31, s33, 6\ns_add_u32 s30, s30, s31")
    e("v_add_u32 v19, s30, v17\nv_mul_u32_u24 v19, 7168, v19")
    e("s_bfe_u32 s31, s2, 0x50002\ns_mul_i32 s31, s31, 224\nv_lshl_add_u32 v19, v18, 4, v19")
    e(f"v_add_u32 v{VCS}, s31, v19")
    e(f"s_lshl_b32 s30, s33, 2\nv_add_u32 v17, s30, v17\nv_mul_u32_u24 v17, 448, v17\nv_lshl_add_u32 v17, v18, 5, v17\nv_add_u32 v{VCSW}, {CSS}, v17")
    e("s_mov_b32 s60, 0x00003f80\ns_mov_b32 s61, 0x3f800000")
    e("s_lshr_b32 s62, s2, 3\ns_lshl_b32 s62, s62, 16\ns_lshl_b32 s63, s33, 14\ns_add_u32 s62, s62, s63")
    e("s_lshl_b32 s63, s2, 2\ns_add_u32 s63, s63, s33\ns_mul_i32 s63, s63, 7168")
    e(f"v_mov_b32 v16, {hex(f2u(QSCALE))}")
    for i in range(32): e(f"v_mul_f32 v{R['acc']+i}, v{R['acc']+i}, v16")
    for i in range(8): e(f"v_cvt_pk_bf16_f32 v{Q+i}, v{R['acc']+2*i}, v{R['acc']+2*i+1}")
    for i in range(8): e(f"v_cvt_pk_bf16_f32 v{16+i}, v{R['acc']+16+2*i}, v{R['acc']+16+2*i+1}")
    e(f"s_lshl_b32 s47, s33, 11\ns_add_u32 s47, s47, {QX}\nv_add_u32 v4, s47, v3")
    e(f"ds_write_b128 v4, v[16:19]\nds_write_b128 v4, v[20:23] offset:1024")
    for i in range(8): e(f"v_mov_b32 v{CSA+i}, 0")
    e("s_waitcnt lgkmcnt(0)\ns_barrier")
    e(f"{LJ}:")
    k.stamp_mid(0)
    e("v_and_b32 v8, 31, v2\nv_bfe_u32 v9, v2, 2, 2\nv_lshrrev_b32 v10, 5, v2\nv_xor_b32 v9, v9, v10")
    e(f"v_lshlrev_b32 v8, 6, v8\nv_lshl_add_u32 v{AK}, v9, 4, v8\nv_xor_b32 v9, 2, v9\nv_lshl_add_u32 v{AK+1}, v9, 4, v8")
    e(f"v_mov_b32 v{AV0}, v{AK}\nv_mov_b32 v{AV1}, v{AK+1}")
    def rdK(tl):
        for m in range(2): e(f"ds_read_b128 v[{KF+4*m}:{KF+4*m+3}], v{AK+m} offset:{tl*4096}")
    def rdV0(tl): e(f"ds_read_b128 v[{V0}:{V0+3}], v{AV0} offset:{tl*4096+2048}")
    def rdV1(tl): e(f"ds_read_b128 v[{V1}:{V1+3}], v{AV1} offset:{tl*4096+2048}")
    rdK(0); rdV0(0)
    e("v_bfe_u32 v8, v2, 2, 1\nv_bfe_u32 v9, v2, 4, 1\nv_xor_b32 v8, v8, v9\nv_and_b32 v9, 3, v2\nv_or_b32 v8, v8, v9")
    e("v_mov_b32 v9, 0x3f803f80\nv_cmp_eq_u32 vcc, 0, v8\ns_nop 1")
    e(f"v_cndmask_b32 v{SEL}, 0, v9, vcc")
    for i in range(1,4): e(f"v_mov_b32 v{SEL+i}, v{SEL}")
    e(f"s_lshl_b32 s47, s33, 5\ns_lshl_b32 s30, s34, 7\ns_add_u32 s47, s47, s30\nv_and_b32 v8, 31, v2\nv_add_u32 v8, s47, v8\nv_lshlrev_b32 v8, 11, v8")
    e(f"s_lshr_b32 s30, s58, 2\ns_lshl_b32 s30, s30, 6\ns_add_u32 s30, s30, s37\nv_lshrrev_b32 v9, 5, v2\nv_lshl_add_u32 v8, v9, 5, v8\nv_add_u32 v{VO}, s30, v8")
    for i in range(16): e(f"v_mov_b32 v{O+i}, 0")
    for i in range(4): e(f"v_mov_b32 v{Lr+i}, 0\nv_mov_b32 v{P+4+i}, 0\nv_mov_b32 v{V1+i}, 0")
    e("s_waitcnt lgkmcnt(0)")
    def mf(d,a,b,c=None):
        cs = c if c else f"v[{d}:{d+15}]"
        e(f"v_mfma_f32_32x32x16_bf16 v[{d}:{d+15}], v[{a}:{a+3}], v[{b}:{b+3}], {cs}")
    def rs(b): e(f"v_mfma_f32_16x16x32_bf16 v[{Lr}:{Lr+3}], v[{SEL}:{SEL+3}], v[{b}:{b+3}], v[{Lr}:{Lr+3}]")
    mf(SS,KF,Q,"0"); mf(SS,KF+4,Q+4)
    rdK(1)
    e("s_waitcnt lgkmcnt(0)")
    k.nop(10)
    PAT="W3 E0 E1 PV1p RV1 E2 E3 C0 E4 W2 QK0 E5 C1 E6 E7 RS1p C2 E8 QK1 RK C3 E9 E10 E11 W3 PV0 RV0 C4 E12 E13 C5 RS0 E14 E15 C6 C7".split()
    def slot(tl):
        par=tl&1
        Sc=SS+16*par; Sn=SS+16*(1-par)
        for t in PAT:
            if t[0]=='E': i=int(t[1:]); e(f"v_exp_f32 v{Sc+i}, v{Sc+i}")
            elif t[0]=='C': i=int(t[1:]); e(f"v_cvt_pk_bf16_f32 v{P+i}, v{Sc+2*i}, v{Sc+2*i+1}")
            elif t[0]=='W':
                if 'nowait' not in VAR: e(f"s_waitcnt lgkmcnt({t[1]})")
            elif t=='QK0': mf(Sn,KF,Q,"0")
            elif t=='QK1': mf(Sn,KF+4,Q+4)
            elif t=='PV0': mf(O,V0,P)
            elif t=='PV1p': mf(O,V1,P+4)
            elif t=='RS0': rs(P)
            elif t=='RS1p': rs(P+4)
            elif 'noread' in VAR: pass
            elif t=='RV1': rdV1(tl)
            elif t=='RK': rdK((tl+2)&7)
            elif t=='RV0': rdV0((tl+1)&7)
    LT0=k.lab("T0"); LT6=k.lab("T6"); LX=k.lab("X"); LG1=k.lab("G1")
    SN0=[k.lab(f"SA{c}") for c in range(8)]
    e("s_mov_b32 s39, 0")
    e(f"s_branch {LT0}")
    e(f"{LT6}:")
    e(f"v_add_u32 v{AK}, s59, v{AK}\nv_add_u32 v{AK+1}, s59, v{AK+1}")
    slot(6)
    e(f"v_add_u32 v{AV0}, s59, v{AV0}")
    slot(7)
    e(f"v_add_u32 v{AV1}, s59, v{AV1}")
    e(f"s_cmp_eq_u32 s39, 8\ns_cbranch_scc1 {LX} ; @exit")
    e(f"{LT0}:")
    for tl in range(6): slot(tl)
    e("s_and_b32 s47, s39, 3\ns_mov_b32 s59, 0xfffe8000\ns_cmp_eq_u32 s47, 3\ns_cselect_b32 s59, s59, 0x8000")
    e(f"s_cmp_ge_u32 s58, 4\ns_cbranch_scc1 {LG1} ; @g1")
    for c in range(7):
        e(f"s_cmp_eq_u32 s39, {c}\ns_cbranch_scc1 {SN0[c]}")
    e(f"s_branch {SN0[7]}")
    e(f"{LG1}:")
    LG1a=k.lab("G1a"); LG1b=k.lab("G1b"); LG1c=k.lab("G1c")
    e(f"s_cmp_ge_u32 s39, 6\ns_cbranch_scc1 {LG1a}")
    e("s_waitcnt vmcnt(8)\ns_barrier")
    e(f"s_cmp_ge_u32 s39, 5\ns_cbranch_scc1 {LG1c}")
    e("s_add_u32 s30, s39, 3\ns_lshl_b32 s31, s30, 15\ns_and_b32 s30, s30, 3\ns_lshl_b32 s30, s30, 15\ns_add_u32 s30, s30, s38\ns_add_u32 s31, s31, s38")
    for gi in range(2):
        e(f"s_add_u32 m0, s30, {gi*4096}\ns_add_u32 s47, s31, {gi*4096}")
        for i in range(4):
            e(f"buffer_load_dwordx4 v3, s[12:15], s47 offen offset:{i*1024} lds")
    e(f"s_branch {LG1c}")
    e(f"{LG1a}:")
    e(f"s_cmp_eq_u32 s39, 7\ns_cbranch_scc1 {LG1c}")
    e("s_waitcnt vmcnt(0)\ns_barrier")
    e(f"{LG1c}:")
    e(f"s_add_u32 s39, s39, 1\ns_branch {LT6}")
    def cs_loads(j):
        for i in range(4):
            ii=4*j+i
            e(f"s_mov_b32 s47, {ii*4*7168}")
            e(f"buffer_load_dwordx4 v[{CSD+16*j+4*i}:{CSD+16*j+4*i+3}], v{VCS}, s[20:23], s47 offen")
    def cs_acc(j):
        for i in range(4):
            for d in range(4):
                r=CSD+16*j+4*i+d
                e(f"v_dot2_f32_bf16 v{CSA+2*d}, v{r}, s60, v{CSA+2*d}")
                e(f"v_dot2_f32_bf16 v{CSA+2*d+1}, v{r}, s61, v{CSA+2*d+1}")
    def prefetch(srd, base_s, first, n):
        e(f"s_mov_b32 m0, {DUM}")
        for i in range(n):
            e(f"s_add_u32 s47, s{base_s}, {(first+i)*1024}")
            e(f"buffer_load_dwordx4 v3, s[{srd}:{srd+3}], s47 offen lds")
    side='noside' not in VAR
    for c in range(8):
        e(f"{SN0[c]}:")
        if c==6: e("s_waitcnt lgkmcnt(0)")
        if c<7: e("s_barrier")
        if side:
            if 2<=c<=5:
                nxt = 4 if c-1<4 else 8
                e(f"s_waitcnt vmcnt({nxt})")
                cs_acc(c-2)
            if c<4: cs_loads(c)
            if c==4: prefetch(48,62,0,8)
            if c==5: prefetch(48,62,8,8)
            if c==6: prefetch(52,63,0,7)
            if c==5:
                e(f"ds_write_b128 v{VCSW}, v[{CSA}:{CSA+3}]\nds_write_b128 v{VCSW}, v[{CSA+4}:{CSA+7}] offset:16")
                e("s_waitcnt lgkmcnt(0)")
            if c==6:
                LS=k.lab("CSS")
                e("v_cmp_gt_u32 vcc, 112, v0\ns_and_saveexec_b64 s[66:67], vcc")
                e(f"s_cbranch_execz {LS}")
                e(f"v_lshlrev_b32 v8, 2, v0\nv_add_u32 v8, {CSS}, v8")
                for j in range(8): e(f"ds_read_b32 v{16+j}, v8 offset:{j*448}")
                e("s_waitcnt lgkmcnt(0)")
                for j in range(8): e(f"ds_read_b32 v{24+j}, v8 offset:{(8+j)*448}")
                for j in range(1,8): e(f"v_add_f32 v16, v16, v{16+j}")
                e("s_waitcnt lgkmcnt(0)")
                for j in range(8): e(f"v_add_f32 v16, v16, v{24+j}")
                e("s_and_b32 s30, s2, 3\ns_mul_i32 s30, s30, 28672\ns_lshr_b32 s31, s2, 7\ns_mul_i32 s31, s31, 14336\ns_add_u32 s30, s30, s31")
                e("s_bfe_u32 s31, s2, 0x50002\ns_mul_i32 s31, s31, 448\ns_add_u32 s30, s30, s31")
                e("v_lshlrev_b32 v8, 2, v0")
                e("buffer_store_dword v16, v8, s[24:27], s30 offen")
                e(f"{LS}:\ns_mov_b64 exec, s[66:67]")
        e(f"s_add_u32 s39, s39, 1\ns_branch {LT6}")
    e(f"{LX}:")
    k.stamp_mid(1)
    e("s_waitcnt lgkmcnt(0)")
    mf(O,V1,P+4); rs(P+4)
    k.nop(12)
    LFB=k.lab("FB"); LFIN=k.lab("FIN")
    e(f"v_mov_b32 v8, 0")
    for i in range(16): e(f"v_fmac_f32 v8, 0, v{O+i}")
    e(f"v_mov_b32 v9, {hex(f2u(2.0**-60))}\nv_mov_b32 v10, {hex(f2u(2.0**60))}")
    e(f"v_cmp_o_f32 s[64:65], v8, v8")
    e(f"v_cmp_le_f32 s[66:67], v9, v{Lr}")
    e(f"v_cmp_ge_f32 s[70:71], v10, v{Lr}")
    e("s_and_b64 s[64:65], s[64:65], s[66:67]\ns_and_b64 s[64:65], s[64:65], s[70:71]")
    e(f"s_cmp_eq_u64 s[64:65], exec\ns_cbranch_scc0 {LFB}")
    e(f"{LFIN}:")
    e(f"v_rcp_f32 v8, v{Lr}")
    e("s_nop 0")
    for i in range(16): e(f"v_mul_f32 v{O+i}, v{O+i}, v8")
    for i in range(8): e(f"v_cvt_pk_bf16_f32 v{16+i}, v{O+2*i}, v{O+2*i+1}")
    for j in range(2):
        e(f"buffer_store_dwordx4 v[{16+4*j}:{19+4*j}], v{VO}, s[16:19], 0 offen offset:{j*16}")
    e("s_waitcnt vmcnt(0)")
    k.stamp_end(1)
    e("s_endpgm")
    e(f"{LFB}:")
    e("s_waitcnt vmcnt(0)")
    e("v_and_b32 v8, 31, v2\nv_bfe_u32 v9, v2, 2, 2\nv_lshrrev_b32 v10, 5, v2\nv_xor_b32 v9, v9, v10")
    e(f"v_lshlrev_b32 v8, 6, v8\nv_lshl_add_u32 v{AK}, v9, 4, v8\nv_xor_b32 v9, 2, v9\nv_lshl_add_u32 v{AK+1}, v9, 4, v8")
    e("v_mov_b32 v8, 0xff800000")
    F1=k.lab("F1"); F2=k.lab("F2")
    e(f"s_mov_b32 s47, 0\n{F1}:")
    for m in range(2): e(f"buffer_load_dwordx4 v[{KF+4*m}:{KF+4*m+3}], v{AK+m}, s[12:15], s47 offen")
    e("s_waitcnt vmcnt(0)")
    mf(SS,KF,Q,"0"); mf(SS,KF+4,Q+4)
    k.nop(12)
    for i in range(16): e(f"v_max_f32 v8, v8, v{SS+i}")
    e(f"s_add_u32 s47, s47, 4096\ns_cmp_lt_u32 s47, {64*4096}\ns_cbranch_scc1 {F1}")
    e("v_mov_b32 v10, v8\ns_nop 1\nv_permlane32_swap_b32 v8, v10\ns_nop 1\nv_max_f32 v8, v8, v10")
    for i in range(16): e(f"v_mov_b32 v{O+i}, 0")
    for i in range(4): e(f"v_mov_b32 v{Lr+i}, 0")
    e(f"s_mov_b32 s47, 0\n{F2}:")
    for m in range(2): e(f"buffer_load_dwordx4 v[{KF+4*m}:{KF+4*m+3}], v{AK+m}, s[12:15], s47 offen")
    e(f"buffer_load_dwordx4 v[{V0}:{V0+3}], v{AK}, s[12:15], s47 offen offset:2048")
    e(f"buffer_load_dwordx4 v[{V1}:{V1+3}], v{AK+1}, s[12:15], s47 offen offset:2048")
    e("s_waitcnt vmcnt(0)")
    mf(SS,KF,Q,"0"); mf(SS,KF+4,Q+4)
    k.nop(12)
    for i in range(16): e(f"v_sub_f32 v{SS+i}, v{SS+i}, v8")
    for i in range(16): e(f"v_exp_f32 v{SS+i}, v{SS+i}")
    e("s_nop 0")
    for i in range(8): e(f"v_cvt_pk_bf16_f32 v{P+i}, v{SS+2*i}, v{SS+2*i+1}")
    e("s_nop 1")
    mf(O,V0,P); mf(O,V1,P+4); rs(P); rs(P+4)
    k.nop(12)
    e(f"s_add_u32 s47, s47, 4096\ns_cmp_lt_u32 s47, {64*4096}\ns_cbranch_scc1 {F2}")
    e(f"s_branch {LFIN}")
    e(f"{END}:")
    e("s_endpgm")
    return k
```

```python
from base import *
from gemm128 import *

def common(name, kidx, nst, NS):
    k=Kern(name, 256, 512, NS*STG, vgpr=112, sgpr=80)
    return k

def h_addr(k, vdst, t, s_m, s_n, s_w):
    e=k.e
    e(f"s_lshr_b32 s30, s{s_m}, 1\ns_lshl_b32 s30, s30, 5\ns_lshl_b32 s31, s{s_n}, 1\ns_add_u32 s30, s30, s31\ns_lshl_b32 s30, s30, 14")
    e(f"s_and_b32 s31, s{s_m}, 1\ns_lshl_b32 s31, s31, 13\ns_add_u32 s30, s30, s31\ns_lshl_b32 s31, s{s_w}, 11\ns_add_u32 s30, s30, s31")
    e(f"v_and_b32 v{t}, 31, v2\nv_lshlrev_b32 v{t}, 6, v{t}\nv_add_u32 v{t}, s30, v{t}")
    e(f"v_lshrrev_b32 v{t+1}, 5, v2\nv_lshl_add_u32 v{t}, v{t+1}, 3, v{t}")
    e(f"v_bfe_u32 v{t+2}, v2, 2, 1\nv_mul_u32_u24 v{t+2}, 48, v{t+2}\nv_add_u32 v{vdst}, v{t}, v{t+2}")
    for g in range(1,4): e(f"v_xor_b32 v{vdst+g}, {16*g}, v{vdst}")

def gen_gemm(kind):
    isWo = kind=='wo'
    nst = 16 if isWo else 56
    NS=6
    name = "k2_wo_kernel" if isWo else "k4_down_kernel"
    kidx = 2 if isWo else 4
    k=common(name,kidx,nst,NS); e=k.e
    END=k.lab("END")
    R=dict(vA=4,vB=8,vT=10,vW=14,T=16,W=24,acc=40)
    S=dict(w=33,sA=40,sB=41,wr=42,rd=43,inc=44,wA=45,wB=46,t=47)
    RES=72; VH=88; VOUT=92; VST=93
    e(f"s_cmp_ge_u32 s2, 256\ns_cbranch_scc1 {END}")
    k.stamp_begin()
    k.load_ptr(8,'wo' if isWo else 'wd'); k.load_ptr(28,'ws')
    k.load_ptr(20,'x' if isWo else 'out')
    e("v_lshrrev_b32 v1, 6, v0\nv_and_b32 v2, 63, v0")
    e("s_and_b32 s30, s2, 7\ns_lshr_b32 s31, s2, 3")
    if isWo:
        e("s_and_b32 s32, s31, 1\ns_lshl_b32 s30, s30, 1\ns_add_u32 s34, s30, s32\ns_lshr_b32 s35, s31, 1")
    else:
        e("s_lshr_b32 s32, s30, 1\ns_lshl_b32 s32, s32, 2\ns_and_b32 s34, s31, 3\ns_add_u32 s34, s34, s32")
        e("s_and_b32 s32, s30, 1\ns_lshl_b32 s32, s32, 3\ns_lshr_b32 s35, s31, 2\ns_add_u32 s35, s35, s32")
    e("v_readfirstlane_b32 s58, v1")
    e("s_lshl_b32 s37, s35, 7")
    if isWo: e("s_lshl_b32 s36, s34, 18")
    else:    e(f"s_mul_i32 s36, s34, {56*16384}")
    e("s_and_b32 s33, s58, 3")
    e("s_waitcnt lgkmcnt(0)")
    if isWo:
        k.srd(8, 2*MB); k.srd(4, 4*MB, src=28, add=WS_O)
        g=G128(k,R,S,4,8,NS,0,128,64*2048,False)
    else:
        k.srd(8, 3584*2048); k.srd(4, 2048*3584*2, src=28, add=WS_ACT)
        g=G128(k,R,S,4,8,NS,0,16384,64*2048,True)
    LCONS=k.lab("CONS")
    e(f"s_cmp_lt_u32 s58, 4\ns_cbranch_scc1 {LCONS} ; @alt")
    g.setup_loader(2, 60, 2048, 2048, 36, 37)
    g.loader(nst, 39)
    e("s_endpgm")
    e(f"{LCONS}:")
    k.srd(12, 4*MB, src=28, add=WS_H)
    k.srd(20, 4*MB)
    h_addr(k, VH, 60, 34, 35, 33)
    e(f"s_lshl_b32 s30, s34, 7\ns_lshl_b32 s31, s33, 5\ns_add_u32 s30, s30, s31\nv_and_b32 v60, 31, v2\nv_add_u32 v61, s30, v60\nv_lshlrev_b32 v60, 11, v61")
    e(f"v_lshrrev_b32 v62, 5, v2\nv_lshl_add_u32 v60, v62, 5, v60\nv_add_u32 v{VOUT}, s37, v60")
    e("s_mov_b32 s48, 16384")
    if isWo:
        k.srd(16, 2048*128, src=28, add=WS_ST)
        e(f"v_lshlrev_b32 v61, 7, v61\ns_lshl_b32 s30, s35, 3\nv_add_u32 v{VST}, s30, v61")
        for f in range(2):
            for j in range(2):
                e(f"buffer_load_dwordx4 v[{RES+8*f+4*j}:{RES+8*f+4*j+3}], v{VOUT}, s[20:23], 0 offen offset:{f*64+j*16}")
    else:
        for f in range(2):
            so = "0" if f==0 else "s48"
            for g4 in range(4):
                e(f"buffer_load_dwordx2 v[{RES+8*f+2*g4}:{RES+8*f+2*g4+1}], v{VH+g4}, s[12:15], {so} offen")
    g.setup_consumer(2, 60)
    g.consumer(nst, 39)
    k.stamp_mid(0)
    A=R['acc']
    e("s_waitcnt vmcnt(0)")
    for f in range(2):
        for j in range(8):
            e(f"v_lshlrev_b32 v{16+2*j}, 16, v{RES+8*f+j}\nv_and_b32 v{17+2*j}, 0xffff0000, v{RES+8*f+j}")
        if f==0: k.nop(2)
        for i in range(16): e(f"v_add_f32 v{A+16*f+i}, v{A+16*f+i}, v{16+i}")
    for f in range(2):
        for j in range(8): e(f"v_cvt_pk_bf16_f32 v{RES+8*f+j}, v{A+16*f+2*j}, v{A+16*f+2*j+1}")
    if isWo:
        for f in range(2):
            so = "0" if f==0 else "s48"
            for g4 in range(4):
                e(f"buffer_store_dwordx2 v[{RES+8*f+2*g4}:{RES+8*f+2*g4+1}], v{VH+g4}, s[12:15], {so} offen")
        e(f"v_add_f32 v16, v{A}, v{A+1}")
        for i in range(2,32): e(f"v_add_f32 v16, v16, v{A+i}")
        e("v_mov_b32 v17, v16\ns_nop 1\nv_permlane32_swap_b32 v16, v17\ns_nop 1\nv_add_f32 v16, v16, v17")
        e(f"v_mul_f32 v18, {hex(f2u(1/64.))}, v16")
        for i in range(32): e(f"v_sub_f32 v{A+i}, v{A+i}, v18")
        e(f"v_mul_f32 v17, v{A}, v{A}")
        for i in range(1,32): e(f"v_fmac_f32 v17, v{A+i}, v{A+i}")
        e("v_mov_b32 v19, v17\ns_nop 1\nv_permlane32_swap_b32 v17, v19\ns_nop 1\nv_add_f32 v17, v17, v19")
        e("v_cmp_gt_u32 vcc, 32, v2\ns_and_saveexec_b64 s[50:51], vcc")
        e(f"buffer_store_dwordx2 v[16:17], v{VST}, s[16:19], 0 offen")
        e("s_mov_b64 exec, s[50:51]")
    else:
        for f in range(2):
            for j in range(2):
                e(f"buffer_store_dwordx4 v[{RES+8*f+4*j}:{RES+8*f+4*j+3}], v{VOUT}, s[20:23], 0 offen offset:{f*64+j*16}")
    e("s_waitcnt vmcnt(0)")
    k.stamp_end(kidx)
    e(f"{END}:")
    e("s_endpgm")
    return k
def gen_k2(): return gen_gemm('wo')
def gen_k4(): return gen_gemm('down')
```

```python
from base import *
import os, math
VAR=os.environ.get('K3VAR','')
SLOT=30720; NS=5
ST_OFF=NS*SLOT
CS_OFF=ST_OFF+4096
C0=-2.0*1.4426950408889634*math.sqrt(2.0/math.pi)
C1=C0*0.044715

def gen_k3():
    k=Kern("k3_gateup_kernel", 256, 256, CS_OFF+1024, vgpr=256, agpr=120, sgpr=96)
    e=k.e
    END=k.lab("END")
    ACC=32; TB=0; WB=32; STA=88
    def acc(v,tf): return ACC+4*(4*v+tf)
    e(f"s_cmp_ge_u32 s2, 256\ns_cbranch_scc1 {END}")
    k.stamp_begin()
    k.load_ptr(28,'ws'); k.load_ptr(8,'wg'); k.load_ptr(10,'wu')
    e("v_lshrrev_b32 v1, 6, v0\nv_and_b32 v2, 63, v0")
    e("s_and_b32 s30, s2, 7\ns_lshr_b32 s31, s2, 3")
    e("s_and_b32 s32, s30, 1\ns_lshl_b32 s32, s32, 2\ns_and_b32 s34, s31, 3\ns_add_u32 s34, s34, s32")
    e("s_lshr_b32 s32, s30, 1\ns_lshl_b32 s32, s32, 3\ns_lshr_b32 s35, s31, 2\ns_add_u32 s35, s35, s32")
    e("v_readfirstlane_b32 s33, v1")
    e("s_waitcnt lgkmcnt(0)")
    e("s_cmp_ge_u32 s33, 2\ns_cselect_b32 s8, s10, s8\ns_cselect_b32 s9, s11, s9")
    k.srd(8, 1024*7168)
    k.srd(4, 4*MB, src=28, add=WS_H); k.srd(12, 2048*128, src=28, add=WS_ST); k.srd(16, 4*7168*4, src=28, add=WS_CS)
    k.srd(20, 2048*3584*2, src=28, add=WS_ACT)
    e("s_lshl_b32 s36, s34, 15\nv_lshlrev_b32 v3, 7, v0")
    for i in range(8):
        e(f"buffer_load_dwordx4 a[{STA+4*i}:{STA+4*i+3}], v3, s[12:15], s36 offen offset:{16*i}")
    e("v_min_u32 v4, 223, v0\nv_cmp_le_u32 vcc, 112, v4")
    e("v_mov_b32 v6, 3472\nv_mov_b32 v5, 0\nv_cndmask_b32 v5, v5, v6, vcc\nv_add_u32 v5, v5, v4\ns_mul_i32 s37, s35, 112\nv_add_u32 v5, s37, v5\nv_lshlrev_b32 v5, 2, v5")
    for q in range(4):
        e(f"s_mov_b32 s38, {q*28672}\nbuffer_load_dword v{24+q}, v5, s[16:19], s38 offen")
    e("s_lshl_b32 s40, s34, 19")
    e("s_lshl_b32 s37, s33, 12\nv_lshlrev_b32 v3, 4, v2\nv_add_u32 v4, s37, v3")
    e("s_and_b32 s37, s33, 1\ns_lshl_b32 s37, s37, 2\ns_mul_i32 s38, s35, 224")
    for i in range(4):
        e(f"s_add_u32 s39, s37, {i}\ns_min_u32 s39, s39, 6\ns_lshl_b32 s{52+i}, s39, 10\ns_lshl_b32 s39, s39, 6")
        e(f"v_add_u32 v10, s39, v2\nv_mul_u32_u24 v11, 4682, v10\nv_lshrrev_b32 v11, 16, v11\nv_mul_u32_u24 v12, 14, v11\nv_sub_u32 v12, v10, v12")
        e(f"v_mul_u32_u24 v11, 7168, v11\nv_lshl_add_u32 v11, v12, 4, v11\nv_add_u32 v{5+i}, s38, v11")
    e("s_lshr_b32 s39, s33, 1\ns_mul_i32 s39, s39, 7168\ns_add_u32 s39, s39, 16384")
    for i in range(4): e(f"s_add_u32 s{52+i}, s{52+i}, s39")
    e("s_lshl_b32 s56, s33, 12")
    e("s_mov_b32 s41, 0\ns_mov_b32 s42, 0\ns_mov_b32 s43, 0")
    e("s_mov_b32 s57, 0x7ff00000")
    def dma_list():
        G=[]
        pre=["s_cmp_lt_u32 s43, 32","s_cselect_b32 s44, s40, s57","s_cselect_b32 s45, s41, s57","s_add_u32 m0, s42, s56"]
        G.append(pre+["s_add_u32 s43, s43, 1","buffer_load_dwordx4 v4, s[4:7], s44 offen lds"])
        for i in range(1,4): G.append([f"buffer_load_dwordx4 v4, s[4:7], s44 offen offset:{1024*i} lds"])
        for i in range(4):
            g=[f"s_add_u32 m0, s42, s{52+i}","s_nop 0",f"buffer_load_dwordx4 v{5+i}, s[8:11], s45 offen lds"]
            if i==3:
                g+=["s_add_u32 s40, s40, 16384",f"s_add_u32 s41, s41, {32*7168}",
                    f"s_add_u32 s42, s42, {SLOT}",f"s_cmp_eq_u32 s42, {NS*SLOT}","s_cselect_b32 s42, 0, s42"]
            G.append(g)
        return G
    for st in range(NS-1):
        for g in dma_list(): e("\n".join(g))
    e("v_and_b32 v10, 15, v2\nv_lshrrev_b32 v11, 4, v2\nv_bfe_u32 v12, v2, 2, 1\nv_mul_u32_u24 v12, 3, v12\nv_xor_b32 v12, v12, v11")
    e("v_lshlrev_b32 v10, 6, v10\nv_lshl_add_u32 v10, v12, 4, v10\ns_lshl_b32 s37, s33, 12\nv_add_u32 v9, s37, v10")
    e("v_lshrrev_b32 v10, 2, v2\nv_mul_u32_u24 v10, 224, v10\nv_and_b32 v11, 3, v2\nv_lshl_add_u32 v10, v11, 3, v10\nv_add_u32 v10, 16384, v10")
    e("s_mov_b32 s46, 0")
    for i in range(224): e(f"v_mov_b32 v{ACC+i}, 0")
    e(f"s_waitcnt vmcnt({8*(NS-1)})")
    e("v_add_f32 v24, v24, v25\nv_add_f32 v26, v26, v27\nv_add_f32 v24, v24, v26")
    e(f"v_lshlrev_b32 v25, 2, v0\nv_add_u32 v25, {CS_OFF}, v25\nv_cmp_gt_u32 vcc, 224, v0\ns_and_saveexec_b64 s[48:49], vcc")
    e("ds_write_b32 v25, v24\ns_mov_b64 exec, s[48:49]")
    e(f"v_accvgpr_read_b32 v12, a{STA}")
    for j in range(1,16): e(f"v_accvgpr_read_b32 v13, a{STA+2*j}\nv_add_f32 v12, v12, v13")
    e(f"v_mul_f32 v12, {hex(f2u(1/1024.))}, v12")
    e(f"v_mov_b32 v14, 0\nv_mov_b32 v16, {hex(f2u(1/64.))}\nv_mov_b32 v17, {hex(f2u(64.))}")
    for j in range(16):
        e(f"v_accvgpr_read_b32 v13, a{STA+2*j}\nv_accvgpr_read_b32 v15, a{STA+2*j+1}")
        e("v_fma_f32 v13, v13, v16, -v12\nv_add_f32 v14, v14, v15\nv_mul_f32 v13, v13, v13\nv_fmac_f32 v14, v13, v17")
    e(f"v_mov_b32 v16, {hex(f2u(1/1024.))}\nv_mov_b32 v17, {hex(f2u(1e-5))}\nv_fma_f32 v14, v14, v16, v17")
    e("v_rsq_f32 v15, v14\ns_nop 0")
    e("v_sub_f32 v20, 0, v12")
    e(f"v_mul_f32 v21, {hex(f2u(C0))}, v15")
    e(f"v_mul_f32 v22, v15, v15\nv_mul_f32 v22, v22, v15\nv_mul_f32 v22, {hex(f2u(C1))}, v22")
    e("v_mov_b32 v23, v14")
    e(f"v_lshlrev_b32 v13, 4, v0\nv_add_u32 v13, {ST_OFF}, v13\nds_write_b128 v13, v[20:23]")
    e(f"s_waitcnt vmcnt({8*(NS-2)}) lgkmcnt(0)\ns_barrier")
    def rdT(buf):
        return [f"ds_read_b128 a[{TB+16*buf+4*tf}:{TB+16*buf+4*tf+3}], v9 offset:{tf*1024}" for tf in range(4)]
    def rdW(v):
        off=(v%7)*32+(v//7)*7168
        return [f"ds_read_b64_tr_b16 a[{WB+4*v+2*t}:{WB+4*v+2*t+1}], v10 offset:{off+t*3584}" for t in range(2)]
    e("\n".join(rdT(0)))
    for v in range(14):
        e("\n".join(rdW(v)))
        if v==5: e("s_waitcnt lgkmcnt(4)")
    e("s_mov_b32 s47, 16")
    k.stamp_mid(0)
    e("s_waitcnt lgkmcnt(0)")
    L=k.lab("MAIN")
    e(f"{L}:")
    for par in range(2):
        e(f"s_waitcnt vmcnt({8*(NS-3)})\ns_barrier")
        e(f"s_add_u32 s37, s46, {SLOT}\ns_cmp_eq_u32 s37, {NS*SLOT}\ns_cselect_b32 s37, 0, s37\ns_sub_u32 s38, s37, s46\ns_mov_b32 s46, s37")
        e("v_add_u32 v9, s38, v9\nv_add_u32 v10, s38, v10")
        D=dma_list()
        dpos={1:0,2:1,4:2,5:3,7:4,8:5,10:6,11:7}
        for v in range(14):
            if v in (0,4): e("s_waitcnt lgkmcnt(8)")
            for tf in range(4):
                a=acc(v,tf)
                e(f"v_mfma_f32_16x16x32_bf16 v[{a}:{a+3}], a[{WB+4*v}:{WB+4*v+3}], a[{TB+16*par+4*tf}:{TB+16*par+4*tf+3}], v[{a}:{a+3}]")
                if tf==1 and 'nord' not in VAR:
                    if v==1: e("\n".join(rdT(1-par)[:2]))
                    if v==2: e("\n".join(rdT(1-par)[2:]))
                if tf==2 and v in dpos and 'nodma' not in VAR: e("\n".join(D[dpos[v]]))
            if 'nord' not in VAR: e("\n".join(rdW(v)))
    e(f"s_sub_u32 s47, s47, 1\ns_cmp_lg_u32 s47, 0\ns_cbranch_scc1 {L}")
    k.stamp_mid(1)
    e("s_waitcnt lgkmcnt(0)")
    e(f"v_and_b32 v3, 15, v2\ns_lshl_b32 s37, s33, 10\nv_lshl_add_u32 v3, v3, 4, s37\nv_add_u32 v3, {ST_OFF}, v3")
    e(f"v_lshrrev_b32 v4, 4, v2\nv_lshlrev_b32 v4, 4, v4\nv_add_u32 v4, {CS_OFF}, v4")
    e("v_lshrrev_b32 v5, 5, v2")
    e("v_bfe_u32 v6, v2, 1, 3")
    e("v_and_b32 v7, 15, v2\nv_bfe_u32 v1, v2, 4, 1\nv_lshl_add_u32 v7, v1, 4, v7\ns_and_b32 s37, s33, 1\ns_lshl_b32 s37, s37, 6\nv_add_u32 v7, s37, v7\nv_lshlrev_b32 v7, 7, v7")
    e("s_lshr_b32 s37, s33, 1\ns_lshl_b32 s38, s34, 1\ns_add_u32 s37, s37, s38\ns_mul_i32 s50, s37, 56")
    e("s_mul_i32 s51, s35, 14")
    for tp in range(2):
        e(f"ds_read_b128 v[8:11], v3 offset:{(2*tp)*256}\nds_read_b128 v[12:15], v3 offset:{(2*tp+1)*256}")
        for v in range(7):
            e(f"ds_read_b128 v[24:27], v4 offset:{v*64}\nds_read_b128 v[28:31], v4 offset:{448+v*64}")
            e(f"s_add_u32 s37, s51, {2*v}\ns_lshr_b32 s38, s37, 3\ns_and_b32 s37, s37, 7\ns_add_u32 s38, s38, s50\ns_lshl_b32 s38, s38, 14")
            if tp: e("s_add_u32 s38, s38, 4096")
            e("v_add_u32 v1, s37, v5\nv_xor_b32 v1, v1, v6\nv_lshl_add_u32 v1, v1, 4, v7")
            e("s_waitcnt lgkmcnt(0)")
            for tt in range(2):
                tf=2*tp+tt
                G=acc(v,tf); U=acc(7+v,tf)
                P0=f"v[{8+4*tt}:{9+4*tt}]"; P1=f"v[{10+4*tt}:{11+4*tt}]"
                gp=lambda h: f"v[{G+2*h}:{G+2*h+1}]"
                up=lambda h: f"v[{U+2*h}:{U+2*h+1}]"
                tp_=lambda h: f"v[{16+2*h}:{17+2*h}]"
                for h in range(2): e(f"v_pk_fma_f32 {gp(h)}, v[{24+2*h}:{25+2*h}], {P0}, {gp(h)} op_sel_hi:[1,0,1]")
                for h in range(2): e(f"v_pk_mul_f32 {tp_(h)}, {gp(h)}, {gp(h)}")
                for h in range(2): e(f"v_pk_fma_f32 {tp_(h)}, {tp_(h)}, {P1}, {P0} op_sel:[0,0,1] op_sel_hi:[1,0,1]")
                for h in range(2): e(f"v_pk_mul_f32 {tp_(h)}, {tp_(h)}, {gp(h)}")
                for c in range(4): e(f"v_exp_f32 v{16+c}, v{16+c}")
                for h in range(2): e(f"v_pk_fma_f32 {up(h)}, v[{28+2*h}:{29+2*h}], {P0}, {up(h)} op_sel_hi:[1,0,1]")
                for h in range(2): e(f"v_pk_fma_f32 {tp_(h)}, {tp_(h)}, {P1}, {P1} op_sel:[0,1,1] op_sel_hi:[1,1,1]")
                for c in range(4): e(f"v_rcp_f32 v{16+c}, v{16+c}")
                for h in range(2): e(f"v_pk_mul_f32 {up(h)}, {up(h)}, {gp(h)}")
                for h in range(2): e(f"v_pk_mul_f32 {up(h)}, {up(h)}, {tp_(h)}")
                e(f"v_cvt_pk_bf16_f32 v{20+2*tt}, v{U}, v{U+1}\nv_cvt_pk_bf16_f32 v{21+2*tt}, v{U+2}, v{U+3}")
            e("s_nop 1")
            e("v_permlane16_swap_b32 v20, v22\nv_permlane16_swap_b32 v21, v23")
            e(f"buffer_store_dwordx4 v[20:23], v1, s[20:23], s38 offen")
    e("s_waitcnt vmcnt(0)")
    k.stamp_end(3)
    e(f"{END}:")
    e("s_endpgm")
    return k
```

```python
import sys
from base import *
import k0
from chk import check
HDR=["; sequential_preLN + MQA attention + GEGLU FFN, gfx950. Generated by my own generator scripts (gen/*.py)."]
def make(which):
    ks=[]
    if 'k0' in which: ks.append(k0.gen_k0())
    if 'k1' in which:
        import k1; ks.append(k1.gen_k1())
    if 'k2' in which:
        import k2; ks.append(k2.gen_k2())
    if 'k3' in which:
        import k3; ks.append(k3.gen_k3())
    if 'k4' in which:
        import k2; ks.append(k2.gen_k4())
    return ks
if __name__=='__main__':
    out=sys.argv[1]; which=sys.argv[2].split(',')
    ks=make(which)
    txt=build(ks,HDR)
    for k in ks:
        print(k.name, end=': '); check("\n".join(k.L))
    open(out,'w').write(txt)
```

```python
from base import *
STG=24576

class G128:
    NDMA=6
    def __init__(s,k,R,S,srdA,srdB,NS,lds_base,a_step,b_step,a_blocked):
        s.k=k; s.R=R; s.S=S; s.srdA=srdA; s.srdB=srdB; s.NS=NS; s.base=lds_base
        s.a_step=a_step; s.b_step=b_step; s.a_blocked=a_blocked
    def setup_loader(s, vlane, tmp, lda, ldb, s_arow0, s_bcol0):
        k=s.k; e=k.e; R=s.R; S=s.S; t0,t1,t2,t3=tmp,tmp+1,tmp+2,tmp+3
        w=S['w']
        if s.a_blocked:
            e(f"s_lshl_b32 s{S['t']}, s{w}, 12\ns_add_u32 s{S['t']}, s{S['t']}, s{s_arow0}")
            e(f"v_lshlrev_b32 v{t0}, 4, v{vlane}\nv_add_u32 v{R['vA']}, s{S['t']}, v{t0}")
        else:
            e(f"v_lshrrev_b32 v{t0}, 3, v{vlane}")
            e(f"s_lshl_b32 s{S['t']}, s{w}, 5\nv_add_u32 v{t0}, s{S['t']}, v{t0}")
            e(f"s_mov_b32 s{S['t']}, {lda}\nv_mul_lo_u32 v{t0}, v{t0}, s{S['t']}\nv_add_u32 v{t0}, s{s_arow0}, v{t0}")
            e(f"v_and_b32 v{t1}, 7, v{vlane}\nv_lshrrev_b32 v{t2}, 4, v{vlane}\nv_xor_b32 v{t1}, v{t1}, v{t2}")
            e(f"v_xor_b32 v{t2}, 4, v{t1}")
            for i in range(4):
                u = t1 if i%2==0 else t2
                e(f"v_lshl_add_u32 v{R['vA']+i}, v{u}, 4, v{t0}")
                if i: e(f"v_add_u32 v{R['vA']+i}, {i*8*lda}, v{R['vA']+i}")
        e(f"v_lshrrev_b32 v{t0}, 3, v{vlane}\ns_lshl_b32 s{S['t']}, s{w}, 4\nv_add_u32 v{t0}, s{S['t']}, v{t0}")
        e(f"s_mov_b32 s{S['t']}, {ldb}\nv_mul_lo_u32 v{t0}, v{t0}, s{S['t']}\nv_add_u32 v{t0}, s{s_bcol0}, v{t0}")
        e(f"v_bfe_u32 v{t1}, v{vlane}, 4, 1\nv_lshlrev_b32 v{t1}, 2, v{t1}\nv_and_b32 v{t2}, 7, v{vlane}\nv_xor_b32 v{t1}, v{t1}, v{t2}")
        e(f"v_lshl_add_u32 v{R['vB']}, v{t1}, 4, v{t0}\nv_add_u32 v{R['vB']+1}, {8*ldb}, v{R['vB']}")
        e(f"s_lshl_b32 s{S['wA']}, s{w}, 12\ns_lshl_b32 s{S['wB']}, s{w}, 11\ns_add_u32 s{S['wB']}, s{S['wB']}, 16384")
        e(f"s_mov_b32 s{S['wr']}, {s.base}\ns_mov_b32 s{S['sA']}, 0\ns_mov_b32 s{S['sB']}, 0")
    def setup_consumer(s, vlane, tmp):
        k=s.k; e=k.e; R=s.R; S=s.S; t0,t1,t2,t3=tmp,tmp+1,tmp+2,tmp+3
        w=S['w']
        e(f"v_and_b32 v{t0}, 31, v{vlane}\nv_bfe_u32 v{t1}, v{vlane}, 1, 3\nv_lshrrev_b32 v{t2}, 5, v{vlane}\nv_xor_b32 v{t1}, v{t1}, v{t2}")
        e(f"s_lshl_b32 s{S['t']}, s{w}, 12\ns_add_u32 s{S['t']}, s{S['t']}, {s.base}")
        e(f"v_lshlrev_b32 v{t0}, 7, v{t0}\nv_add_u32 v{t0}, s{S['t']}, v{t0}")
        for st in range(4):
            e(f"v_xor_b32 v{t2}, {2*st}, v{t1}\nv_lshl_add_u32 v{R['vT']+st}, v{t2}, 4, v{t0}")
        e(f"v_lshrrev_b32 v{t0}, 5, v{vlane}\nv_lshlrev_b32 v{t0}, 3, v{t0}\nv_bfe_u32 v{t1}, v{vlane}, 2, 2\nv_add_u32 v{t0}, v{t0}, v{t1}\nv_lshlrev_b32 v{t0}, 7, v{t0}")
        e(f"v_and_b32 v{t1}, 1, v{vlane}\nv_lshlrev_b32 v{t1}, 1, v{t1}\nv_bfe_u32 v{t2}, v{vlane}, 4, 1\nv_add_u32 v{t1}, v{t1}, v{t2}")
        e(f"v_bfe_u32 v{t2}, v{vlane}, 3, 1\nv_lshlrev_b32 v{t2}, 2, v{t2}\nv_xor_b32 v{t1}, v{t1}, v{t2}")
        e(f"v_bfe_u32 v{t2}, v{vlane}, 1, 1\nv_lshlrev_b32 v{t2}, 3, v{t2}\nv_add_u32 v{t0}, v{t0}, v{t2}\nv_add_u32 v{t0}, {s.base+16384}, v{t0}")
        e(f"v_lshl_add_u32 v{R['vW']}, v{t1}, 4, v{t0}")
        e(f"v_xor_b32 v{t1}, 4, v{t1}\nv_lshl_add_u32 v{R['vW']+1}, v{t1}, 4, v{t0}")
        e(f"s_mov_b32 s{S['rd']}, {s.base}")
        for i in range(32): e(f"v_mov_b32 v{R['acc']+i}, 0")
    def dma(s):
        k=s.k; e=k.e; R=s.R; S=s.S
        if s.a_blocked:
            e(f"s_add_u32 m0, s{S['wr']}, s{S['wA']}\ns_add_u32 s{S['t']}, s{S['wr']}, s{S['wB']}")
            for i in range(4):
                e(f"buffer_load_dwordx4 v{R['vA']}, s[{s.srdA}:{s.srdA+3}], s{S['sA']} offen offset:{i*1024} lds")
        else:
            e(f"s_add_u32 s{S['t']}, s{S['wr']}, s{S['wA']}")
            for i in range(4):
                e(f"s_add_u32 m0, s{S['t']}, {i*1024}\ns_nop 0")
                e(f"buffer_load_dwordx4 v{R['vA']+i}, s[{s.srdA}:{s.srdA+3}], s{S['sA']} offen lds")
            e(f"s_add_u32 s{S['t']}, s{S['wr']}, s{S['wB']}")
        for i in range(2):
            e(f"s_add_u32 m0, s{S['t']}, {i*1024}\ns_nop 0")
            e(f"buffer_load_dwordx4 v{R['vB']+i}, s[{s.srdB}:{s.srdB+3}], s{S['sB']} offen lds")
        e(f"s_add_u32 s{S['sA']}, s{S['sA']}, {s.a_step}\ns_add_u32 s{S['sB']}, s{S['sB']}, {s.b_step}")
        e(f"s_add_u32 s{S['wr']}, s{S['wr']}, {STG}\ns_cmp_eq_u32 s{S['wr']}, {s.base+s.NS*STG}\ns_cselect_b32 s{S['wr']}, {s.base}, s{S['wr']}")
    def loader(s, nst, cnt, hooks=None):
        k=s.k; e=k.e; NS=s.NS; hooks=hooks or {}
        s.dma(); s.dma()
        e(f"s_waitcnt vmcnt({s.NDMA})\ns_barrier")
        issued=2; st=0
        while issued < st+NS-1:
            n=min(2, st+NS-1-issued)
            for _ in range(n): s.dma()
            issued+=n
            if issued < st+NS-1:
                e(f"s_waitcnt vmcnt({(issued-(st+2))*s.NDMA})\ns_barrier")
                st+=1
        nloop=nst-(NS-1)-st
        L=k.lab("LD")
        e(f"s_mov_b32 s{cnt}, {nloop}")
        e(f"{L}:")
        e(f"s_waitcnt vmcnt({(NS-3)*s.NDMA})\ns_barrier")
        s.dma()
        e(f"s_sub_u32 s{cnt}, s{cnt}, 1\ns_cmp_lg_u32 s{cnt}, 0\ns_cbranch_scc1 {L}")
        extra=0
        for t in range(st+nloop, nst-1):
            rem = (nst-1)-(t+1)
            e(f"s_waitcnt vmcnt({rem*s.NDMA+extra})\ns_barrier")
            if t in hooks:
                fn,n=hooks[t]; fn(); extra+=n
        return extra
    def reads(s, ks, buf):
        e=s.k.e; R=s.R
        T=R['T']+4*buf; W=R['W']+8*buf
        e(f"ds_read_b128 v[{T}:{T+3}], v{R['vT']+ks}")
        for f in range(2):
            for t in range(2):
                e(f"ds_read_b64_tr_b16 v[{W+4*f+2*t}:{W+4*f+2*t+1}], v{R['vW']+f} offset:{ks*2048+t*512}")
    def mfmas(s, buf):
        e=s.k.e; R=s.R
        T=R['T']+4*buf; W=R['W']+8*buf
        for f in range(2):
            a=R['acc']+16*f
            e(f"v_mfma_f32_32x32x16_bf16 v[{a}:{a+15}], v[{W+4*f}:{W+4*f+3}], v[{T}:{T+3}], v[{a}:{a+15}]")
    def advance_read(s):
        e=s.k.e; R=s.R; S=s.S
        e(f"s_add_u32 s{S['t']}, s{S['rd']}, {STG}\ns_cmp_eq_u32 s{S['t']}, {s.base+s.NS*STG}\ns_cselect_b32 s{S['t']}, {s.base}, s{S['t']}")
        e(f"s_sub_u32 s{S['inc']}, s{S['t']}, s{S['rd']}\ns_mov_b32 s{S['rd']}, s{S['t']}")
        for i in range(4): e(f"v_add_u32 v{R['vT']+i}, s{S['inc']}, v{R['vT']+i}")
        for i in range(2): e(f"v_add_u32 v{R['vW']+i}, s{S['inc']}, v{R['vW']+i}")
    def cstage(s, last=False):
        e=s.k.e
        for ks in range(4):
            if ks==2:
                if not last:
                    e("s_barrier")
                    s.advance_read()
            if ks<2: s.reads(ks+2,ks+2); e("s_waitcnt lgkmcnt(10)")
            elif not last: s.reads(ks-2,ks-2); e("s_waitcnt lgkmcnt(10)")
            else: e(f"s_waitcnt lgkmcnt({5 if ks==2 else 0})")
            s.mfmas(ks)
    def consumer(s, nst, cnt, stamp=None):
        k=s.k; e=k.e
        e("s_barrier")
        if stamp is not None and STAMP:
            k.stamp_mid(stamp); e('s_waitcnt lgkmcnt(0)')
        s.reads(0,0); s.reads(1,1)
        L=k.lab("CS")
        e(f"s_mov_b32 s{cnt}, {nst-1}")
        e(f"{L}:")
        s.cstage()
        e(f"s_sub_u32 s{cnt}, s{cnt}, 1\ns_cmp_lg_u32 s{cnt}, 0\ns_cbranch_scc1 {L}")
        s.cstage(last=True)
```

```python
from base import *

def dpp_reduce(k, regs):
    seq=["row_shr:1 row_mask:0xf bank_mask:0xf","row_shr:2 row_mask:0xf bank_mask:0xf",
         "row_shr:4 row_mask:0xf bank_mask:0xf","row_shr:8 row_mask:0xf bank_mask:0xf",
         "row_bcast:15 row_mask:0xa bank_mask:0xf","row_bcast:31 row_mask:0xc bank_mask:0xf"]
    for s in seq:
        k.nop(max(0,2-(len(regs)-1)))
        for r in regs:
            k.e(f"v_add_f32_dpp v{r}, v{r}, v{r} {s}")

def gen_k0():
    XL=65536; XLS=2080; RED=XL+16*XLS; DUMMY=RED+2048
    k=Kern("k0_ln_kv_kernel", 256, 256, DUMMY+4096, vgpr=128, sgpr=64)
    e=k.e
    END=k.lab("END")
    e(f"s_cmp_ge_u32 s2, 256\ns_cbranch_scc1 {END}")
    k.stamp_begin()
    k.load_ptr(4,'x'); k.load_ptr(8,'wk'); k.load_ptr(12,'wv'); k.load_ptr(24,'wq'); k.load_ptr(28,'ws')
    e("v_lshrrev_b32 v1, 6, v0\nv_and_b32 v2, 63, v0")
    e("s_and_b32 s40, s2, 7\ns_lshr_b32 s41, s2, 3\ns_lshl_b32 s40, s40, 4\ns_lshr_b32 s42, s41, 1\ns_add_u32 s32, s40, s42\ns_and_b32 s43, s41, 1")
    e("v_readfirstlane_b32 s33, v1")
    e("v_lshlrev_b32 v3, 4, v2")
    e("v_lshrrev_b32 v4, 2, v2\nv_lshlrev_b32 v4, 6, v4\nv_lshrrev_b32 v5, 5, v2\nv_lshlrev_b32 v5, 1, v5\nv_and_b32 v6, 3, v2\nv_xor_b32 v5, v5, v6\nv_lshl_add_u32 v4, v5, 4, v4")
    e("s_waitcnt lgkmcnt(0)")
    e("s_cmp_eq_u32 s43, 1\ns_cselect_b32 s8, s12, s8\ns_cselect_b32 s9, s13, s9")
    k.srd(4, 2048*2048); k.srd(8, 65536); k.srd(24, 2*MB)
    k.srd(16, 4*MB, src=28, add=WS_XN) ; k.srd(20, 64*4096, src=28, add=WS_KV)
    e("s_lshl_b32 s40, s32, 4\ns_lshl_b32 s41, s33, 2\ns_add_u32 s40, s40, s41\ns_lshl_b32 s34, s40, 11")
    e("s_add_u32 s44, s34, 4096")
    for r in range(4):
        so = "s34" if r<2 else "s44"
        for j in range(2):
            e(f"buffer_load_dwordx4 v[{8+8*r+4*j}:{11+8*r+4*j}], v3, s[4:7], {so} offen offset:{(r&1)*2048+1024*j}")
    e("s_lshl_b32 s35, s33, 14")
    for g in range(4):
        e(f"s_add_u32 s36, s35, {g*4096}")
        e(f"s_mov_b32 m0, s36\ns_nop 0")
        for i in range(4):
            e(f"buffer_load_dwordx4 v4, s[8:11], s36 offen offset:{1024*i} lds")
    e("s_lshr_b32 s40, s2, 3\ns_lshl_b32 s40, s40, 16\ns_add_u32 s37, s40, s35")
    e(f"s_mov_b32 m0, {DUMMY}")
    for g in range(4):
        e(f"s_add_u32 s36, s37, {g*4096}")
        for i in range(4):
            e(f"buffer_load_dwordx4 v3, s[24:27], s36 offen offset:{1024*i} lds")
    e("s_waitcnt vmcnt(32)")
    X=48
    for row in range(4):
        for j in range(8):
            e(f"v_lshlrev_b32 v{X+16*row+2*j}, 16, v{8+8*row+j}")
            e(f"v_and_b32 v{X+1+16*row+2*j}, 0xffff0000, v{8+8*row+j}")
    for row in range(4):
        b=X+16*row; d=40+row
        e(f"v_add_f32 v{d}, v{b}, v{b+1}")
        for i in range(2,16): e(f"v_add_f32 v{d}, v{d}, v{b+i}")
    dpp_reduce(k,[40,41,42,43])
    e(f"v_mov_b32 v112, {hex(f2u(1/1024.))}\nv_mov_b32 v113, {hex(f2u(1e-5))}")
    for row in range(4): e(f"v_readlane_b32 s{48+row}, v{40+row}, 63")
    e("s_nop 0")
    for row in range(4): e(f"v_mul_f32 v{44+row}, s{48+row}, v112")
    for row in range(4):
        b=X+16*row
        for i in range(16): e(f"v_sub_f32 v{b+i}, v{b+i}, v{44+row}")
    for row in range(4):
        b=X+16*row; d=40+row
        e(f"v_mul_f32 v{d}, v{b}, v{b}")
        for i in range(1,16): e(f"v_fmac_f32 v{d}, v{b+i}, v{b+i}")
    dpp_reduce(k,[40,41,42,43])
    e("s_nop 0")
    for row in range(4): e(f"v_readlane_b32 s{48+row}, v{40+row}, 63")
    e("s_nop 0")
    for row in range(4): e(f"v_fma_f32 v{44+row}, s{48+row}, v112, v113")
    for row in range(4): e(f"v_rsq_f32 v{44+row}, v{44+row}")
    for row in range(4):
        b=X+16*row
        for i in range(16): e(f"v_mul_f32 v{b+i}, v{b+i}, v{44+row}")
    for row in range(4):
        b=X+16*row
        for j in range(8): e(f"v_cvt_pk_bf16_f32 v{8+8*row+j}, v{b+2*j}, v{b+2*j+1}")
    e(f"s_lshl_b32 s40, s33, 2\ns_mul_i32 s40, s40, {XLS}\ns_add_u32 s40, s40, {XL}")
    e("v_add_u32 v5, s40, v3")
    for r in range(4):
        e(f"ds_write_b128 v5, v[{8+8*r}:{11+8*r}] offset:{r*XLS}")
        e(f"ds_write_b128 v5, v[{12+8*r}:{15+8*r}] offset:{r*XLS+1024}")
    LNS=k.lab("NS")
    e(f"s_lshr_b32 s40, s33, 1\ns_cmp_lg_u32 s40, s43\ns_cbranch_scc1 {LNS}")
    for r in range(4):
        so = "s34" if r<2 else "s44"
        for j in range(2):
            e(f"buffer_store_dwordx4 v[{8+8*r+4*j}:{11+8*r+4*j}], v3, s[16:19], {so} offen offset:{(r&1)*2048+1024*j}")
    LNS2=k.lab("NS2")
    e(f"s_waitcnt vmcnt(24)\ns_branch {LNS2}")
    e(f"{LNS}:")
    e("s_waitcnt vmcnt(16)")
    e(f"{LNS2}:")
    e("s_and_b32 s41, s33, 1\ns_lshr_b32 s42, s33, 1")
    e("v_lshrrev_b32 v6, 4, v2\nv_and_b32 v7, 15, v2\nv_lshrrev_b32 v44, 2, v7\nv_and_b32 v45, 3, v2")
    e("v_lshl_add_u32 v44, v6, 3, v44\nv_lshlrev_b32 v44, 6, v44")
    e("v_lshrrev_b32 v46, 1, v45\ns_lshl_b32 s45, s41, 1\nv_add_u32 v46, s45, v46")
    e("v_and_b32 v47, 1, v6\nv_lshlrev_b32 v47, 1, v47\nv_xor_b32 v46, v46, v47")
    e("v_lshl_add_u32 v44, v46, 4, v44")
    e("v_and_b32 v47, 1, v45\nv_lshl_add_u32 v44, v47, 3, v44")
    e("s_lshl_b32 s45, s42, 15\nv_add_u32 v44, s45, v44")
    e(f"v_mul_u32_u24 v46, {XLS}, v7\nv_lshl_add_u32 v46, v6, 4, v46\ns_lshl_b32 s45, s42, 10\ns_add_u32 s45, s45, {XL}\nv_add_u32 v45, s45, v46")
    e("s_waitcnt lgkmcnt(0)")
    e("s_barrier")
    LK=k.lab("V"); LE=k.lab("EPI")
    def gemm(swap):
        D=4
        def rd(s):
            b=48+8*(s%D)
            e(f"ds_read_b64_tr_b16 v[{b}:{b+1}], v44 offset:{s*2048}")
            e(f"ds_read_b64_tr_b16 v[{b+2}:{b+3}], v44 offset:{s*2048+256}")
            e(f"ds_read_b128 v[{b+4}:{b+7}], v45 offset:{s*64}")
        for s in range(D-1): rd(s)
        for s in range(16):
            if s+D-1<16: rd(s+D-1)
            left=min(D-1,15-s)
            e(f"s_waitcnt lgkmcnt({3*left})")
            b=48+8*(s%D)
            c = "0" if s==0 else "v[40:43]"
            if not swap: e(f"v_mfma_f32_16x16x32_bf16 v[40:43], v[{b}:{b+3}], v[{b+4}:{b+7}], {c}")
            else:        e(f"v_mfma_f32_16x16x32_bf16 v[40:43], v[{b+4}:{b+7}], v[{b}:{b+3}], {c}")
        LR=k.lab("RED");
        e(f"s_lshl_b32 s45, s41, 10\ns_add_u32 s45, s45, {RED}\nv_add_u32 v46, s45, v3")
        k.nop(4)
        e(f"s_cmp_eq_u32 s42, 0\ns_cbranch_scc1 {LR}")
        e("ds_write_b128 v46, v[40:43]\ns_waitcnt lgkmcnt(0)\ns_barrier")
        e(f"s_branch {LE}")
        e(f"{LR}:")
        e("s_barrier\nds_read_b128 v[48:51], v46\ns_waitcnt lgkmcnt(0)")
        for i in range(4): e(f"v_add_f32 v{40+i}, v{40+i}, v{48+i}")
    e(f"s_cmp_eq_u32 s43, 1\ns_cbranch_scc1 {LK} ; @alt")
    gemm(False)
    e("v_bfe_u32 v64, v7, 2, 1\nv_lshrrev_b32 v65, 3, v7\nv_and_b32 v66, 3, v7")
    e("v_lshl_add_u32 v66, v64, 3, v66\nv_lshl_add_u32 v66, v65, 2, v66\ns_and_b32 s44, s32, 1\ns_lshl_b32 s44, s44, 4\nv_add_u32 v66, s44, v66")
    e("v_lshlrev_b32 v67, 6, v66")
    e("v_lshrrev_b32 v68, 1, v6\nv_lshlrev_b32 v68, 1, v68\nv_add_u32 v68, s41, v68\nv_bfe_u32 v65, v66, 2, 2\nv_xor_b32 v68, v68, v65")
    e("v_lshl_add_u32 v67, v68, 4, v67\nv_and_b32 v68, 1, v6\nv_lshl_add_u32 v67, v68, 3, v67")
    e("s_lshr_b32 s44, s32, 1\ns_lshl_b32 s44, s44, 12")
    e("v_cvt_pk_bf16_f32 v40, v40, v41\nv_cvt_pk_bf16_f32 v41, v42, v43")
    e("buffer_store_dwordx2 v[40:41], v67, s[20:23], s44 offen")
    e(f"s_branch {LE}")
    e(f"{LK}:")
    gemm(True)
    e("v_lshrrev_b32 v65, 2, v7\nv_and_b32 v66, 3, v7\nv_lshl_add_u32 v66, v65, 3, v66\ns_lshl_b32 s44, s41, 2\nv_add_u32 v66, s44, v66")
    e("v_lshlrev_b32 v67, 6, v66")
    e("v_lshlrev_b32 v65, 1, v65\nv_add_u32 v65, s41, v65\nv_and_b32 v65, 3, v65")
    e("v_lshrrev_b32 v68, 1, v6\ns_and_b32 s44, s32, 1\ns_lshl_b32 s44, s44, 1\nv_add_u32 v68, s44, v68\nv_xor_b32 v65, v68, v65")
    e("v_lshl_add_u32 v67, v65, 4, v67\nv_and_b32 v68, 1, v6\nv_lshl_add_u32 v67, v68, 3, v67")
    e("s_lshr_b32 s44, s32, 1\ns_lshl_b32 s44, s44, 12\ns_add_u32 s44, s44, 2048")
    e("v_cvt_pk_bf16_f32 v40, v40, v41\nv_cvt_pk_bf16_f32 v41, v42, v43")
    e("buffer_store_dwordx2 v[40:41], v67, s[20:23], s44 offen")
    e(f"{LE}:")
    e("s_waitcnt vmcnt(0)")
    k.stamp_end(0)
    e(f"{END}:")
    e("s_endpgm")
    return k
```

```python
from base import *
from gemm128 import *
import os
VAR=os.environ.get('K1VAR','')

QSCALE = (32**-0.5)*1.4426950408889634

def gen_k1():
    k=Kern("k1_q_attn_kernel", 256, 512, 163840, vgpr=172, sgpr=96)
    e=k.e
    END=k.lab("END")
    R=dict(vA=4,vB=8,vT=10,vW=14,T=16,W=80,acc=40)
    S=dict(w=33,sA=40,sB=41,wr=42,rd=43,inc=44,wA=45,wB=46,t=47)
    Q=72; SS=80; P=112; O=120; Lr=136; KF=140; V0=148; V1=152; SEL=156; AK=160; AV0=162; AV1=163; ONES=164
    VO=168; VCR=169; CSV=8; CSACC=16; CSF=44
    QX=147456; CST=131072; CSS=CST+4*7168; DUM=CSS+1792+256
    e(f"s_cmp_ge_u32 s2, 256\ns_cbranch_scc1 {END}")
    k.stamp_begin()
    k.load_ptr(8,'wq'); k.load_ptr(28,'ws'); k.load_ptr(20,'wg'); k.load_ptr(22,'wu'); k.load_ptr(48,'wo'); k.load_ptr(52,'wd')
    e("v_lshrrev_b32 v1, 6, v0\nv_and_b32 v2, 63, v0")
    e("s_and_b32 s30, s2, 7\ns_lshr_b32 s31, s2, 3")
    e("s_and_b32 s32, s31, 1\ns_lshl_b32 s30, s30, 1\ns_add_u32 s34, s30, s32")
    e("s_lshr_b32 s35, s31, 1")
    e("v_readfirstlane_b32 s58, v1")
    e("v_lshlrev_b32 v3, 4, v2")
    e("s_and_b32 s33, s58, 3")
    e("s_lshl_b32 s36, s34, 18\ns_lshl_b32 s37, s35, 7")
    e("s_lshl_b32 s38, s33, 13")
    e("s_waitcnt lgkmcnt(0)")
    k.srd(8, 2*MB)
    k.srd(4, 4*MB, src=28, add=WS_XN); k.srd(12, 64*4096, src=28, add=WS_KV); k.srd(16, 4*MB, src=28, add=WS_O)
    g=G128(k,R,S,4,8,6,0,128,64*2048,False)
    LCONS=k.lab("CONS"); LJ=k.lab("JOIN")
    e(f"s_cmp_lt_u32 s58, 4\ns_cbranch_scc1 {LCONS} ; @alt")
    def kv_dma(c):
        for gi in range(2):
            e(f"s_add_u32 s47, s38, {c*32768+gi*4096}")
            e(f"s_add_u32 m0, s38, {((c+3)&3)*32768+gi*4096}\ns_nop 0")
            for i in range(4):
                e(f"buffer_load_dwordx4 v3, s[12:15], s47 offen offset:{i*1024} lds")
    g.setup_loader(2, 60, 2048, 2048, 36, 37)
    g.loader(16, 39, hooks={12:(lambda:kv_dma(0),8), 14:(lambda:kv_dma(1),8)})
    e("s_waitcnt vmcnt(8)\ns_barrier")
    e(f"s_lshl_b32 s47, s33, 11\ns_add_u32 s47, s47, {QX}\nv_add_u32 v4, s47, v3")
    e(f"ds_read_b128 v[{Q}:{Q+3}], v4\nds_read_b128 v[{Q+4}:{Q+7}], v4 offset:1024")
    kv_dma(2)
    e(f"s_branch {LJ}")
    e(f"{LCONS}:")
    g.setup_consumer(2, 60)
    e("s_cmp_ge_u32 s2, 128\ns_cselect_b32 s20, s22, s20\ns_cselect_b32 s21, s23, s21")
    k.srd(20, 3584*1024*2); k.srd(48, 2*MB); k.srd(52, 3584*1024*2)
    k.srd(24, 4*7168*4, src=28, add=WS_CS)
    g.consumer(16, 39, stamp=(1 if os.environ.get('K1ST')=='1' else None))
    e("s_and_b32 s30, s2, 3\ns_lshl_b32 s30, s30, 8\ns_lshl_b32 s31, s33, 6\ns_add_u32 s30, s30, s31\ns_mul_i32 s30, s30, 7168")
    e("s_bfe_u32 s31, s2, 0x50002\ns_mul_i32 s31, s31, 224\ns_add_u32 s30, s30, s31")
    for i in range(7):
        e(f"v_add_u32 v16, {64*i}, v2\nv_mul_u32_u24 v17, 4682, v16\nv_lshrrev_b32 v17, 16, v17\nv_mul_u32_u24 v18, 14, v17\nv_sub_u32 v18, v16, v18")
        e(f"v_mul_u32_u24 v17, 7168, v17\nv_lshl_add_u32 v17, v18, 4, v17\nv_add_u32 v{CSV+i}, s30, v17")
    e(f"s_mul_i32 s56, s33, 7168\ns_add_u32 s56, s56, {CST}")
    e(f"v_lshrrev_b32 v16, 2, v2\nv_mul_u32_u24 v16, 224, v16\nv_and_b32 v17, 3, v2\nv_lshl_add_u32 v16, v17, 3, v16\nv_add_u32 v{VCR}, s56, v16")
    for i in range(4): e(f"v_mov_b32 v{ONES+i}, 0x3f803f80")
    e("s_lshr_b32 s62, s2, 3\ns_lshl_b32 s62, s62, 16\ns_lshl_b32 s63, s33, 14\ns_add_u32 s62, s62, s63")
    e("s_lshl_b32 s63, s2, 2\ns_add_u32 s63, s63, s33\ns_mul_i32 s63, s63, 7168")
    e(f"v_mov_b32 v16, {hex(f2u(QSCALE))}")
    for i in range(32): e(f"v_mul_f32 v{R['acc']+i}, v{R['acc']+i}, v16")
    for i in range(8): e(f"v_cvt_pk_bf16_f32 v{Q+i}, v{R['acc']+2*i}, v{R['acc']+2*i+1}")
    for i in range(8): e(f"v_cvt_pk_bf16_f32 v{16+i}, v{R['acc']+16+2*i}, v{R['acc']+16+2*i+1}")
    e(f"s_lshl_b32 s47, s33, 11\ns_add_u32 s47, s47, {QX}\nv_add_u32 v4, s47, v3")
    e(f"ds_write_b128 v4, v[16:19]\nds_write_b128 v4, v[20:23] offset:1024")
    e("s_waitcnt lgkmcnt(0)\ns_barrier")
    e(f"{LJ}:")
    k.stamp_mid(0)
    e("v_and_b32 v4, 31, v2\nv_bfe_u32 v5, v2, 2, 2\nv_lshrrev_b32 v6, 5, v2\nv_xor_b32 v5, v5, v6")
    e(f"v_lshlrev_b32 v4, 6, v4\nv_add_u32 v4, 98304, v4\nv_lshl_add_u32 v{AK}, v5, 4, v4\nv_xor_b32 v5, 2, v5\nv_lshl_add_u32 v{AK+1}, v5, 4, v4")
    e(f"v_mov_b32 v{AV0}, v{AK}\nv_mov_b32 v{AV1}, v{AK+1}")
    def rdK(tl):
        for m in range(2): e(f"ds_read_b128 v[{KF+4*m}:{KF+4*m+3}], v{AK+m} offset:{tl*4096}")
    def rdV0(tl): e(f"ds_read_b128 v[{V0}:{V0+3}], v{AV0} offset:{tl*4096+2048}")
    def rdV1(tl): e(f"ds_read_b128 v[{V1}:{V1+3}], v{AV1} offset:{tl*4096+2048}")
    rdK(0); rdV0(0)
    e("v_bfe_u32 v4, v2, 2, 1\nv_bfe_u32 v5, v2, 4, 1\nv_xor_b32 v4, v4, v5\nv_and_b32 v5, 3, v2\nv_or_b32 v4, v4, v5")
    e("v_mov_b32 v5, 0x3f803f80\nv_cmp_eq_u32 vcc, 0, v4\ns_nop 1")
    e(f"v_cndmask_b32 v{SEL}, 0, v5, vcc")
    for i in range(1,4): e(f"v_mov_b32 v{SEL+i}, v{SEL}")
    e(f"s_lshl_b32 s47, s33, 5\ns_lshl_b32 s30, s34, 7\ns_add_u32 s47, s47, s30\nv_and_b32 v4, 31, v2\nv_add_u32 v4, s47, v4\nv_lshlrev_b32 v4, 11, v4")
    e(f"s_lshr_b32 s30, s58, 2\ns_lshl_b32 s30, s30, 6\ns_add_u32 s30, s30, s37\nv_lshrrev_b32 v5, 5, v2\nv_lshl_add_u32 v4, v5, 5, v4\nv_add_u32 v{VO}, s30, v4")
    for i in range(16): e(f"v_mov_b32 v{O+i}, 0")
    for i in range(4): e(f"v_mov_b32 v{Lr+i}, 0\nv_mov_b32 v{P+4+i}, 0\nv_mov_b32 v{V1+i}, 0")
    e("s_waitcnt lgkmcnt(0)")
    def mf(d,a,b,c=None):
        cs = c if c else f"v[{d}:{d+15}]"
        e(f"v_mfma_f32_32x32x16_bf16 v[{d}:{d+15}], v[{a}:{a+3}], v[{b}:{b+3}], {cs}")
    def rs(b): e(f"v_mfma_f32_16x16x32_bf16 v[{Lr}:{Lr+3}], v[{SEL}:{SEL+3}], v[{b}:{b+3}], v[{Lr}:{Lr+3}]")
    mf(SS,KF,Q,"0"); mf(SS,KF+4,Q+4)
    rdK(1)
    e("s_waitcnt lgkmcnt(0)")
    k.nop(10)
    PAT="W3 E0 E1 PV1p RV1 E2 E3 C0 E4 W2 QK0 E5 C1 E6 E7 RS1p C2 E8 QK1 RK C3 E9 E10 E11 W3 PV0 RV0 C4 E12 E13 C5 RS0 E14 E15 C6 C7".split()
    def slot(tl):
        par=tl&1
        Sc=SS+16*par; Sn=SS+16*(1-par)
        for t in PAT:
            if t[0]=='E': i=int(t[1:]); e(f"v_exp_f32 v{Sc+i}, v{Sc+i}")
            elif t[0]=='C': i=int(t[1:]); e(f"v_cvt_pk_bf16_f32 v{P+i}, v{Sc+2*i}, v{Sc+2*i+1}")
            elif t[0]=='W':
                if 'nowait' not in VAR: e(f"s_waitcnt lgkmcnt({t[1]})")
            elif t=='QK0': mf(Sn,KF,Q,"0")
            elif t=='QK1': mf(Sn,KF+4,Q+4)
            elif t=='PV0': mf(O,V0,P)
            elif t=='PV1p': mf(O,V1,P+4)
            elif t=='RS0': rs(P)
            elif t=='RS1p': rs(P+4)
            elif 'noread' in VAR: pass
            elif t=='RV1': rdV1(tl)
            elif t=='RK': rdK((tl+2)&7)
            elif t=='RV0': rdV0((tl+1)&7)
    LT0=k.lab("T0"); LT6=k.lab("T6"); LX=k.lab("X"); LG1=k.lab("G1")
    e("s_mov_b32 s39, 0")
    e(f"s_branch {LT0}")
    e(f"{LT6}:")
    e(f"v_add_u32 v{AK}, s59, v{AK}\nv_add_u32 v{AK+1}, s59, v{AK+1}")
    slot(6)
    e(f"v_add_u32 v{AV0}, s59, v{AV0}")
    slot(7)
    e(f"v_add_u32 v{AV1}, s59, v{AV1}")
    e(f"s_cmp_eq_u32 s39, 8\ns_cbranch_scc1 {LX} ; @exit")
    e(f"{LT0}:")
    slot(0); slot(1)
    LMR=k.lab("MR"); MID=[k.lab(f"MID{c}") for c in range(8)]; LMD=k.lab("MD")
    e(f"s_cmp_lt_u32 s58, 4\ns_cbranch_scc1 {LMD} ; @alt")
    e(f"{LMR}:")
    for tl in range(2,6): slot(tl)
    e("s_and_b32 s47, s39, 3\ns_mov_b32 s59, 0xfffe8000\ns_cmp_eq_u32 s47, 0\ns_cselect_b32 s59, s59, 0x8000")
    e(f"s_cmp_ge_u32 s58, 4\ns_cbranch_scc1 {LG1} ; @g1")
    LNB=k.lab("NB")
    e(f"s_cmp_eq_u32 s39, 7\ns_cbranch_scc1 {LNB}")
    e("s_barrier")
    e(f"{LNB}:")
    e(f"s_add_u32 s39, s39, 1\ns_branch {LT6}")
    e(f"{LG1}:")
    LG1a=k.lab("G1a"); LG1b=k.lab("G1b"); LG1c=k.lab("G1c")
    e(f"s_cmp_ge_u32 s39, 6\ns_cbranch_scc1 {LG1a}")
    e("s_waitcnt vmcnt(8)\ns_barrier")
    e(f"s_cmp_ge_u32 s39, 5\ns_cbranch_scc1 {LG1c}")
    e("s_add_u32 s30, s39, 3\ns_lshl_b32 s31, s30, 15\ns_add_u32 s30, s30, 3\ns_and_b32 s30, s30, 3\ns_lshl_b32 s30, s30, 15\ns_add_u32 s30, s30, s38\ns_add_u32 s31, s31, s38")
    for gi in range(2):
        e(f"s_add_u32 m0, s30, {gi*4096}\ns_add_u32 s47, s31, {gi*4096}")
        for i in range(4):
            e(f"buffer_load_dwordx4 v3, s[12:15], s47 offen offset:{i*1024} lds")
    e(f"s_branch {LG1c}")
    e(f"{LG1a}:")
    e(f"s_cmp_eq_u32 s39, 7\ns_cbranch_scc1 {LG1c}")
    e("s_waitcnt vmcnt(0)\ns_barrier")
    e(f"{LG1c}:")
    e(f"s_add_u32 s39, s39, 1\ns_branch {LT6}")
    def cs_dma(r):
        e(f"s_mov_b32 s30, {r*32*7168}")
        for i in range(7):
            e(f"s_add_u32 m0, s56, {i*1024}\ns_nop 0")
            e(f"buffer_load_dwordx4 v{CSV+i}, s[20:23], s30 offen lds")
    def cs_mfma(r):
        for v in range(7):
            for t in range(2):
                e(f"ds_read_b64_tr_b16 v[{CSF+4*v+2*t}:{CSF+4*v+2*t+1}], v{VCR} offset:{v*32+t*3584}")
        e("s_waitcnt lgkmcnt(0)")
        for v in range(7):
            a=CSACC+4*v
            c="0" if r==0 else f"v[{a}:{a+3}]"
            e(f"v_mfma_f32_16x16x32_bf16 v[{a}:{a+3}], v[{CSF+4*v}:{CSF+4*v+3}], v[{ONES}:{ONES+3}], {c}")
    def prefetch(srd, base_s, first, n):
        e(f"s_mov_b32 m0, {DUM}")
        for i in range(n):
            e(f"s_add_u32 s47, s{base_s}, {(first+i)*1024}")
            e(f"buffer_load_dwordx4 v3, s[{srd}:{srd+3}], s47 offen lds")
    side='noside' not in VAR
    e(f"{LMD}:")
    if side:
        for c in (1,3,4,5,6,7):
            e(f"s_cmp_eq_u32 s39, {c}\ns_cbranch_scc1 {MID[c]}")
    e(f"s_branch {LMR}")
    for c in (1,3,4,5,6,7):
        if not side: break
        e(f"{MID[c]}:")
        if c==1: cs_dma(0)
        if c==3:
            e("s_waitcnt vmcnt(0)"); cs_mfma(0); cs_dma(1)
        if c==4: prefetch(52,63,0,7)
        if c==5:
            e("s_waitcnt vmcnt(7)"); cs_mfma(1)
            e(f"v_lshrrev_b32 v4, 4, v2\nv_lshlrev_b32 v4, 4, v4\ns_mul_i32 s30, s33, 448\ns_add_u32 s30, s30, {CSS}\nv_add_u32 v4, s30, v4")
            e("v_and_b32 v5, 15, v2\nv_cmp_eq_u32 vcc, 0, v5\ns_and_saveexec_b64 s[66:67], vcc")
            k.nop(2)
            for v in range(7): e(f"ds_write_b128 v4, v[{CSACC+4*v}:{CSACC+4*v+3}] offset:{v*64}")
            e("s_mov_b64 exec, s[66:67]\ns_waitcnt lgkmcnt(0)")
        if c==6:
            LS=k.lab("CSS")
            e("v_cmp_gt_u32 vcc, 112, v0\ns_and_saveexec_b64 s[66:67], vcc")
            e(f"s_cbranch_execz {LS}")
            e(f"v_lshlrev_b32 v4, 2, v0\nv_add_u32 v4, {CSS}, v4")
            for j in range(4): e(f"ds_read_b32 v{16+j}, v4 offset:{j*448}")
            e("s_and_b32 s30, s2, 3\ns_mul_i32 s30, s30, 28672\ns_lshr_b32 s31, s2, 7\ns_mul_i32 s31, s31, 14336\ns_add_u32 s30, s30, s31")
            e("s_bfe_u32 s31, s2, 0x50002\ns_mul_i32 s31, s31, 448\ns_add_u32 s30, s30, s31")
            e("v_lshlrev_b32 v4, 2, v0\ns_waitcnt lgkmcnt(0)")
            e("v_add_f32 v16, v16, v17\nv_add_f32 v18, v18, v19\nv_add_f32 v16, v16, v18")
            e("buffer_store_dword v16, v4, s[24:27], s30 offen")
            e(f"{LS}:\ns_mov_b64 exec, s[66:67]")
            prefetch(48,62,0,8)
        if c==7: prefetch(48,62,8,8)
        e(f"s_branch {LMR}")
    e(f"{LX}:")
    if os.environ.get('K1ST')!='1': k.stamp_mid(1)
    e("s_waitcnt lgkmcnt(0)")
    mf(O,V1,P+4); rs(P+4)
    k.nop(12)
    LFB=k.lab("FB"); LFIN=k.lab("FIN")
    e(f"v_mov_b32 v8, 0")
    for i in range(16): e(f"v_fmac_f32 v8, 0, v{O+i}")
    e(f"v_mov_b32 v9, {hex(f2u(2.0**-60))}\nv_mov_b32 v10, {hex(f2u(2.0**60))}")
    e(f"v_cmp_o_f32 s[64:65], v8, v8")
    e(f"v_cmp_le_f32 s[66:67], v9, v{Lr}")
    e(f"v_cmp_ge_f32 s[70:71], v10, v{Lr}")
    e("s_and_b64 s[64:65], s[64:65], s[66:67]\ns_and_b64 s[64:65], s[64:65], s[70:71]")
    e(f"s_cmp_eq_u64 s[64:65], exec\ns_cbranch_scc0 {LFB}")
    e(f"{LFIN}:")
    e(f"v_rcp_f32 v8, v{Lr}")
    e("s_nop 0")
    for i in range(16): e(f"v_mul_f32 v{O+i}, v{O+i}, v8")
    for i in range(8): e(f"v_cvt_pk_bf16_f32 v{16+i}, v{O+2*i}, v{O+2*i+1}")
    for j in range(2):
        e(f"buffer_store_dwordx4 v[{16+4*j}:{19+4*j}], v{VO}, s[16:19], 0 offen offset:{j*16}")
    e("s_waitcnt vmcnt(0)")
    k.stamp_end(1)
    e("s_endpgm")
    e(f"{LFB}:")
    e("s_waitcnt vmcnt(0)")
    e("v_and_b32 v8, 31, v2\nv_bfe_u32 v9, v2, 2, 2\nv_lshrrev_b32 v10, 5, v2\nv_xor_b32 v9, v9, v10")
    e(f"v_lshlrev_b32 v8, 6, v8\nv_lshl_add_u32 v{AK}, v9, 4, v8\nv_xor_b32 v9, 2, v9\nv_lshl_add_u32 v{AK+1}, v9, 4, v8")
    e("v_mov_b32 v8, 0xff800000")
    F1=k.lab("F1"); F2=k.lab("F2")
    e(f"s_mov_b32 s47, 0\n{F1}:")
    for m in range(2): e(f"buffer_load_dwordx4 v[{KF+4*m}:{KF+4*m+3}], v{AK+m}, s[12:15], s47 offen")
    e("s_waitcnt vmcnt(0)")
    mf(SS,KF,Q,"0"); mf(SS,KF+4,Q+4)
    k.nop(12)
    for i in range(16): e(f"v_max_f32 v8, v8, v{SS+i}")
    e(f"s_add_u32 s47, s47, 4096\ns_cmp_lt_u32 s47, {64*4096}\ns_cbranch_scc1 {F1}")
    e("v_mov_b32 v10, v8\ns_nop 1\nv_permlane32_swap_b32 v8, v10\ns_nop 1\nv_max_f32 v8, v8, v10")
    for i in range(16): e(f"v_mov_b32 v{O+i}, 0")
    for i in range(4): e(f"v_mov_b32 v{Lr+i}, 0")
    e(f"s_mov_b32 s47, 0\n{F2}:")
    for m in range(2): e(f"buffer_load_dwordx4 v[{KF+4*m}:{KF+4*m+3}], v{AK+m}, s[12:15], s47 offen")
    e(f"buffer_load_dwordx4 v[{V0}:{V0+3}], v{AK}, s[12:15], s47 offen offset:2048")
    e(f"buffer_load_dwordx4 v[{V1}:{V1+3}], v{AK+1}, s[12:15], s47 offen offset:2048")
    e("s_waitcnt vmcnt(0)")
    mf(SS,KF,Q,"0"); mf(SS,KF+4,Q+4)
    k.nop(12)
    for i in range(16): e(f"v_sub_f32 v{SS+i}, v{SS+i}, v8")
    for i in range(16): e(f"v_exp_f32 v{SS+i}, v{SS+i}")
    e("s_nop 0")
    for i in range(8): e(f"v_cvt_pk_bf16_f32 v{P+i}, v{SS+2*i}, v{SS+2*i+1}")
    e("s_nop 1")
    mf(O,V0,P); mf(O,V1,P+4); rs(P); rs(P+4)
    k.nop(12)
    e(f"s_add_u32 s47, s47, 4096\ns_cmp_lt_u32 s47, {64*4096}\ns_cbranch_scc1 {F2}")
    e(f"s_branch {LFIN}")
    e(f"{END}:")
    e("s_endpgm")
    return k
```

```python
from base import *
from gemm128 import *

def common(name, kidx, nst, NS):
    k=Kern(name, 256, 512, NS*STG, vgpr=128, sgpr=80)
    return k

def h_addr(k, vdst, t, s_m, s_n, s_w):
    e=k.e
    e(f"s_lshr_b32 s30, s{s_m}, 1\ns_lshl_b32 s30, s30, 5\ns_lshl_b32 s31, s{s_n}, 1\ns_add_u32 s30, s30, s31\ns_lshl_b32 s30, s30, 14")
    e(f"s_and_b32 s31, s{s_m}, 1\ns_lshl_b32 s31, s31, 13\ns_add_u32 s30, s30, s31\ns_lshl_b32 s31, s{s_w}, 11\ns_add_u32 s30, s30, s31")
    e(f"v_and_b32 v{t}, 31, v2\nv_lshlrev_b32 v{t}, 6, v{t}\nv_add_u32 v{t}, s30, v{t}")
    e(f"v_lshrrev_b32 v{t+1}, 5, v2\nv_lshl_add_u32 v{t}, v{t+1}, 3, v{t}")
    e(f"v_bfe_u32 v{t+2}, v2, 2, 1\nv_mul_u32_u24 v{t+2}, 48, v{t+2}\nv_add_u32 v{vdst}, v{t}, v{t+2}")
    for g in range(1,4): e(f"v_xor_b32 v{vdst+g}, {16*g}, v{vdst}")

def gen_gemm(kind):
    isWo = kind=='wo'
    nst = 16 if isWo else 56
    NS=6
    name = "k2_wo_kernel" if isWo else "k4_down_kernel"
    kidx = 2 if isWo else 4
    k=common(name,kidx,nst,NS); e=k.e
    END=k.lab("END")
    R=dict(vA=4,vB=8,vT=10,vW=14,T=16,W=96,acc=40)
    S=dict(w=33,sA=40,sB=41,wr=42,rd=43,inc=44,wA=45,wB=46,t=47)
    RES=72; VH=88; VOUT=92; VST=93
    e(f"s_cmp_ge_u32 s2, 256\ns_cbranch_scc1 {END}")
    k.stamp_begin()
    k.load_ptr(8,'wo' if isWo else 'wd'); k.load_ptr(28,'ws')
    k.load_ptr(20,'x' if isWo else 'out')
    e("v_lshrrev_b32 v1, 6, v0\nv_and_b32 v2, 63, v0")
    e("s_and_b32 s30, s2, 7\ns_lshr_b32 s31, s2, 3")
    if isWo:
        e("s_and_b32 s32, s31, 1\ns_lshl_b32 s30, s30, 1\ns_add_u32 s34, s30, s32\ns_lshr_b32 s35, s31, 1")
    else:
        e("s_lshr_b32 s32, s30, 1\ns_lshl_b32 s32, s32, 2\ns_and_b32 s34, s31, 3\ns_add_u32 s34, s34, s32")
        e("s_and_b32 s32, s30, 1\ns_lshl_b32 s32, s32, 3\ns_lshr_b32 s35, s31, 2\ns_add_u32 s35, s35, s32")
    e("v_readfirstlane_b32 s58, v1")
    e("s_lshl_b32 s37, s35, 7")
    if isWo: e("s_lshl_b32 s36, s34, 18")
    else:    e(f"s_mul_i32 s36, s34, {56*16384}")
    e("s_and_b32 s33, s58, 3")
    e("s_waitcnt lgkmcnt(0)")
    if isWo:
        k.srd(8, 2*MB); k.srd(4, 4*MB, src=28, add=WS_O)
        g=G128(k,R,S,4,8,NS,0,128,64*2048,False)
    else:
        k.srd(8, 3584*2048); k.srd(4, 2048*3584*2, src=28, add=WS_ACT)
        g=G128(k,R,S,4,8,NS,0,16384,64*2048,True)
    LCONS=k.lab("CONS")
    e(f"s_cmp_lt_u32 s58, 4\ns_cbranch_scc1 {LCONS} ; @alt")
    g.setup_loader(2, 60, 2048, 2048, 36, 37)
    g.loader(nst, 39)
    e("s_endpgm")
    e(f"{LCONS}:")
    k.srd(12, 4*MB, src=28, add=WS_H)
    k.srd(20, 4*MB)
    h_addr(k, VH, 60, 34, 35, 33)
    e(f"s_lshl_b32 s30, s34, 7\ns_lshl_b32 s31, s33, 5\ns_add_u32 s30, s30, s31\nv_and_b32 v60, 31, v2\nv_add_u32 v61, s30, v60\nv_lshlrev_b32 v60, 11, v61")
    e(f"v_lshrrev_b32 v62, 5, v2\nv_lshl_add_u32 v60, v62, 5, v60\nv_add_u32 v{VOUT}, s37, v60")
    e("s_mov_b32 s48, 16384")
    if isWo:
        k.srd(16, 2048*128, src=28, add=WS_ST)
        e(f"v_lshlrev_b32 v61, 3, v61\ns_lshl_b32 s30, s35, 14\nv_add_u32 v{VST}, s30, v61")
        for f in range(2):
            for j in range(2):
                e(f"buffer_load_dwordx4 v[{RES+8*f+4*j}:{RES+8*f+4*j+3}], v{VOUT}, s[20:23], 0 offen offset:{f*64+j*16}")
    else:
        for f in range(2):
            so = "0" if f==0 else "s48"
            for g4 in range(4):
                e(f"buffer_load_dwordx2 v[{RES+8*f+2*g4}:{RES+8*f+2*g4+1}], v{VH+g4}, s[12:15], {so} offen")
    g.setup_consumer(2, 60)
    g.consumer(nst, 39, stamp=0)
    k.stamp_mid(1)
    A=R['acc']
    e("s_waitcnt vmcnt(0)")
    for f in range(2):
        for j in range(8):
            e(f"v_lshlrev_b32 v{16+2*j}, 16, v{RES+8*f+j}\nv_and_b32 v{17+2*j}, 0xffff0000, v{RES+8*f+j}")
        if f==0: k.nop(2)
        for i in range(16): e(f"v_add_f32 v{A+16*f+i}, v{A+16*f+i}, v{16+i}")
    for f in range(2):
        for j in range(8): e(f"v_cvt_pk_bf16_f32 v{RES+8*f+j}, v{A+16*f+2*j}, v{A+16*f+2*j+1}")
    if isWo:
        for f in range(2):
            so = "0" if f==0 else "s48"
            for g4 in range(4):
                e(f"buffer_store_dwordx2 v[{RES+8*f+2*g4}:{RES+8*f+2*g4+1}], v{VH+g4}, s[12:15], {so} offen")
        e(f"v_add_f32 v16, v{A}, v{A+1}")
        for i in range(2,32): e(f"v_add_f32 v16, v16, v{A+i}")
        e("v_mov_b32 v17, v16\ns_nop 1\nv_permlane32_swap_b32 v16, v17\ns_nop 1\nv_add_f32 v16, v16, v17")
        e(f"v_mul_f32 v18, {hex(f2u(1/64.))}, v16")
        for i in range(32): e(f"v_sub_f32 v{A+i}, v{A+i}, v18")
        e(f"v_mul_f32 v17, v{A}, v{A}")
        for i in range(1,32): e(f"v_fmac_f32 v17, v{A+i}, v{A+i}")
        e("v_mov_b32 v19, v17\ns_nop 1\nv_permlane32_swap_b32 v17, v19\ns_nop 1\nv_add_f32 v17, v17, v19")
        e("v_cmp_gt_u32 vcc, 32, v2\ns_and_saveexec_b64 s[50:51], vcc")
        e(f"buffer_store_dwordx2 v[16:17], v{VST}, s[16:19], 0 offen")
        e("s_mov_b64 exec, s[50:51]")
    else:
        for f in range(2):
            for j in range(2):
                e(f"buffer_store_dwordx4 v[{RES+8*f+4*j}:{RES+8*f+4*j+3}], v{VOUT}, s[20:23], 0 offen offset:{f*64+j*16}")
    e("s_waitcnt vmcnt(0)")
    k.stamp_end(kidx)
    e(f"{END}:")
    e("s_endpgm")
    return k
def gen_k2(): return gen_gemm('wo')
def gen_k4(): return gen_gemm('down')
```

```python
from base import *
import os, math
VAR=os.environ.get('K3VAR','')
SLOT=30720; NS=5
ST_OFF=NS*SLOT
CS_OFF=ST_OFF+4096
C0=-2.0*1.4426950408889634*math.sqrt(2.0/math.pi)
C1=C0*0.044715

def gen_k3():
    k=Kern("k3_gateup_kernel", 256, 256, CS_OFF+1024, vgpr=256, agpr=120, sgpr=96)
    e=k.e
    END=k.lab("END")
    ACC=32; TB=0; WB=32; STA=88
    def acc(v,tf): return ACC+4*(4*v+tf)
    e(f"s_cmp_ge_u32 s2, 256\ns_cbranch_scc1 {END}")
    k.stamp_begin()
    k.load_ptr(28,'ws'); k.load_ptr(8,'wg'); k.load_ptr(10,'wu')
    e("v_lshrrev_b32 v1, 6, v0\nv_and_b32 v2, 63, v0")
    e("s_and_b32 s30, s2, 7\ns_lshr_b32 s31, s2, 3")
    e("s_and_b32 s32, s30, 1\ns_lshl_b32 s32, s32, 2\ns_and_b32 s34, s31, 3\ns_add_u32 s34, s34, s32")
    e("s_lshr_b32 s32, s30, 1\ns_lshl_b32 s32, s32, 3\ns_lshr_b32 s35, s31, 2\ns_add_u32 s35, s35, s32")
    e("v_readfirstlane_b32 s33, v1")
    e("s_waitcnt lgkmcnt(0)")
    e("s_cmp_ge_u32 s33, 2\ns_cselect_b32 s8, s10, s8\ns_cselect_b32 s9, s11, s9")
    k.srd(8, 1024*7168)
    k.srd(4, 4*MB, src=28, add=WS_H); k.srd(12, 2048*128, src=28, add=WS_ST); k.srd(16, 4*7168*4, src=28, add=WS_CS)
    k.srd(20, 2048*3584*2, src=28, add=WS_ACT)
    e("s_lshl_b32 s36, s34, 11\nv_lshlrev_b32 v3, 3, v0")
    for i in range(16):
        e(f"buffer_load_dwordx2 a[{STA+2*i}:{STA+2*i+1}], v3, s[12:15], s36 offen")
        if i<15: e("s_add_u32 s36, s36, 16384")
    e("v_min_u32 v4, 223, v0\nv_cmp_le_u32 vcc, 112, v4")
    e("v_mov_b32 v6, 3472\nv_mov_b32 v5, 0\nv_cndmask_b32 v5, v5, v6, vcc\nv_add_u32 v5, v5, v4\ns_mul_i32 s37, s35, 112\nv_add_u32 v5, s37, v5\nv_lshlrev_b32 v5, 2, v5")
    for q in range(4):
        e(f"s_mov_b32 s38, {q*28672}\nbuffer_load_dword v{24+q}, v5, s[16:19], s38 offen")
    if os.environ.get('K3ST')=='0': k.stamp_mid(1)
    e("s_lshl_b32 s40, s34, 19")
    e("s_lshl_b32 s37, s33, 12\nv_lshlrev_b32 v3, 4, v2\nv_add_u32 v4, s37, v3")
    e("s_and_b32 s37, s33, 1\ns_lshl_b32 s37, s37, 2\ns_mul_i32 s38, s35, 224")
    for i in range(4):
        e(f"s_add_u32 s39, s37, {i}\ns_min_u32 s39, s39, 6\ns_lshl_b32 s{52+i}, s39, 10\ns_lshl_b32 s39, s39, 6")
        e(f"v_add_u32 v10, s39, v2\nv_mul_u32_u24 v11, 4682, v10\nv_lshrrev_b32 v11, 16, v11\nv_mul_u32_u24 v12, 14, v11\nv_sub_u32 v12, v10, v12")
        e(f"v_mul_u32_u24 v11, 7168, v11\nv_lshl_add_u32 v11, v12, 4, v11\nv_add_u32 v{5+i}, s38, v11")
    e("s_lshr_b32 s39, s33, 1\ns_mul_i32 s39, s39, 7168\ns_add_u32 s39, s39, 16384")
    for i in range(4): e(f"s_add_u32 s{52+i}, s{52+i}, s39")
    e("s_lshl_b32 s56, s33, 12")
    e("s_mov_b32 s41, 0\ns_mov_b32 s42, 0\ns_mov_b32 s43, 0")
    e("s_mov_b32 s57, 0x7ff00000")
    def dma_list():
        G=[]
        pre=["s_cmp_lt_u32 s43, 32","s_cselect_b32 s44, s40, s57","s_cselect_b32 s45, s41, s57","s_add_u32 m0, s42, s56"]
        G.append(pre+["s_add_u32 s43, s43, 1","buffer_load_dwordx4 v4, s[4:7], s44 offen lds"])
        for i in range(1,4): G.append([f"buffer_load_dwordx4 v4, s[4:7], s44 offen offset:{1024*i} lds"])
        for i in range(4):
            g=[f"s_add_u32 m0, s42, s{52+i}","s_nop 0",f"buffer_load_dwordx4 v{5+i}, s[8:11], s45 offen lds"]
            if i==3:
                g+=["s_add_u32 s40, s40, 16384",f"s_add_u32 s41, s41, {32*7168}",
                    f"s_add_u32 s42, s42, {SLOT}",f"s_cmp_eq_u32 s42, {NS*SLOT}","s_cselect_b32 s42, 0, s42"]
            G.append(g)
        return G
    for st in range(2):
        for g in dma_list(): e("\n".join(g))
    if os.environ.get('K3ST')=='1': k.stamp_mid(1)
    e("v_and_b32 v10, 15, v2\nv_lshrrev_b32 v11, 4, v2\nv_bfe_u32 v12, v2, 2, 1\nv_mul_u32_u24 v12, 3, v12\nv_xor_b32 v12, v12, v11")
    e("v_lshlrev_b32 v10, 6, v10\nv_lshl_add_u32 v10, v12, 4, v10\ns_lshl_b32 s37, s33, 12\nv_add_u32 v9, s37, v10")
    e("v_lshrrev_b32 v10, 2, v2\nv_mul_u32_u24 v10, 224, v10\nv_and_b32 v11, 3, v2\nv_lshl_add_u32 v10, v11, 3, v10\nv_add_u32 v10, 16384, v10")
    e("s_waitcnt vmcnt(16)")
    e("v_add_f32 v24, v24, v25\nv_add_f32 v26, v26, v27\nv_add_f32 v24, v24, v26")
    e(f"v_lshlrev_b32 v25, 2, v0\nv_add_u32 v25, {CS_OFF}, v25\nv_cmp_gt_u32 vcc, 224, v0\ns_and_saveexec_b64 s[48:49], vcc")
    e("ds_write_b32 v25, v24\ns_mov_b64 exec, s[48:49]")
    e(f"v_accvgpr_read_b32 v12, a{STA}")
    for j in range(1,16): e(f"v_accvgpr_read_b32 v13, a{STA+2*j}\nv_add_f32 v12, v12, v13")
    e(f"v_mul_f32 v12, {hex(f2u(1/1024.))}, v12")
    e(f"v_mov_b32 v14, 0\nv_mov_b32 v16, {hex(f2u(1/64.))}\nv_mov_b32 v17, {hex(f2u(64.))}")
    for j in range(16):
        e(f"v_accvgpr_read_b32 v13, a{STA+2*j}\nv_accvgpr_read_b32 v15, a{STA+2*j+1}")
        e("v_fma_f32 v13, v13, v16, -v12\nv_add_f32 v14, v14, v15\nv_mul_f32 v13, v13, v13\nv_fmac_f32 v14, v13, v17")
    e(f"v_mov_b32 v16, {hex(f2u(1/1024.))}\nv_mov_b32 v17, {hex(f2u(1e-5))}\nv_fma_f32 v14, v14, v16, v17")
    e("v_rsq_f32 v15, v14\ns_nop 0")
    e("v_sub_f32 v20, 0, v12")
    e(f"v_mul_f32 v21, {hex(f2u(C0))}, v15")
    e(f"v_mul_f32 v22, v15, v15\nv_mul_f32 v22, v22, v15\nv_mul_f32 v22, {hex(f2u(C1))}, v22")
    e("v_mov_b32 v23, v14")
    e(f"v_lshlrev_b32 v13, 4, v0\nv_add_u32 v13, {ST_OFF}, v13\nds_write_b128 v13, v[20:23]")
    if os.environ.get('K3ST')=='2': k.stamp_mid(1)
    e("s_waitcnt vmcnt(8) lgkmcnt(0)\ns_barrier")
    def rdT(buf):
        return [f"ds_read_b128 a[{TB+16*buf+4*tf}:{TB+16*buf+4*tf+3}], v9 offset:{tf*1024}" for tf in range(4)]
    def rdW(v):
        off=(v%7)*32+(v//7)*7168
        return [f"ds_read_b64_tr_b16 a[{WB+4*v+2*t}:{WB+4*v+2*t+1}], v10 offset:{off+t*3584}" for t in range(2)]
    e("\n".join(rdT(0)))
    for v in range(14):
        e("\n".join(rdW(v)))
        if v==5: e("s_waitcnt lgkmcnt(4)")
    e(f"s_mov_b32 s46, {SLOT}\ns_mov_b32 s38, {SLOT}")
    k.stamp_mid(0)
    e("s_waitcnt lgkmcnt(0)")
    def stage(par, first=False, ndma=1, X=8*(NS-3)):
        F={i:[] for i in range(56)}
        rd='nord' not in VAR; dm='nodma' not in VAR
        F[0].append("v_add_u32 v9, s38, v9")
        F[1].append("v_add_u32 v10, s38, v10")
        F[2].append(f"s_waitcnt vmcnt({X})")
        F[3].append("s_barrier")
        if rd:
            for v in range(14):
                a,b=rdW(v)
                F[4*v+3].append(a)
                if v<13: F[4*v+4].append(b)
                else: F[55].append(b)
            T=rdT(1-par)
            for q,gp in enumerate((5,6,9,10)): F[gp].append(T[q])
        F[22].append("s_waitcnt lgkmcnt(4)")
        F[54].append("s_waitcnt lgkmcnt(4)")
        def put(gaps_pre,gapsA,gapsB,gaps_post):
            F[gaps_pre[0]]+=["s_cmp_lt_u32 s43, 32","s_cselect_b32 s44, s40, s57"]
            F[gaps_pre[1]]+=["s_cselect_b32 s45, s41, s57","s_add_u32 m0, s42, s56"]
            for q,gp in enumerate(gapsA):
                F[gp].append(f"buffer_load_dwordx4 v4, s[4:7], s44 offen offset:{1024*q} lds" if q else "buffer_load_dwordx4 v4, s[4:7], s44 offen lds")
            for q,(gm,gp) in enumerate(gapsB):
                F[gm].append(f"s_add_u32 m0, s42, s{52+q}")
                F[gp].append(f"buffer_load_dwordx4 v{5+q}, s[8:11], s45 offen lds")
            F[gaps_post[0]]+=["s_add_u32 s43, s43, 1","s_add_u32 s40, s40, 16384"]
            F[gaps_post[1]]+=[f"s_add_u32 s41, s41, {32*7168}",f"s_add_u32 s42, s42, {SLOT}"]
            F[gaps_post[2]]+=[f"s_cmp_eq_u32 s42, {NS*SLOT}","s_cselect_b32 s42, 0, s42"]
        if dm:
            if ndma==1:
                put((13,14),(17,18,21,25),((26,29),(30,33),(34,37),(38,41)),(42,45,46))
            else:
                put((5,6),(9,10,12,13),((13,14),(14,16),(16,17),(17,18)),(20,21,24))
                put((25,26),(28,29,30,32),((32,33),(33,34),(34,36),(36,37)),(40,41,42))
        F[49]+=[f"s_add_u32 s37, s46, {SLOT}",f"s_cmp_eq_u32 s37, {NS*SLOT}"]
        F[50]+=["s_cselect_b32 s37, 0, s37","s_sub_u32 s38, s37, s46"]
        F[53]+=["s_mov_b32 s46, s37"]
        for i in range(56):
            v,tf=divmod(i,4)
            a=acc(v,tf)
            c="0" if first else f"v[{a}:{a+3}]"
            e(f"v_mfma_f32_16x16x32_bf16 v[{a}:{a+3}], a[{WB+4*v}:{WB+4*v+3}], a[{TB+16*par+4*tf}:{TB+16*par+4*tf+3}], {c}")
            for x in F[i]: e(x)
    stage(0, first=True, ndma=2, X=0)
    stage(1, ndma=2, X=8)
    e("s_mov_b32 s47, 15")
    L=k.lab("MAIN")
    e(f"{L}:")
    stage(0); stage(1)
    e(f"s_sub_u32 s47, s47, 1\ns_cmp_lg_u32 s47, 0\ns_cbranch_scc1 {L}")
    if not os.environ.get('K3ST'): k.stamp_mid(1)
    e("s_waitcnt lgkmcnt(0)")
    e(f"v_and_b32 v3, 15, v2\ns_lshl_b32 s37, s33, 10\nv_lshl_add_u32 v3, v3, 4, s37\nv_add_u32 v3, {ST_OFF}, v3")
    e(f"v_lshrrev_b32 v4, 4, v2\nv_lshlrev_b32 v4, 4, v4\nv_add_u32 v4, {CS_OFF}, v4")
    e("v_lshrrev_b32 v5, 5, v2")
    e("v_bfe_u32 v6, v2, 1, 3")
    e("v_and_b32 v7, 15, v2\nv_bfe_u32 v1, v2, 4, 1\nv_lshl_add_u32 v7, v1, 4, v7\ns_and_b32 s37, s33, 1\ns_lshl_b32 s37, s37, 6\nv_add_u32 v7, s37, v7\nv_lshlrev_b32 v7, 7, v7")
    e("s_lshr_b32 s37, s33, 1\ns_lshl_b32 s38, s34, 1\ns_add_u32 s37, s37, s38\ns_mul_i32 s50, s37, 56")
    e("s_mul_i32 s51, s35, 14")
    for tp in range(2):
        e(f"ds_read_b128 v[8:11], v3 offset:{(2*tp)*256}\nds_read_b128 v[12:15], v3 offset:{(2*tp+1)*256}")
        for v in range(7):
            if v==0 and tp==0: e(f"ds_read_b128 v[24:27], v4 offset:0\nds_read_b128 v[28:31], v4 offset:448")
            e(f"s_add_u32 s37, s51, {2*v}\ns_lshr_b32 s38, s37, 3\ns_and_b32 s37, s37, 7\ns_add_u32 s38, s38, s50\ns_lshl_b32 s38, s38, 14")
            if tp: e("s_add_u32 s38, s38, 4096")
            e("v_add_u32 v1, s37, v5\nv_xor_b32 v1, v1, v6\nv_lshl_add_u32 v1, v1, 4, v7")
            e("s_waitcnt lgkmcnt(1)" if not (v==0) else "s_waitcnt lgkmcnt(0)")
            nv=(v+1)%7
            last=(v==6 and tp==1)
            for tt in range(2):
                tf=2*tp+tt
                G=acc(v,tf); U=acc(7+v,tf)
                P0=f"v[{8+4*tt}:{9+4*tt}]"; P1=f"v[{10+4*tt}:{11+4*tt}]"
                gp=lambda h: f"v[{G+2*h}:{G+2*h+1}]"
                up=lambda h: f"v[{U+2*h}:{U+2*h+1}]"
                tp_=lambda h: f"v[{16+2*h}:{17+2*h}]"
                for h in range(2): e(f"v_pk_fma_f32 {gp(h)}, v[{24+2*h}:{25+2*h}], {P0}, {gp(h)} op_sel_hi:[1,0,1]")
                if tt==1 and not last: e(f"ds_read_b128 v[24:27], v4 offset:{nv*64}")
                for h in range(2): e(f"v_pk_mul_f32 {tp_(h)}, {gp(h)}, {gp(h)}")
                for h in range(2): e(f"v_pk_fma_f32 {tp_(h)}, {tp_(h)}, {P1}, {P0} op_sel:[0,0,1] op_sel_hi:[1,0,1]")
                for h in range(2): e(f"v_pk_mul_f32 {tp_(h)}, {tp_(h)}, {gp(h)}")
                for c in range(4): e(f"v_exp_f32 v{16+c}, v{16+c}")
                if tt==0: e("s_waitcnt lgkmcnt(0)")
                for h in range(2): e(f"v_pk_fma_f32 {up(h)}, v[{28+2*h}:{29+2*h}], {P0}, {up(h)} op_sel_hi:[1,0,1]")
                if tt==1 and not last: e(f"ds_read_b128 v[28:31], v4 offset:{448+nv*64}")
                for h in range(2): e(f"v_pk_fma_f32 {tp_(h)}, {tp_(h)}, {P1}, {P1} op_sel:[0,1,1] op_sel_hi:[1,1,1]")
                for c in range(4): e(f"v_rcp_f32 v{16+c}, v{16+c}")
                for h in range(2): e(f"v_pk_mul_f32 {up(h)}, {up(h)}, {gp(h)}")
                for h in range(2): e(f"v_pk_mul_f32 {up(h)}, {up(h)}, {tp_(h)}")
                e(f"v_cvt_pk_bf16_f32 v{20+2*tt}, v{U}, v{U+1}\nv_cvt_pk_bf16_f32 v{21+2*tt}, v{U+2}, v{U+3}")
            e("s_nop 1")
            e("v_permlane16_swap_b32 v20, v22\nv_permlane16_swap_b32 v21, v23")
            e(f"buffer_store_dwordx4 v[20:23], v1, s[20:23], s38 offen")
    e("s_waitcnt vmcnt(0)")
    k.stamp_end(3)
    e(f"{END}:")
    e("s_endpgm")
    return k
```

```python
import sys
from base import *
import k0
from chk import check
HDR=["; sequential_preLN + MQA attention + GEGLU FFN, gfx950. Generated by my own generator scripts (gen/*.py)."]
def make(which):
    import k1,k2,k3
    G={'k0':k0.gen_k0,'k1':k1.gen_k1,'k2':k2.gen_k2,'k3':k3.gen_k3,'k4':k2.gen_k4}
    cache={}; ks=[]
    for w in which:
        if w not in cache: cache[w]=G[w]()
        ks.append(cache[w])
    return ks
if __name__=='__main__':
    out=sys.argv[1]; which=sys.argv[2].split(',')
    ks=make(which)
    txt=build(ks,HDR)
    for k in dict.fromkeys(ks):
        print(k.name, end=': '); check("\n".join(k.L))
    open(out,'w').write(txt)
```

```python
import math

KA = dict(x=0, wq=8, wk=16, wv=24, wo=32, bx=40, wg=48, wu=56, wd=64, out=72, dbg=80, ws=88)

MB = 1 << 20
WS_XN  = 0
WS_KV  = 4*MB
WS_O   = 5*MB
WS_H   = 9*MB
WS_ST  = 13*MB
WS_CS  = 13*MB + 512*1024
WS_ACT = 14*MB
WS_END = 30*MB
WS_STAMP = 31*MB
WS_WQB = 40*MB
WS_WDB = 32*MB
import os
STAMP = os.environ.get('STAMP','0')=='1'

class Kern:
    def __init__(self, name, grid, block, lds, vgpr, agpr=0, sgpr=102):
        self.name=name; self.grid=grid; self.block=block; self.lds=lds
        self.vgpr=vgpr; self.agpr=agpr; self.sgpr=sgpr
        self.L=[]; self._lab=0
    def e(self, s):
        for l in s.split('\n'):
            l=l.strip()
            if l: self.L.append(l)
    def c(self, s): self.L.append('; '+s)
    def lab(self, p='L'):
        self._lab+=1; return f"{p}_{self.name}_{self._lab}"
    def nop(self, n):
        while n>0:
            k=min(n,16); self.e(f"s_nop {k-1}"); n-=k
    def text(self):
        acc = (self.vgpr+3)//4*4
        hdr=f".globl {self.name}\n.p2align 8\n.type {self.name},@function\n{self.name}:\n"
        return hdr+"\n".join(("    "+l if not l.endswith(':') else l) for l in self.L)+"\n"
    def desc(self):
        acc=(self.vgpr+3)//4*4
        nfv = acc+self.agpr if self.agpr else self.vgpr
        return f""".p2align 6
.amdhsa_kernel {self.name}
  .amdhsa_next_free_vgpr {nfv}
  .amdhsa_next_free_sgpr {self.sgpr}
  .amdhsa_accum_offset {acc}
  .amdhsa_group_segment_fixed_size 0
  .amdhsa_kernarg_size 96
  .amdhsa_user_sgpr_count 2
  .amdhsa_user_sgpr_kernarg_segment_ptr 1
  .amdhsa_system_sgpr_workgroup_id_x 1
{'' if os.environ.get('NODENORM') else '  .amdhsa_float_denorm_mode_32 3'}
.end_amdhsa_kernel
"""
    def stamp_begin(self):
        if STAMP:
            self.sgpr=102
            self.e("s_memrealtime s[88:89]\ns_memtime s[90:91]")
    def stamp_mid(self, idx):
        if STAMP: self.e(f"s_memtime s[{96+2*idx}:{97+2*idx}]")
    def stamp_end(self, kidx, tid=0):
        if not STAMP: return
        e=self.e
        L=self.lab("STMP")
        e("s_waitcnt vmcnt(0) lgkmcnt(0)")
        e("s_memrealtime s[92:93]\ns_memtime s[94:95]")
        e(f"s_load_dwordx2 s[86:87], s[0:1], {KA['ws']}")
        e("s_waitcnt lgkmcnt(0)")
        e(f"s_add_u32 s86, s86, {WS_STAMP+kidx*8192}\ns_addc_u32 s87, s87, 0")
        e(f"s_mov_b32 s83, {tid}\nv_cmp_eq_u32 vcc, s83, v0\ns_and_saveexec_b64 s[84:85], vcc")
        e(f"s_cbranch_execz {L}")
        e("s_lshl_b32 s83, s2, 5\nv_mov_b32 v1, s83")
        e("v_mov_b32 v4, s88\nv_mov_b32 v5, s92\nv_mov_b32 v6, s90\nv_mov_b32 v7, s94")
        e("global_store_dwordx4 v1, v[4:7], s[86:87]")
        e("s_getreg_b32 s82, hwreg(HW_REG_XCC_ID)\ns_getreg_b32 s81, hwreg(HW_REG_HW_ID)")
        e("v_mov_b32 v8, s96\nv_mov_b32 v9, s98\nv_mov_b32 v10, s82\nv_mov_b32 v11, s81")
        e("global_store_dwordx4 v1, v[8:11], s[86:87] offset:16")
        e("s_waitcnt vmcnt(0)")
        e(f"{L}:")
    def load_ptr(self, sreg, name):
        self.e(f"s_load_dwordx2 s[{sreg}:{sreg+1}], s[0:1], {KA[name]}")
    def srd(self, s, nbytes, src=None, add=0):
        if src is None: src=s
        if add:
            self.e(f"s_add_u32 s{s}, s{src}, {add}")
            self.e(f"s_addc_u32 s{s+1}, s{src+1}, 0")
        elif src!=s:
            self.e(f"s_mov_b32 s{s}, s{src}\ns_mov_b32 s{s+1}, s{src+1}")
        self.e(f"s_mov_b32 s{s+2}, {nbytes}")
        self.e(f"s_mov_b32 s{s+3}, 0x20000")

def vr(a,n=1): return f"v{a}" if n==1 else f"v[{a}:{a+n-1}]"
def ar(a,n=1): return f"a{a}" if n==1 else f"a[{a}:{a+n-1}]"
def sr(a,n=1): return f"s{a}" if n==1 else f"s[{a}:{a+n-1}]"

def build(kernels, header_comments):
    out=list(header_comments)
    for k in kernels:
        out.append(f"; @launch kernel={k.name} grid=({k.grid},1,1) block=({k.block},1,1) lds={k.lds}")
    out.append('.amdgcn_target "amdgcn-amd-amdhsa--gfx950"')
    out.append('.text')
    seen=[]
    for k in kernels:
        if k.name in seen: continue
        seen.append(k.name); out.append(k.text())
    out.append('.section .rodata,"a"')
    seen=[]
    for k in kernels:
        if k.name in seen: continue
        seen.append(k.name); out.append(k.desc())
    return "\n".join(out)+"\n"

def f2u(x):
    import struct
    return struct.unpack('<I',struct.pack('<f',x))[0]
```

```python
from base import *
import os
BST=8192

class GDA:
    D=16
    def __init__(s,k,R,S,srdA,srdB,NS,nst,b_blocked,b_step,kperm):
        s.k=k; s.R=R; s.S=S; s.srdA=srdA; s.srdB=srdB; s.NS=NS; s.nst=nst
        s.b_blocked=b_blocked; s.b_step=b_step; s.kperm=kperm
    def setup_loader(s, vlane, tmp, ldb, s_b0):
        k=s.k; e=k.e; R=s.R; S=s.S; t0,t1,t2=tmp,tmp+1,tmp+2; w=S['w']
        if s.b_blocked:
            e(f"s_lshl_b32 s{S['t']}, s{w}, 11\ns_add_u32 s{S['t']}, s{S['t']}, s{s_b0}")
            e(f"v_lshlrev_b32 v{t0}, 4, v{vlane}\nv_add_u32 v{R['vB']}, s{S['t']}, v{t0}")
        else:
            e(f"v_lshrrev_b32 v{t0}, 3, v{vlane}\ns_lshl_b32 s{S['t']}, s{w}, 4\nv_add_u32 v{t0}, s{S['t']}, v{t0}")
            e(f"s_mov_b32 s{S['t']}, {ldb}\nv_mul_lo_u32 v{t0}, v{t0}, s{S['t']}\nv_add_u32 v{t0}, s{s_b0}, v{t0}")
            e(f"v_bfe_u32 v{t1}, v{vlane}, 4, 1\nv_lshlrev_b32 v{t1}, 2, v{t1}\nv_and_b32 v{t2}, 7, v{vlane}\nv_xor_b32 v{t1}, v{t1}, v{t2}")
            e(f"v_lshl_add_u32 v{R['vB']}, v{t1}, 4, v{t0}\nv_add_u32 v{R['vB']+1}, {8*ldb}, v{R['vB']}")
        e(f"s_lshl_b32 s{S['wB']}, s{w}, 11\ns_mov_b32 s{S['wr']}, 0\ns_mov_b32 s{S['sB']}, 0")
    def dma(s):
        k=s.k; e=k.e; R=s.R; S=s.S
        if s.b_blocked:
            e(f"s_add_u32 m0, s{S['wr']}, s{S['wB']}\ns_nop 0")
            for i in range(2):
                e(f"buffer_load_dwordx4 v{R['vB']}, s[{s.srdB}:{s.srdB+3}], s{S['sB']} offen offset:{i*1024} lds")
        else:
            e(f"s_add_u32 s{S['t']}, s{S['wr']}, s{S['wB']}")
            for i in range(2):
                e(f"s_add_u32 m0, s{S['t']}, {i*1024}\ns_nop 0")
                e(f"buffer_load_dwordx4 v{R['vB']+i}, s[{s.srdB}:{s.srdB+3}], s{S['sB']} offen lds")
        e(f"s_add_u32 s{S['sB']}, s{S['sB']}, {s.b_step}")
        e(f"s_add_u32 s{S['wr']}, s{S['wr']}, {BST}\ns_cmp_eq_u32 s{S['wr']}, {s.NS*BST}\ns_cselect_b32 s{S['wr']}, 0, s{S['wr']}")
    def loader(s, cnt):
        k=s.k; e=k.e; NS=s.NS; nst=s.nst
        for i in range(NS-1): s.dma()
        e(f"s_waitcnt vmcnt({(NS-2)*2})\ns_barrier")
        nloop=nst-(NS-1)
        L=k.lab("LD")
        e(f"s_mov_b32 s{cnt}, {nloop}\n{L}:")
        e(f"s_waitcnt vmcnt({(NS-3)*2})\ns_barrier")
        s.dma()
        e(f"s_sub_u32 s{cnt}, s{cnt}, 1\ns_cmp_lg_u32 s{cnt}, 0\ns_cbranch_scc1 {L}")
        for t in range(nloop, nst-1):
            e(f"s_waitcnt vmcnt({((nst-1)-(t+1))*2})\ns_barrier")
    def setup_consumer(s, vlane, tmp, s_a0):
        k=s.k; e=k.e; R=s.R; S=s.S; t0,t1,t2=tmp,tmp+1,tmp+2
        e(f"v_lshlrev_b32 v{R['vA']}, 4, v{vlane}\nv_add_u32 v{R['vA']}, s{s_a0}, v{R['vA']}")
        hs = 4 if s.kperm else 3
        e(f"v_lshrrev_b32 v{t0}, 5, v{vlane}\nv_lshlrev_b32 v{t0}, {hs}, v{t0}\nv_bfe_u32 v{t1}, v{vlane}, 2, 2\nv_add_u32 v{t0}, v{t0}, v{t1}\nv_lshlrev_b32 v{t0}, 7, v{t0}")
        e(f"v_and_b32 v{t1}, 1, v{vlane}\nv_lshlrev_b32 v{t1}, 1, v{t1}\nv_bfe_u32 v{t2}, v{vlane}, 4, 1\nv_add_u32 v{t1}, v{t1}, v{t2}")
        e(f"v_bfe_u32 v{t2}, v{vlane}, 3, 1\nv_lshlrev_b32 v{t2}, 2, v{t2}\nv_xor_b32 v{t1}, v{t1}, v{t2}")
        e(f"v_bfe_u32 v{t2}, v{vlane}, 1, 1\nv_lshlrev_b32 v{t2}, 3, v{t2}\nv_add_u32 v{t0}, v{t0}, v{t2}")
        e(f"v_lshl_add_u32 v{R['vW']}, v{t1}, 4, v{t0}")
        e(f"v_xor_b32 v{t1}, 4, v{t1}\nv_lshl_add_u32 v{R['vW']+1}, v{t1}, 4, v{t0}")
        e(f"s_mov_b32 s{S['rd']}, 0\ns_mov_b32 s{S['sA']}, 0")
        for i in range(32): e(f"v_mov_b32 v{R['acc']+i}, 0")
    def aload(s, buf, ks, so):
        R=s.R; b=R['AF']+4*buf
        s.k.e(f"buffer_load_dwordx4 v[{b}:{b+3}], v{R['vA']}, s[{s.srdA}:{s.srdA+3}], s{so} offen offset:{ks*1024}")
    def a_prologue(s):
        e=s.k.e; S=s.S
        for st in range(4):
            for ks in range(4): s.aload(4*st+ks, ks, S['sA'])
            e(f"s_add_u32 s{S['sA']}, s{S['sA']}, 4096")
    def wreads(s, ks, buf):
        e=s.k.e; R=s.R; W=R['W']+8*buf
        row = (32*(ks>>1)+8*(ks&1)) if s.kperm else 16*ks
        for f in range(2):
            for t in range(2):
                e(f"ds_read_b64_tr_b16 v[{W+4*f+2*t}:{W+4*f+2*t+1}], v{R['vW']+f} offset:{(row+4*t)*128}")
    def advance_read(s):
        e=s.k.e; R=s.R; S=s.S
        e(f"s_add_u32 s{S['t']}, s{S['rd']}, {BST}\ns_cmp_eq_u32 s{S['t']}, {s.NS*BST}\ns_cselect_b32 s{S['t']}, 0, s{S['t']}")
        e(f"s_sub_u32 s{S['inc']}, s{S['t']}, s{S['rd']}\ns_mov_b32 s{S['rd']}, s{S['t']}")
        for i in range(2): e(f"v_add_u32 v{R['vW']+i}, s{S['inc']}, v{R['vW']+i}")
    def cstage(s, p, tail=None, nres=0):
        e=s.k.e; R=s.R; S=s.S
        last = tail==3
        for ks in range(4):
            if ks==2 and not last:
                e("s_barrier"); s.advance_read()
            if ks<2: s.wreads(ks+2,ks+2); n=8
            elif not last: s.wreads(ks-2,ks-2); n=8
            else: n=4 if ks==2 else 0
            vm = 15 if tail is None else (15-4*tail-ks+nres)
            e(f"s_waitcnt vmcnt({vm}) lgkmcnt({n})")
            T=R['AF']+4*(4*p+ks); W=R['W']+8*ks
            for f in range(2):
                a=R['acc']+16*f
                e(f"v_mfma_f32_32x32x16_bf16 v[{a}:{a+15}], v[{W+4*f}:{W+4*f+3}], v[{T}:{T+3}], v[{a}:{a+15}]")
            if tail is None: s.aload(4*p+ks, ks, S['sA'])
        if tail is None: e(f"s_add_u32 s{S['sA']}, s{S['sA']}, 4096")
    def consumer(s, cnt, stamp=None, res_hook=None, nres=0):
        k=s.k; e=k.e
        e("s_barrier")
        if stamp is not None and STAMP:
            k.stamp_mid(stamp); e('s_waitcnt lgkmcnt(0)')
        s.wreads(0,0); s.wreads(1,1)
        assert s.nst%4==0
        L=k.lab("CS")
        e(f"s_mov_b32 s{cnt}, {s.nst//4-1}\n{L}:")
        for p in range(4): s.cstage(p)
        e(f"s_sub_u32 s{cnt}, s{cnt}, 1\ns_cmp_lg_u32 s{cnt}, 0\ns_cbranch_scc1 {L}")
        if res_hook: res_hook()
        for p in range(4): s.cstage(p, tail=p, nres=nres)
```

```python
from base import *
import os
STG=24576

class G128:
    NDMA=6
    def __init__(s,k,R,S,srdA,srdB,NS,lds_base,a_step,b_step,a_blocked,b_blocked=False):
        s.k=k; s.R=R; s.S=S; s.srdA=srdA; s.srdB=srdB; s.NS=NS; s.base=lds_base
        s.a_step=a_step; s.b_step=b_step; s.a_blocked=a_blocked; s.b_blocked=b_blocked
    def setup_loader(s, vlane, tmp, lda, ldb, s_arow0, s_bcol0):
        k=s.k; e=k.e; R=s.R; S=s.S; t0,t1,t2,t3=tmp,tmp+1,tmp+2,tmp+3
        w=S['w']
        if s.a_blocked:
            e(f"s_lshl_b32 s{S['t']}, s{w}, 12\ns_add_u32 s{S['t']}, s{S['t']}, s{s_arow0}")
            e(f"v_lshlrev_b32 v{t0}, 4, v{vlane}\nv_add_u32 v{R['vA']}, s{S['t']}, v{t0}")
        else:
            e(f"v_lshrrev_b32 v{t0}, 3, v{vlane}")
            e(f"s_lshl_b32 s{S['t']}, s{w}, 5\nv_add_u32 v{t0}, s{S['t']}, v{t0}")
            e(f"s_mov_b32 s{S['t']}, {lda}\nv_mul_lo_u32 v{t0}, v{t0}, s{S['t']}\nv_add_u32 v{t0}, s{s_arow0}, v{t0}")
            e(f"v_and_b32 v{t1}, 7, v{vlane}\nv_lshrrev_b32 v{t2}, 4, v{vlane}\nv_xor_b32 v{t1}, v{t1}, v{t2}")
            e(f"v_xor_b32 v{t2}, 4, v{t1}")
            for i in range(4):
                u = t1 if i%2==0 else t2
                e(f"v_lshl_add_u32 v{R['vA']+i}, v{u}, 4, v{t0}")
                if i: e(f"v_add_u32 v{R['vA']+i}, {i*8*lda}, v{R['vA']+i}")
        if s.b_blocked:
            e(f"s_lshl_b32 s{S['t']}, s{w}, 11\ns_add_u32 s{S['t']}, s{S['t']}, s{s_bcol0}")
            e(f"v_lshlrev_b32 v{t0}, 4, v{vlane}\nv_add_u32 v{R['vB']}, s{S['t']}, v{t0}")
        else:
            e(f"v_lshrrev_b32 v{t0}, 3, v{vlane}\ns_lshl_b32 s{S['t']}, s{w}, 4\nv_add_u32 v{t0}, s{S['t']}, v{t0}")
            e(f"s_mov_b32 s{S['t']}, {ldb}\nv_mul_lo_u32 v{t0}, v{t0}, s{S['t']}\nv_add_u32 v{t0}, s{s_bcol0}, v{t0}")
            e(f"v_bfe_u32 v{t1}, v{vlane}, 4, 1\nv_lshlrev_b32 v{t1}, 2, v{t1}\nv_and_b32 v{t2}, 7, v{vlane}\nv_xor_b32 v{t1}, v{t1}, v{t2}")
            e(f"v_lshl_add_u32 v{R['vB']}, v{t1}, 4, v{t0}\nv_add_u32 v{R['vB']+1}, {8*ldb}, v{R['vB']}")
        e(f"s_lshl_b32 s{S['wA']}, s{w}, 12\ns_lshl_b32 s{S['wB']}, s{w}, 11\ns_add_u32 s{S['wB']}, s{S['wB']}, 16384")
        e(f"s_mov_b32 s{S['wr']}, {s.base}\ns_mov_b32 s{S['sA']}, 0\ns_mov_b32 s{S['sB']}, 0")
    def setup_consumer(s, vlane, tmp):
        k=s.k; e=k.e; R=s.R; S=s.S; t0,t1,t2,t3=tmp,tmp+1,tmp+2,tmp+3
        w=S['w']
        e(f"v_and_b32 v{t0}, 31, v{vlane}\nv_bfe_u32 v{t1}, v{vlane}, 1, 3\nv_lshrrev_b32 v{t2}, 5, v{vlane}\nv_xor_b32 v{t1}, v{t1}, v{t2}")
        e(f"s_lshl_b32 s{S['t']}, s{w}, 12\ns_add_u32 s{S['t']}, s{S['t']}, {s.base}")
        e(f"v_lshlrev_b32 v{t0}, 7, v{t0}\nv_add_u32 v{t0}, s{S['t']}, v{t0}")
        for st in range(4):
            e(f"v_xor_b32 v{t2}, {2*st}, v{t1}\nv_lshl_add_u32 v{R['vT']+st}, v{t2}, 4, v{t0}")
        e(f"v_lshrrev_b32 v{t0}, 5, v{vlane}\nv_lshlrev_b32 v{t0}, 3, v{t0}\nv_bfe_u32 v{t1}, v{vlane}, 2, 2\nv_add_u32 v{t0}, v{t0}, v{t1}\nv_lshlrev_b32 v{t0}, 7, v{t0}")
        e(f"v_and_b32 v{t1}, 1, v{vlane}\nv_lshlrev_b32 v{t1}, 1, v{t1}\nv_bfe_u32 v{t2}, v{vlane}, 4, 1\nv_add_u32 v{t1}, v{t1}, v{t2}")
        e(f"v_bfe_u32 v{t2}, v{vlane}, 3, 1\nv_lshlrev_b32 v{t2}, 2, v{t2}\nv_xor_b32 v{t1}, v{t1}, v{t2}")
        e(f"v_bfe_u32 v{t2}, v{vlane}, 1, 1\nv_lshlrev_b32 v{t2}, 3, v{t2}\nv_add_u32 v{t0}, v{t0}, v{t2}\nv_add_u32 v{t0}, {s.base+16384}, v{t0}")
        e(f"v_lshl_add_u32 v{R['vW']}, v{t1}, 4, v{t0}")
        e(f"v_xor_b32 v{t1}, 4, v{t1}\nv_lshl_add_u32 v{R['vW']+1}, v{t1}, 4, v{t0}")
        e(f"s_mov_b32 s{S['rd']}, {s.base}")
        for i in range(32): e(f"v_mov_b32 v{R['acc']+i}, 0")
    def dma(s):
        k=s.k; e=k.e; R=s.R; S=s.S
        if s.a_blocked:
            e(f"s_add_u32 m0, s{S['wr']}, s{S['wA']}\ns_add_u32 s{S['t']}, s{S['wr']}, s{S['wB']}")
            for i in range(4):
                e(f"buffer_load_dwordx4 v{R['vA']}, s[{s.srdA}:{s.srdA+3}], s{S['sA']} offen offset:{i*1024} lds")
        else:
            e(f"s_add_u32 s{S['t']}, s{S['wr']}, s{S['wA']}")
            for i in range(4):
                e(f"s_add_u32 m0, s{S['t']}, {i*1024}\ns_nop 0")
                e(f"buffer_load_dwordx4 v{R['vA']+i}, s[{s.srdA}:{s.srdA+3}], s{S['sA']} offen lds")
            e(f"s_add_u32 s{S['t']}, s{S['wr']}, s{S['wB']}")
        if s.b_blocked:
            e(f"s_mov_b32 m0, s{S['t']}\ns_nop 0")
            for i in range(2):
                e(f"buffer_load_dwordx4 v{R['vB']}, s[{s.srdB}:{s.srdB+3}], s{S['sB']} offen offset:{i*1024} lds")
        else:
            for i in range(2):
                e(f"s_add_u32 m0, s{S['t']}, {i*1024}\ns_nop 0")
                e(f"buffer_load_dwordx4 v{R['vB']+i}, s[{s.srdB}:{s.srdB+3}], s{S['sB']} offen lds")
        e(f"s_add_u32 s{S['sA']}, s{S['sA']}, {s.a_step}\ns_add_u32 s{S['sB']}, s{S['sB']}, {s.b_step}")
        e(f"s_add_u32 s{S['wr']}, s{S['wr']}, {STG}\ns_cmp_eq_u32 s{S['wr']}, {s.base+s.NS*STG}\ns_cselect_b32 s{S['wr']}, {s.base}, s{S['wr']}")
    def loader(s, nst, cnt, hooks=None):
        k=s.k; e=k.e; NS=s.NS; hooks=hooks or {}
        LST=os.environ.get('LDST')
        if LST=='1': k.stamp_mid(0)
        s.dma(); s.dma()
        if LST=='1': k.stamp_mid(1)
        e(f"s_waitcnt vmcnt({s.NDMA})")
        if LST=='2': k.stamp_mid(0)
        e("s_barrier")
        if LST=='2': k.stamp_mid(1)
        issued=2; st=0
        while issued < st+NS-1:
            n=min(2, st+NS-1-issued)
            for _ in range(n): s.dma()
            issued+=n
            if issued < st+NS-1:
                e(f"s_waitcnt vmcnt({(issued-(st+2))*s.NDMA})\ns_barrier")
                st+=1
        nloop=nst-(NS-1)-st
        L=k.lab("LD")
        e(f"s_mov_b32 s{cnt}, {nloop}")
        e(f"{L}:")
        e(f"s_waitcnt vmcnt({(NS-3)*s.NDMA})\ns_barrier")
        s.dma()
        e(f"s_sub_u32 s{cnt}, s{cnt}, 1\ns_cmp_lg_u32 s{cnt}, 0\ns_cbranch_scc1 {L}")
        extra=0
        for t in range(st+nloop, nst-1):
            rem = (nst-1)-(t+1)
            e(f"s_waitcnt vmcnt({rem*s.NDMA+extra})\ns_barrier")
            if t in hooks:
                fn,n=hooks[t]; fn(); extra+=n
        return extra
    def reads(s, ks, buf):
        e=s.k.e; R=s.R
        T=R['T']+4*buf; W=R['W']+8*buf
        e(f"ds_read_b128 v[{T}:{T+3}], v{R['vT']+ks}")
        for f in range(2):
            for t in range(2):
                e(f"ds_read_b64_tr_b16 v[{W+4*f+2*t}:{W+4*f+2*t+1}], v{R['vW']+f} offset:{ks*2048+t*512}")
    def mfmas(s, buf):
        e=s.k.e; R=s.R
        T=R['T']+4*buf; W=R['W']+8*buf
        for f in range(2):
            a=R['acc']+16*f
            e(f"v_mfma_f32_32x32x16_bf16 v[{a}:{a+15}], v[{W+4*f}:{W+4*f+3}], v[{T}:{T+3}], v[{a}:{a+15}]")
    def advance_read(s):
        e=s.k.e; R=s.R; S=s.S
        e(f"s_add_u32 s{S['t']}, s{S['rd']}, {STG}\ns_cmp_eq_u32 s{S['t']}, {s.base+s.NS*STG}\ns_cselect_b32 s{S['t']}, {s.base}, s{S['t']}")
        e(f"s_sub_u32 s{S['inc']}, s{S['t']}, s{S['rd']}\ns_mov_b32 s{S['rd']}, s{S['t']}")
        for i in range(4): e(f"v_add_u32 v{R['vT']+i}, s{S['inc']}, v{R['vT']+i}")
        for i in range(2): e(f"v_add_u32 v{R['vW']+i}, s{S['inc']}, v{R['vW']+i}")
    def cstage(s, last=False):
        e=s.k.e
        for ks in range(4):
            if ks==2:
                if not last:
                    e("s_barrier")
                    s.advance_read()
            if ks<2: s.reads(ks+2,ks+2); e("s_waitcnt lgkmcnt(10)")
            elif not last: s.reads(ks-2,ks-2); e("s_waitcnt lgkmcnt(10)")
            else: e(f"s_waitcnt lgkmcnt({5 if ks==2 else 0})")
            s.mfmas(ks)
    def consumer(s, nst, cnt, stamp=None):
        k=s.k; e=k.e
        e("s_barrier")
        if stamp is not None and STAMP:
            k.stamp_mid(stamp); e('s_waitcnt lgkmcnt(0)')
        s.reads(0,0); s.reads(1,1)
        L=k.lab("CS")
        e(f"s_mov_b32 s{cnt}, {nst-1}")
        e(f"{L}:")
        s.cstage()
        e(f"s_sub_u32 s{cnt}, s{cnt}, 1\ns_cmp_lg_u32 s{cnt}, 0\ns_cbranch_scc1 {L}")
        s.cstage(last=True)
```

```python
from base import *
from gemm128 import *
import os
VAR=os.environ.get('K1VAR','')

QSCALE = (32**-0.5)*1.4426950408889634

def gen_k1():
    k=Kern("k1_q_attn_kernel", 256, 512, 163840, vgpr=204, sgpr=96)
    e=k.e
    END=k.lab("END")
    R=dict(vA=4,vB=8,vT=10,vW=14,T=16,W=80,acc=40)
    S=dict(w=33,sA=40,sB=41,wr=42,rd=43,inc=44,wA=45,wB=46,t=47)
    Q=72; SS=80; P=112; O=120; Lr=136; KF=140; V0=148; V1=152; SEL=156; AK=160; AV0=162; AV1=163; ONES=164
    VO=168; VCR=169; VWD=170; WDR=172; CSV=8; CSACC=16; CSF=44
    QX=147456; CST=131072; CSS=CST+4*7168; DUM=CSS+1792+256
    e(f"s_cmp_ge_u32 s2, 256\ns_cbranch_scc1 {END}")
    k.stamp_begin()
    k.load_ptr(8,'wq'); k.load_ptr(28,'ws'); k.load_ptr(20,'wg'); k.load_ptr(22,'wu'); k.load_ptr(48,'wo'); k.load_ptr(52,'wd')
    e("v_lshrrev_b32 v1, 6, v0\nv_and_b32 v2, 63, v0")
    e("s_and_b32 s30, s2, 7\ns_lshr_b32 s31, s2, 3")
    e("s_and_b32 s32, s31, 1\ns_lshl_b32 s30, s30, 1\ns_add_u32 s34, s30, s32")
    e("s_lshr_b32 s35, s31, 1")
    e("v_readfirstlane_b32 s58, v1")
    e("v_lshlrev_b32 v3, 4, v2")
    e("s_and_b32 s33, s58, 3")
    e("s_lshl_b32 s36, s34, 18\ns_lshl_b32 s37, s35, 7")
    e("s_lshl_b32 s38, s33, 13")
    g=G128(k,R,S,4,8,6,0,128,64*2048,False)
    LCONS=k.lab("CONS"); LJ=k.lab("JOIN")
    e(f"s_cmp_lt_u32 s58, 4\ns_cbranch_scc1 {LCONS} ; @alt")
    def kv_dma(c):
        for gi in range(2):
            e(f"s_add_u32 s47, s38, {c*32768+gi*4096}")
            e(f"s_add_u32 m0, s38, {((c+3)&3)*32768+gi*4096}\ns_nop 0")
            for i in range(4):
                e(f"buffer_load_dwordx4 v3, s[12:15], s47 offen offset:{i*1024} lds")
    g.setup_loader(2, 60, 2048, 2048, 36, 37)
    e("s_waitcnt lgkmcnt(0)")
    k.srd(8, 2*MB)
    k.srd(4, 4*MB, src=28, add=WS_XN); k.srd(12, 64*4096, src=28, add=WS_KV); k.srd(16, 4*MB, src=28, add=WS_O)
    g.loader(16, 39, hooks={12:(lambda:kv_dma(0),8), 14:(lambda:kv_dma(1),8)})
    e("s_waitcnt vmcnt(8)\ns_barrier")
    e(f"s_lshl_b32 s47, s33, 11\ns_add_u32 s47, s47, {QX}\nv_add_u32 v4, s47, v3")
    e(f"ds_read_b128 v[{Q}:{Q+3}], v4\nds_read_b128 v[{Q+4}:{Q+7}], v4 offset:1024")
    kv_dma(2)
    e(f"s_branch {LJ}")
    e(f"{LCONS}:")
    g.setup_consumer(2, 60)
    e("s_waitcnt lgkmcnt(0)")
    k.srd(12, 64*4096, src=28, add=WS_KV); k.srd(16, 4*MB, src=28, add=WS_O)
    e("s_cmp_ge_u32 s2, 128\ns_cselect_b32 s20, s22, s20\ns_cselect_b32 s21, s23, s21")
    k.srd(20, 3584*1024*2); k.srd(48, 2*MB); k.srd(52, 3584*1024*2); k.srd(72, 3584*2048, src=28, add=WS_WDB)
    k.srd(24, 4*7168*4, src=28, add=WS_CS)
    g.consumer(16, 39, stamp=(1 if os.environ.get('K1ST')=='1' else None))
    e("s_and_b32 s30, s2, 3\ns_lshl_b32 s30, s30, 8\ns_lshl_b32 s31, s33, 6\ns_add_u32 s30, s30, s31\ns_mul_i32 s30, s30, 7168")
    e("s_bfe_u32 s31, s2, 0x50002\ns_mul_i32 s31, s31, 224\ns_add_u32 s30, s30, s31")
    for i in range(7):
        e(f"v_add_u32 v16, {64*i}, v2\nv_mul_u32_u24 v17, 4682, v16\nv_lshrrev_b32 v17, 16, v17\nv_mul_u32_u24 v18, 14, v17\nv_sub_u32 v18, v16, v18")
        e(f"v_mul_u32_u24 v17, 7168, v17\nv_lshl_add_u32 v17, v18, 4, v17\nv_add_u32 v{CSV+i}, s30, v17")
    e(f"s_mul_i32 s56, s33, 7168\ns_add_u32 s56, s56, {CST}")
    e(f"v_lshrrev_b32 v16, 2, v2\nv_mul_u32_u24 v16, 224, v16\nv_and_b32 v17, 3, v2\nv_lshl_add_u32 v16, v17, 3, v16\nv_add_u32 v{VCR}, s56, v16")
    for i in range(4): e(f"v_mov_b32 v{ONES+i}, 0x3f803f80")
    e("s_lshr_b32 s62, s2, 3\ns_lshl_b32 s62, s62, 16\ns_lshl_b32 s63, s33, 14\ns_add_u32 s62, s62, s63")
    e("s_lshl_b32 s63, s2, 2\ns_add_u32 s63, s63, s33\ns_and_b32 s30, s63, 63\ns_mul_i32 s30, s30, 56\ns_lshr_b32 s31, s63, 6\ns_lshl_b32 s31, s31, 7\ns_mul_i32 s63, s63, 7168")
    e(f"v_lshrrev_b32 v16, 3, v2\nv_add_u32 v16, s30, v16\nv_lshlrev_b32 v16, 11, v16\nv_add_u32 v16, s31, v16")
    e(f"v_bfe_u32 v17, v2, 4, 1\nv_lshlrev_b32 v17, 2, v17\nv_and_b32 v18, 7, v2\nv_xor_b32 v17, v17, v18\nv_lshl_add_u32 v{VWD}, v17, 4, v16")
    e(f"v_mov_b32 v16, {hex(f2u(QSCALE))}")
    for i in range(32): e(f"v_mul_f32 v{R['acc']+i}, v{R['acc']+i}, v16")
    for i in range(8): e(f"v_cvt_pk_bf16_f32 v{Q+i}, v{R['acc']+2*i}, v{R['acc']+2*i+1}")
    for i in range(8): e(f"v_cvt_pk_bf16_f32 v{16+i}, v{R['acc']+16+2*i}, v{R['acc']+16+2*i+1}")
    e(f"s_lshl_b32 s47, s33, 11\ns_add_u32 s47, s47, {QX}\nv_add_u32 v4, s47, v3")
    e(f"ds_write_b128 v4, v[16:19]\nds_write_b128 v4, v[20:23] offset:1024")
    e("s_waitcnt lgkmcnt(0)\ns_barrier")
    e(f"{LJ}:")
    k.stamp_mid(0)
    e("v_and_b32 v4, 31, v2\nv_bfe_u32 v5, v2, 2, 2\nv_lshrrev_b32 v6, 5, v2\nv_xor_b32 v5, v5, v6")
    e(f"v_lshlrev_b32 v4, 6, v4\nv_add_u32 v4, 98304, v4\nv_lshl_add_u32 v{AK}, v5, 4, v4\nv_xor_b32 v5, 2, v5\nv_lshl_add_u32 v{AK+1}, v5, 4, v4")
    e(f"v_mov_b32 v{AV0}, v{AK}\nv_mov_b32 v{AV1}, v{AK+1}")
    def rdK(tl):
        for m in range(2): e(f"ds_read_b128 v[{KF+4*m}:{KF+4*m+3}], v{AK+m} offset:{tl*4096}")
    def rdV0(tl): e(f"ds_read_b128 v[{V0}:{V0+3}], v{AV0} offset:{tl*4096+2048}")
    def rdV1(tl): e(f"ds_read_b128 v[{V1}:{V1+3}], v{AV1} offset:{tl*4096+2048}")
    rdK(0); rdV0(0)
    e("v_bfe_u32 v4, v2, 2, 1\nv_bfe_u32 v5, v2, 4, 1\nv_xor_b32 v4, v4, v5\nv_and_b32 v5, 3, v2\nv_or_b32 v4, v4, v5")
    e("v_mov_b32 v5, 0x3f803f80\nv_cmp_eq_u32 vcc, 0, v4\ns_nop 1")
    e(f"v_cndmask_b32 v{SEL}, 0, v5, vcc")
    for i in range(1,4): e(f"v_mov_b32 v{SEL+i}, v{SEL}")
    e(f"s_lshl_b32 s47, s34, 2\ns_add_u32 s47, s47, s33\ns_lshl_b32 s47, s47, 6\ns_lshr_b32 s30, s58, 2\ns_lshl_b32 s31, s35, 1\ns_add_u32 s30, s30, s31\ns_lshl_b32 s30, s30, 1\ns_add_u32 s47, s47, s30\ns_lshl_b32 s47, s47, 10")
    e(f"v_add_u32 v{VO}, s47, v3")
    for i in range(16): e(f"v_mov_b32 v{O+i}, 0")
    for i in range(4): e(f"v_mov_b32 v{Lr+i}, 0\nv_mov_b32 v{P+4+i}, 0\nv_mov_b32 v{V1+i}, 0")
    e("s_waitcnt lgkmcnt(0)")
    def mf(d,a,b,c=None):
        cs = c if c else f"v[{d}:{d+15}]"
        e(f"v_mfma_f32_32x32x16_bf16 v[{d}:{d+15}], v[{a}:{a+3}], v[{b}:{b+3}], {cs}")
    def rs(b): e(f"v_mfma_f32_16x16x32_bf16 v[{Lr}:{Lr+3}], v[{SEL}:{SEL+3}], v[{b}:{b+3}], v[{Lr}:{Lr+3}]")
    mf(SS,KF,Q,"0"); mf(SS,KF+4,Q+4)
    rdK(1)
    e("s_waitcnt lgkmcnt(0)")
    k.nop(10)
    PAT="W3 E0 E1 PV1p RV1 E2 E3 C0 E4 W2 QK0 E5 C1 E6 E7 RS1p C2 E8 QK1 RK C3 E9 E10 E11 W3 PV0 RV0 C4 E12 E13 C5 RS0 E14 E15 C6 C7".split()
    def slot(tl):
        par=tl&1
        Sc=SS+16*par; Sn=SS+16*(1-par)
        for t in PAT:
            if t[0]=='E': i=int(t[1:]); e(f"v_exp_f32 v{Sc+i}, v{Sc+i}")
            elif t[0]=='C': i=int(t[1:]); e(f"v_cvt_pk_bf16_f32 v{P+i}, v{Sc+2*i}, v{Sc+2*i+1}")
            elif t[0]=='W':
                if 'nowait' not in VAR: e(f"s_waitcnt lgkmcnt({t[1]})")
            elif t=='QK0': mf(Sn,KF,Q,"0")
            elif t=='QK1': mf(Sn,KF+4,Q+4)
            elif t=='PV0': mf(O,V0,P)
            elif t=='PV1p': mf(O,V1,P+4)
            elif t=='RS0': rs(P)
            elif t=='RS1p': rs(P+4)
            elif 'noread' in VAR: pass
            elif t=='RV1': rdV1(tl)
            elif t=='RK': rdK((tl+2)&7)
            elif t=='RV0': rdV0((tl+1)&7)
    LT0=k.lab("T0"); LT6=k.lab("T6"); LX=k.lab("X"); LG1=k.lab("G1")
    e("s_mov_b32 s39, 0")
    e(f"s_branch {LT0}")
    e(f"{LT6}:")
    e(f"v_add_u32 v{AK}, s59, v{AK}\nv_add_u32 v{AK+1}, s59, v{AK+1}")
    slot(6)
    e(f"v_add_u32 v{AV0}, s59, v{AV0}")
    slot(7)
    e(f"v_add_u32 v{AV1}, s59, v{AV1}")
    e(f"s_cmp_eq_u32 s39, 8\ns_cbranch_scc1 {LX} ; @exit")
    e(f"{LT0}:")
    slot(0); slot(1)
    LMR=k.lab("MR"); MID=[k.lab(f"MID{c}") for c in range(8)]; LMD=k.lab("MD")
    e(f"s_cmp_lt_u32 s58, 4\ns_cbranch_scc1 {LMD} ; @alt")
    e(f"{LMR}:")
    for tl in range(2,6): slot(tl)
    e("s_and_b32 s47, s39, 3\ns_mov_b32 s59, 0xfffe8000\ns_cmp_eq_u32 s47, 0\ns_cselect_b32 s59, s59, 0x8000")
    e(f"s_cmp_ge_u32 s58, 4\ns_cbranch_scc1 {LG1} ; @g1")
    LNB=k.lab("NB")
    e(f"s_cmp_eq_u32 s39, 7\ns_cbranch_scc1 {LNB}")
    e("s_barrier")
    e(f"{LNB}:")
    e(f"s_add_u32 s39, s39, 1\ns_branch {LT6}")
    e(f"{LG1}:")
    LG1a=k.lab("G1a"); LG1b=k.lab("G1b"); LG1c=k.lab("G1c")
    e(f"s_cmp_ge_u32 s39, 6\ns_cbranch_scc1 {LG1a}")
    e("s_waitcnt vmcnt(8)\ns_barrier")
    e(f"s_cmp_ge_u32 s39, 5\ns_cbranch_scc1 {LG1c}")
    e("s_add_u32 s30, s39, 3\ns_lshl_b32 s31, s30, 15\ns_add_u32 s30, s30, 3\ns_and_b32 s30, s30, 3\ns_lshl_b32 s30, s30, 15\ns_add_u32 s30, s30, s38\ns_add_u32 s31, s31, s38")
    for gi in range(2):
        e(f"s_add_u32 m0, s30, {gi*4096}\ns_add_u32 s47, s31, {gi*4096}")
        for i in range(4):
            e(f"buffer_load_dwordx4 v3, s[12:15], s47 offen offset:{i*1024} lds")
    e(f"s_branch {LG1c}")
    e(f"{LG1a}:")
    e(f"s_cmp_eq_u32 s39, 7\ns_cbranch_scc1 {LG1c}")
    e("s_waitcnt vmcnt(0)\ns_barrier")
    e(f"{LG1c}:")
    e(f"s_add_u32 s39, s39, 1\ns_branch {LT6}")
    def cs_dma(r):
        e(f"s_mov_b32 s30, {r*32*7168}")
        for i in range(7):
            e(f"s_add_u32 m0, s56, {i*1024}\ns_nop 0")
            e(f"buffer_load_dwordx4 v{CSV+i}, s[20:23], s30 offen lds")
    def cs_mfma(r):
        for v in range(7):
            for t in range(2):
                e(f"ds_read_b64_tr_b16 v[{CSF+4*v+2*t}:{CSF+4*v+2*t+1}], v{VCR} offset:{v*32+t*3584}")
        e("s_waitcnt lgkmcnt(0)")
        for v in range(7):
            a=CSACC+4*v
            c="0" if r==0 else f"v[{a}:{a+3}]"
            e(f"v_mfma_f32_16x16x32_bf16 v[{a}:{a+3}], v[{CSF+4*v}:{CSF+4*v+3}], v[{ONES}:{ONES+3}], {c}")
    def prefetch(srd, base_s, first, n):
        e(f"s_mov_b32 m0, {DUM}")
        for i in range(n):
            e(f"s_add_u32 s47, s{base_s}, {(first+i)*1024}")
            e(f"buffer_load_dwordx4 v3, s[{srd}:{srd+3}], s47 offen lds")
    side='noside' not in VAR
    e(f"{LMD}:")
    if side:
        for c in (1,3,4,5,6,7):
            e(f"s_cmp_eq_u32 s39, {c}\ns_cbranch_scc1 {MID[c]}")
    e(f"s_branch {LMR}")
    for c in (1,3,4,5,6,7):
        if not side: break
        e(f"{MID[c]}:")
        if c==1: cs_dma(0)
        if c==3:
            e("s_waitcnt vmcnt(0)"); cs_mfma(0); cs_dma(1)
        if c==4:
            for i in range(7):
                e(f"s_mov_b32 s30, {i*8*2048}\nbuffer_load_dwordx4 v[{WDR+4*i}:{WDR+4*i+3}], v{VWD}, s[52:55], s30 offen")
        if c==5:
            e("s_waitcnt vmcnt(7)"); cs_mfma(1)
            e(f"v_lshrrev_b32 v4, 4, v2\nv_lshlrev_b32 v4, 4, v4\ns_mul_i32 s30, s33, 448\ns_add_u32 s30, s30, {CSS}\nv_add_u32 v4, s30, v4")
            e("v_and_b32 v5, 15, v2\nv_cmp_eq_u32 vcc, 0, v5\ns_and_saveexec_b64 s[66:67], vcc")
            k.nop(2)
            for v in range(7): e(f"ds_write_b128 v4, v[{CSACC+4*v}:{CSACC+4*v+3}] offset:{v*64}")
            e("s_mov_b64 exec, s[66:67]\ns_waitcnt lgkmcnt(0)")
        if c==6:
            e("s_waitcnt vmcnt(0)")
            for i in range(7):
                e(f"s_add_u32 s30, s63, {i*1024}\nbuffer_store_dwordx4 v[{WDR+4*i}:{WDR+4*i+3}], v3, s[72:75], s30 offen {os.environ.get('WDST','')}")
            LS=k.lab("CSS")
            e("v_cmp_gt_u32 vcc, 112, v0\ns_and_saveexec_b64 s[66:67], vcc")
            e(f"s_cbranch_execz {LS}")
            e(f"v_lshlrev_b32 v4, 2, v0\nv_add_u32 v4, {CSS}, v4")
            for j in range(4): e(f"ds_read_b32 v{16+j}, v4 offset:{j*448}")
            e("s_and_b32 s30, s2, 3\ns_mul_i32 s30, s30, 28672\ns_lshr_b32 s31, s2, 7\ns_mul_i32 s31, s31, 14336\ns_add_u32 s30, s30, s31")
            e("s_bfe_u32 s31, s2, 0x50002\ns_mul_i32 s31, s31, 448\ns_add_u32 s30, s30, s31")
            e("v_lshlrev_b32 v4, 2, v0\ns_waitcnt lgkmcnt(0)")
            e("v_add_f32 v16, v16, v17\nv_add_f32 v18, v18, v19\nv_add_f32 v16, v16, v18")
            e("buffer_store_dword v16, v4, s[24:27], s30 offen")
            e(f"{LS}:\ns_mov_b64 exec, s[66:67]")
            prefetch(48,62,0,8)
        if c==7: prefetch(48,62,8,8)
        e(f"s_branch {LMR}")
    e(f"{LX}:")
    if os.environ.get('K1ST')!='1': k.stamp_mid(1)
    e("s_waitcnt lgkmcnt(0)")
    mf(O,V1,P+4); rs(P+4)
    k.nop(12)
    LFB=k.lab("FB"); LFIN=k.lab("FIN")
    e(f"v_mov_b32 v8, 0")
    for i in range(16): e(f"v_fmac_f32 v8, 0, v{O+i}")
    e(f"v_mov_b32 v9, {hex(f2u(2.0**-60))}\nv_mov_b32 v10, {hex(f2u(2.0**60))}")
    e(f"v_cmp_o_f32 s[64:65], v8, v8")
    e(f"v_cmp_le_f32 s[66:67], v9, v{Lr}")
    e(f"v_cmp_ge_f32 s[70:71], v10, v{Lr}")
    e("s_and_b64 s[64:65], s[64:65], s[66:67]\ns_and_b64 s[64:65], s[64:65], s[70:71]")
    e(f"s_cmp_eq_u64 s[64:65], exec\ns_cbranch_scc0 {LFB}")
    e(f"{LFIN}:")
    e(f"v_rcp_f32 v8, v{Lr}")
    e("s_nop 0")
    for i in range(16): e(f"v_mul_f32 v{O+i}, v{O+i}, v8")
    for i in range(8): e(f"v_cvt_pk_bf16_f32 v{16+i}, v{O+2*i}, v{O+2*i+1}")
    for j in range(2):
        e(f"buffer_store_dwordx4 v[{16+4*j}:{19+4*j}], v{VO}, s[16:19], 0 offen offset:{j*1024}")
    e("s_waitcnt vmcnt(0)")
    k.stamp_end(1)
    e("s_endpgm")
    e(f"{LFB}:")
    e("s_waitcnt vmcnt(0)")
    e("v_and_b32 v8, 31, v2\nv_bfe_u32 v9, v2, 2, 2\nv_lshrrev_b32 v10, 5, v2\nv_xor_b32 v9, v9, v10")
    e(f"v_lshlrev_b32 v8, 6, v8\nv_lshl_add_u32 v{AK}, v9, 4, v8\nv_xor_b32 v9, 2, v9\nv_lshl_add_u32 v{AK+1}, v9, 4, v8")
    e("v_mov_b32 v8, 0xff800000")
    F1=k.lab("F1"); F2=k.lab("F2")
    e(f"s_mov_b32 s47, 0\n{F1}:")
    for m in range(2): e(f"buffer_load_dwordx4 v[{KF+4*m}:{KF+4*m+3}], v{AK+m}, s[12:15], s47 offen")
    e("s_waitcnt vmcnt(0)")
    mf(SS,KF,Q,"0"); mf(SS,KF+4,Q+4)
    k.nop(12)
    for i in range(16): e(f"v_max_f32 v8, v8, v{SS+i}")
    e(f"s_add_u32 s47, s47, 4096\ns_cmp_lt_u32 s47, {64*4096}\ns_cbranch_scc1 {F1}")
    e("v_mov_b32 v10, v8\ns_nop 1\nv_permlane32_swap_b32 v8, v10\ns_nop 1\nv_max_f32 v8, v8, v10")
    for i in range(16): e(f"v_mov_b32 v{O+i}, 0")
    for i in range(4): e(f"v_mov_b32 v{Lr+i}, 0")
    e(f"s_mov_b32 s47, 0\n{F2}:")
    for m in range(2): e(f"buffer_load_dwordx4 v[{KF+4*m}:{KF+4*m+3}], v{AK+m}, s[12:15], s47 offen")
    e(f"buffer_load_dwordx4 v[{V0}:{V0+3}], v{AK}, s[12:15], s47 offen offset:2048")
    e(f"buffer_load_dwordx4 v[{V1}:{V1+3}], v{AK+1}, s[12:15], s47 offen offset:2048")
    e("s_waitcnt vmcnt(0)")
    mf(SS,KF,Q,"0"); mf(SS,KF+4,Q+4)
    k.nop(12)
    for i in range(16): e(f"v_sub_f32 v{SS+i}, v{SS+i}, v8")
    for i in range(16): e(f"v_exp_f32 v{SS+i}, v{SS+i}")
    e("s_nop 0")
    for i in range(8): e(f"v_cvt_pk_bf16_f32 v{P+i}, v{SS+2*i}, v{SS+2*i+1}")
    e("s_nop 1")
    mf(O,V0,P); mf(O,V1,P+4); rs(P); rs(P+4)
    k.nop(12)
    e(f"s_add_u32 s47, s47, 4096\ns_cmp_lt_u32 s47, {64*4096}\ns_cbranch_scc1 {F2}")
    e(f"s_branch {LFIN}")
    e(f"{END}:")
    e("s_endpgm")
    return k
```

```python
from base import *
from gda import *
import os

def common(name, kidx, nst, NS):
    k=Kern(name, 256, 512, NS*BST, vgpr=208, sgpr=80)
    return k

def h_addr(k, vdst, t, s_m, s_n, s_w):
    e=k.e
    e(f"s_lshr_b32 s30, s{s_m}, 1\ns_lshl_b32 s30, s30, 5\ns_lshl_b32 s31, s{s_n}, 1\ns_add_u32 s30, s30, s31\ns_lshl_b32 s30, s30, 14")
    e(f"s_and_b32 s31, s{s_m}, 1\ns_lshl_b32 s31, s31, 13\ns_add_u32 s30, s30, s31\ns_lshl_b32 s31, s{s_w}, 11\ns_add_u32 s30, s30, s31")
    e(f"v_and_b32 v{t}, 31, v2\nv_lshlrev_b32 v{t}, 6, v{t}\nv_add_u32 v{t}, s30, v{t}")
    e(f"v_lshrrev_b32 v{t+1}, 5, v2\nv_lshl_add_u32 v{t}, v{t+1}, 3, v{t}")
    e(f"v_bfe_u32 v{t+2}, v2, 2, 1\nv_mul_u32_u24 v{t+2}, 48, v{t+2}\nv_add_u32 v{vdst}, v{t}, v{t+2}")
    for g in range(1,4): e(f"v_xor_b32 v{vdst+g}, {16*g}, v{vdst}")

def gen_gemm(kind):
    isWo = kind=='wo'
    nst = 16 if isWo else 56
    NS=10
    name = "k2_wo_kernel" if isWo else "k4_down_kernel"
    kidx = 2 if isWo else 4
    k=common(name,kidx,nst,NS); e=k.e
    END=k.lab("END")
    R=dict(vA=4,vB=8,vW=14,AF=128,W=96,acc=40)
    S=dict(w=33,sA=40,sB=41,wr=42,rd=43,inc=44,wB=46,t=47,big=52,st=53,ea=54)
    RES=72; VH=88; VOUT=92; VST=93
    e(f"s_cmp_ge_u32 s2, 256\ns_cbranch_scc1 {END}")
    k.stamp_begin()
    k.load_ptr(28,'ws')
    if isWo: k.load_ptr(8,'wo')
    k.load_ptr(20,'x' if isWo else 'out')
    e("v_lshrrev_b32 v1, 6, v0\nv_and_b32 v2, 63, v0")
    e("s_and_b32 s30, s2, 7\ns_lshr_b32 s31, s2, 3")
    if isWo:
        e("s_and_b32 s32, s31, 1\ns_lshl_b32 s30, s30, 1\ns_add_u32 s34, s30, s32\ns_lshr_b32 s35, s31, 1")
    else:
        e("s_lshr_b32 s32, s30, 1\ns_lshl_b32 s32, s32, 2\ns_and_b32 s34, s31, 3\ns_add_u32 s34, s34, s32")
        e("s_and_b32 s32, s30, 1\ns_lshl_b32 s32, s32, 3\ns_lshr_b32 s35, s31, 2\ns_add_u32 s35, s35, s32")
    e("v_readfirstlane_b32 s58, v1")
    e("s_lshl_b32 s37, s35, 7")
    if not isWo: e(f"s_mul_i32 s38, s35, {3584*128}")
    NKS=64 if isWo else 224
    e("s_and_b32 s33, s58, 3")
    if isWo: g=GDA(k,R,S,4,8,NS,nst,False,64*2048,True)
    else:    g=GDA(k,R,S,4,8,NS,nst,True,8192,False)
    LCONS=k.lab("CONS")
    e(f"s_cmp_lt_u32 s58, 4\ns_cbranch_scc1 {LCONS} ; @alt")
    g.setup_loader(2, 60, 2048, 37 if isWo else 38)
    e("s_waitcnt lgkmcnt(0)")
    if isWo: k.srd(8, 2*MB)
    else:    k.srd(8, 3584*2048, src=28, add=WS_WDB)
    g.loader(39)
    if os.environ.get('LDST'): k.stamp_end(kidx, 256)
    e("s_endpgm")
    e(f"{LCONS}:")
    h_addr(k, VH, 60, 34, 35, 33)
    e(f"s_lshl_b32 s30, s34, 7\ns_lshl_b32 s31, s33, 5\ns_add_u32 s30, s30, s31\nv_and_b32 v60, 31, v2\nv_add_u32 v61, s30, v60\nv_lshlrev_b32 v60, 11, v61")
    e(f"v_lshrrev_b32 v62, 5, v2\nv_lshl_add_u32 v60, v62, 5, v60\nv_add_u32 v{VOUT}, s37, v60")
    e("s_mov_b32 s48, 16384")
    if isWo: e(f"v_lshlrev_b32 v61, 3, v61\ns_lshl_b32 s30, s35, 14\nv_add_u32 v{VST}, s30, v61")
    e(f"s_lshl_b32 s36, s34, 2\ns_add_u32 s36, s36, s33\ns_mul_i32 s36, s36, {NKS*1024}")
    g.setup_consumer(2, 60, 36)
    e("s_waitcnt lgkmcnt(0)")
    if isWo: k.srd(4, 4*MB, src=28, add=WS_O)
    else:    k.srd(4, 2048*3584*2, src=28, add=WS_ACT)
    k.srd(12, 4*MB, src=28, add=WS_H)
    k.srd(20, 4*MB)
    if isWo: k.srd(16, 2048*128, src=28, add=WS_ST)
    def res_loads():
        if isWo:
            for f in range(2):
                for j in range(2):
                    e(f"buffer_load_dwordx4 v[{RES+8*f+4*j}:{RES+8*f+4*j+3}], v{VOUT}, s[20:23], 0 offen offset:{f*64+j*16}")
        else:
            for f in range(2):
                so = "0" if f==0 else "s48"
                for g4 in range(4):
                    e(f"buffer_load_dwordx2 v[{RES+8*f+2*g4}:{RES+8*f+2*g4+1}], v{VH+g4}, s[12:15], {so} offen")
    g.a_prologue()
    g.consumer(39, stamp=0, res_hook=res_loads, nres=4 if isWo else 8)
    k.stamp_mid(1)
    A=R['acc']
    e("s_waitcnt vmcnt(0)")
    for f in range(2):
        for j in range(8):
            e(f"v_lshlrev_b32 v{16+2*j}, 16, v{RES+8*f+j}\nv_and_b32 v{17+2*j}, 0xffff0000, v{RES+8*f+j}")
        if f==0: k.nop(2)
        for i in range(16): e(f"v_add_f32 v{A+16*f+i}, v{A+16*f+i}, v{16+i}")
    for f in range(2):
        for j in range(8): e(f"v_cvt_pk_bf16_f32 v{RES+8*f+j}, v{A+16*f+2*j}, v{A+16*f+2*j+1}")
    if isWo:
        for f in range(2):
            so = "0" if f==0 else "s48"
            for g4 in range(4):
                e(f"buffer_store_dwordx2 v[{RES+8*f+2*g4}:{RES+8*f+2*g4+1}], v{VH+g4}, s[12:15], {so} offen")
        e(f"v_add_f32 v16, v{A}, v{A+1}")
        for i in range(2,32): e(f"v_add_f32 v16, v16, v{A+i}")
        e("v_mov_b32 v17, v16\ns_nop 1\nv_permlane32_swap_b32 v16, v17\ns_nop 1\nv_add_f32 v16, v16, v17")
        e(f"v_mul_f32 v18, {hex(f2u(1/64.))}, v16")
        for i in range(32): e(f"v_sub_f32 v{A+i}, v{A+i}, v18")
        e(f"v_mul_f32 v17, v{A}, v{A}")
        for i in range(1,32): e(f"v_fmac_f32 v17, v{A+i}, v{A+i}")
        e("v_mov_b32 v19, v17\ns_nop 1\nv_permlane32_swap_b32 v17, v19\ns_nop 1\nv_add_f32 v17, v17, v19")
        e("v_cmp_gt_u32 vcc, 32, v2\ns_and_saveexec_b64 s[50:51], vcc")
        e(f"buffer_store_dwordx2 v[16:17], v{VST}, s[16:19], 0 offen")
        e("s_mov_b64 exec, s[50:51]")
    else:
        for f in range(2):
            for j in range(2):
                e(f"buffer_store_dwordx4 v[{RES+8*f+4*j}:{RES+8*f+4*j+3}], v{VOUT}, s[20:23], 0 offen offset:{f*64+j*16}")
    e("s_waitcnt vmcnt(0)")
    if not os.environ.get('LDST'): k.stamp_end(kidx)
    e(f"{END}:")
    e("s_endpgm")
    return k
def gen_k2(): return gen_gemm('wo')
def gen_k4(): return gen_gemm('down')
```

```python
from base import *
import os, math
VAR=os.environ.get('K3VAR','')
SLOT=30720; NS=5
ST_OFF=NS*SLOT
CS_OFF=ST_OFF+4096
C0=-2.0*1.4426950408889634*math.sqrt(2.0/math.pi)
C1=C0*0.044715

def gen_k3():
    k=Kern("k3_gateup_kernel", 256, 256, CS_OFF+1024, vgpr=256, agpr=88, sgpr=96)
    e=k.e
    END=k.lab("END")
    ACC=32; TB=0; WB=32
    def acc(v,tf): return ACC+4*(4*v+tf)
    e(f"s_cmp_ge_u32 s2, 256\ns_cbranch_scc1 {END}")
    k.stamp_begin()
    k.load_ptr(28,'ws'); k.load_ptr(8,'wg'); k.load_ptr(10,'wu')
    e("v_lshrrev_b32 v1, 6, v0\nv_and_b32 v2, 63, v0")
    e("s_and_b32 s30, s2, 7\ns_lshr_b32 s31, s2, 3")
    e("s_and_b32 s32, s30, 1\ns_lshl_b32 s32, s32, 2\ns_and_b32 s34, s31, 3\ns_add_u32 s34, s34, s32")
    e("s_lshr_b32 s32, s30, 1\ns_lshl_b32 s32, s32, 3\ns_lshr_b32 s35, s31, 2\ns_add_u32 s35, s35, s32")
    e("v_readfirstlane_b32 s33, v1")
    e("s_lshl_b32 s36, s34, 11\nv_lshlrev_b32 v3, 3, v0")
    e("v_min_u32 v11, 223, v0\nv_cmp_le_u32 vcc, 112, v11")
    e("v_mov_b32 v13, 3472\nv_mov_b32 v12, 0\nv_cndmask_b32 v12, v12, v13, vcc\nv_add_u32 v12, v12, v11\ns_mul_i32 s37, s35, 112\nv_add_u32 v12, s37, v12\nv_lshlrev_b32 v28, 2, v12")
    e("s_lshl_b32 s40, s34, 19")
    e("s_lshl_b32 s37, s33, 12\nv_lshlrev_b32 v10, 4, v2\nv_add_u32 v4, s37, v10")
    e("s_and_b32 s37, s33, 1\ns_lshl_b32 s37, s37, 2\ns_mul_i32 s38, s35, 224")
    for i in range(4):
        e(f"s_add_u32 s39, s37, {i}\ns_min_u32 s39, s39, 6\ns_lshl_b32 s{52+i}, s39, 10\ns_lshl_b32 s39, s39, 6")
        e(f"v_add_u32 v10, s39, v2\nv_mul_u32_u24 v11, 4682, v10\nv_lshrrev_b32 v11, 16, v11\nv_mul_u32_u24 v12, 14, v11\nv_sub_u32 v12, v10, v12")
        e(f"v_mul_u32_u24 v11, 7168, v11\nv_lshl_add_u32 v11, v12, 4, v11\nv_add_u32 v{5+i}, s38, v11")
    e("s_lshr_b32 s39, s33, 1\ns_mul_i32 s39, s39, 7168\ns_add_u32 s39, s39, 16384")
    for i in range(4): e(f"s_add_u32 s{52+i}, s{52+i}, s39")
    e("s_lshl_b32 s56, s33, 12")
    e("s_mov_b32 s41, 0\ns_mov_b32 s42, 0\ns_mov_b32 s43, 0")
    e("s_mov_b32 s57, 0x7ff00000")
    e("v_mov_b32 v9, v4")
    e("v_lshrrev_b32 v10, 2, v2\nv_mul_u32_u24 v10, 224, v10\nv_and_b32 v11, 3, v2\nv_lshl_add_u32 v10, v11, 3, v10\nv_add_u32 v10, 16384, v10")
    e("s_waitcnt lgkmcnt(0)")
    e("s_cmp_ge_u32 s33, 2\ns_cselect_b32 s8, s10, s8\ns_cselect_b32 s9, s11, s9")
    k.srd(8, 1024*7168)
    k.srd(4, 4*MB, src=28, add=WS_H); k.srd(12, 2048*128, src=28, add=WS_ST); k.srd(16, 4*7168*4, src=28, add=WS_CS)
    k.srd(20, 2048*3584*2, src=28, add=WS_ACT)
    def dma_list():
        G=[]
        pre=["s_cmp_lt_u32 s43, 32","s_cselect_b32 s44, s40, s57","s_cselect_b32 s45, s41, s57","s_add_u32 m0, s42, s56"]
        G.append(pre+["s_add_u32 s43, s43, 1","buffer_load_dwordx4 v4, s[4:7], s44 offen lds"])
        for i in range(1,4): G.append([f"buffer_load_dwordx4 v4, s[4:7], s44 offen offset:{1024*i} lds"])
        for i in range(4):
            g=[f"s_add_u32 m0, s42, s{52+i}","s_nop 0",f"buffer_load_dwordx4 v{5+i}, s[8:11], s45 offen lds"]
            if i==3:
                g+=["s_add_u32 s40, s40, 16384",f"s_add_u32 s41, s41, {32*7168}",
                    f"s_add_u32 s42, s42, {SLOT}",f"s_cmp_eq_u32 s42, {NS*SLOT}","s_cselect_b32 s42, 0, s42"]
            G.append(g)
        return G
    for g in dma_list(): e("\n".join(g))
    for i in range(16):
        e(f"buffer_load_dwordx2 v[{32+2*i}:{33+2*i}], v3, s[12:15], s36 offen")
        if i<15: e("s_add_u32 s36, s36, 16384")
    for q in range(4):
        e(f"s_mov_b32 s38, {q*28672}\nbuffer_load_dword v{24+q}, v28, s[16:19], s38 offen")
    for g in dma_list(): e("\n".join(g))
    e("s_waitcnt vmcnt(8)")
    e("v_add_f32 v24, v24, v25\nv_add_f32 v26, v26, v27\nv_add_f32 v24, v24, v26")
    e(f"v_lshlrev_b32 v25, 2, v0\nv_add_u32 v25, {CS_OFF}, v25\nv_cmp_gt_u32 vcc, 224, v0\ns_and_saveexec_b64 s[48:49], vcc")
    e("ds_write_b32 v25, v24\ns_mov_b64 exec, s[48:49]")
    e("v_add_f32 v12, v32, v34")
    for j in range(2,16): e(f"v_add_f32 v12, v12, v{32+2*j}")
    e(f"v_mul_f32 v12, {hex(f2u(1/1024.))}, v12")
    e(f"v_mov_b32 v16, {hex(f2u(1/64.))}\nv_mov_b32 v17, {hex(f2u(64.))}\nv_add_f32 v14, v33, v35")
    for j in range(2,16): e(f"v_add_f32 v14, v14, v{33+2*j}")
    for j in range(16): e(f"v_fma_f32 v{32+2*j}, v{32+2*j}, v16, -v12")
    e("v_mul_f32 v13, v32, v32")
    for j in range(1,16): e(f"v_fmac_f32 v13, v{32+2*j}, v{32+2*j}")
    e("v_fmac_f32 v14, v13, v17")
    e(f"v_mov_b32 v16, {hex(f2u(1/1024.))}\nv_mov_b32 v17, {hex(f2u(1e-5))}\nv_fma_f32 v14, v14, v16, v17")
    e("v_rsq_f32 v15, v14\ns_nop 0")
    e("v_sub_f32 v20, 0, v12")
    e(f"v_mul_f32 v21, {hex(f2u(C0))}, v15")
    e(f"v_mul_f32 v22, v15, v15\nv_mul_f32 v22, v22, v15\nv_mul_f32 v22, {hex(f2u(C1))}, v22")
    e("v_mov_b32 v23, v14")
    e(f"v_lshlrev_b32 v13, 4, v0\nv_add_u32 v13, {ST_OFF}, v13\nds_write_b128 v13, v[20:23]")
    e("s_waitcnt lgkmcnt(0)\ns_barrier")
    def rdT(buf):
        return [f"ds_read_b128 a[{TB+16*buf+4*tf}:{TB+16*buf+4*tf+3}], v9 offset:{tf*1024}" for tf in range(4)]
    def rdW(v):
        off=(v%7)*32+(v//7)*7168
        return [f"ds_read_b64_tr_b16 a[{WB+4*v+2*t}:{WB+4*v+2*t+1}], v10 offset:{off+t*3584}" for t in range(2)]
    e("\n".join(rdT(0)))
    for v in range(14):
        e("\n".join(rdW(v)))
        if v==5: e("s_waitcnt lgkmcnt(4)")
    e(f"s_mov_b32 s46, {SLOT}\ns_mov_b32 s38, {SLOT}")
    if os.environ.get('K3ST')!='3': k.stamp_mid(0)
    e("s_waitcnt lgkmcnt(0)")
    def stage(par, first=False, ndma=1, X=8*(NS-3)):
        F={i:[] for i in range(56)}
        rd='nord' not in VAR; dm='nodma' not in VAR
        F[0].append("v_add_u32 v9, s38, v9")
        F[1].append("v_add_u32 v10, s38, v10")
        F[2].append(f"s_waitcnt vmcnt({X})")
        F[3].append("s_barrier")
        if rd:
            for v in range(14):
                a,b=rdW(v)
                F[4*v+3].append(a)
                if v<13: F[4*v+4].append(b)
                else: F[55].append(b)
            T=rdT(1-par)
            for q,gp in enumerate((5,6,9,10)): F[gp].append(T[q])
        F[22].append("s_waitcnt lgkmcnt(4)")
        F[54].append("s_waitcnt lgkmcnt(4)")
        def put(gaps_pre,gapsA,gapsB,gaps_post):
            F[gaps_pre[0]]+=["s_cmp_lt_u32 s43, 32","s_cselect_b32 s44, s40, s57"]
            F[gaps_pre[1]]+=["s_cselect_b32 s45, s41, s57","s_add_u32 m0, s42, s56"]
            for q,gp in enumerate(gapsA):
                F[gp].append(f"buffer_load_dwordx4 v4, s[4:7], s44 offen offset:{1024*q} lds" if q else "buffer_load_dwordx4 v4, s[4:7], s44 offen lds")
            for q,(gm,gp) in enumerate(gapsB):
                F[gm].append(f"s_add_u32 m0, s42, s{52+q}")
                F[gp].append(f"buffer_load_dwordx4 v{5+q}, s[8:11], s45 offen lds")
            F[gaps_post[0]]+=["s_add_u32 s43, s43, 1","s_add_u32 s40, s40, 16384"]
            F[gaps_post[1]]+=[f"s_add_u32 s41, s41, {32*7168}",f"s_add_u32 s42, s42, {SLOT}"]
            F[gaps_post[2]]+=[f"s_cmp_eq_u32 s42, {NS*SLOT}","s_cselect_b32 s42, 0, s42"]
        if dm:
            if ndma==1:
                put((13,14),(17,18,21,25),((26,29),(30,33),(34,37),(38,41)),(42,45,46))
            else:
                put((5,6),(9,10,12,13),((13,14),(14,16),(16,17),(17,18)),(20,21,24))
                put((25,26),(28,29,30,32),((32,33),(33,34),(34,36),(36,37)),(40,41,42))
        F[49]+=[f"s_add_u32 s37, s46, {SLOT}",f"s_cmp_eq_u32 s37, {NS*SLOT}"]
        F[50]+=["s_cselect_b32 s37, 0, s37","s_sub_u32 s38, s37, s46"]
        F[53]+=["s_mov_b32 s46, s37"]
        for i in range(56):
            v,tf=divmod(i,4)
            a=acc(v,tf)
            c="0" if first else f"v[{a}:{a+3}]"
            e(f"v_mfma_f32_16x16x32_bf16 v[{a}:{a+3}], a[{WB+4*v}:{WB+4*v+3}], a[{TB+16*par+4*tf}:{TB+16*par+4*tf+3}], {c}")
            for x in F[i]: e(x)
    stage(0, first=True, ndma=2, X=0)
    stage(1, ndma=2, X=8)
    e("s_mov_b32 s47, 15")
    L=k.lab("MAIN")
    e(f"{L}:")
    stage(0); stage(1)
    e(f"s_sub_u32 s47, s47, 1\ns_cmp_lg_u32 s47, 0\ns_cbranch_scc1 {L}")
    if os.environ.get('K3ST') in (None,'3'): k.stamp_mid(1)
    e("s_waitcnt lgkmcnt(0)")
    e(f"v_and_b32 v3, 15, v2\ns_lshl_b32 s37, s33, 10\nv_lshl_add_u32 v3, v3, 4, s37\nv_add_u32 v3, {ST_OFF}, v3")
    e(f"v_lshrrev_b32 v4, 4, v2\nv_lshlrev_b32 v4, 4, v4\nv_add_u32 v4, {CS_OFF}, v4")
    e("v_lshlrev_b32 v1, 4, v2")
    e("s_lshl_b32 s37, s34, 3\ns_lshl_b32 s38, s33, 1\ns_add_u32 s37, s37, s38\ns_mul_i32 s50, s37, 224\ns_mul_i32 s51, s35, 7\ns_add_u32 s50, s50, s51\ns_lshl_b32 s50, s50, 10")
    for tp in range(2):
        e(f"ds_read_b128 v[8:11], v3 offset:{(2*tp)*256}\nds_read_b128 v[12:15], v3 offset:{(2*tp+1)*256}")
        for v in range(7):
            if v==0 and tp==0: e(f"ds_read_b128 v[24:27], v4 offset:0\nds_read_b128 v[28:31], v4 offset:448")
            e(f"s_add_u32 s38, s50, {(tp*224+v)*1024}")
            e("s_waitcnt lgkmcnt(1)" if not (v==0) else "s_waitcnt lgkmcnt(0)")
            nv=(v+1)%7
            last=(v==6 and tp==1)
            G=[acc(v,2*tp+tt) for tt in range(2)]; U=[acc(7+v,2*tp+tt) for tt in range(2)]
            P0=[f"v[{8+4*tt}:{9+4*tt}]" for tt in range(2)]; P1=[f"v[{10+4*tt}:{11+4*tt}]" for tt in range(2)]
            gp=lambda tt,h: f"v[{G[tt]+2*h}:{G[tt]+2*h+1}]"
            up=lambda tt,h: f"v[{U[tt]+2*h}:{U[tt]+2*h+1}]"
            tm=lambda tt,h: f"v[{16+4*tt+2*h}:{17+4*tt+2*h}]"
            TH=[(tt,h) for tt in range(2) for h in range(2)]
            for tt,h in TH: e(f"v_pk_fma_f32 {gp(tt,h)}, v[{24+2*h}:{25+2*h}], {P0[tt]}, {gp(tt,h)} op_sel_hi:[1,0,1]")
            if not last: e(f"ds_read_b128 v[24:27], v4 offset:{nv*64}")
            for tt,h in TH: e(f"v_pk_mul_f32 {tm(tt,h)}, {gp(tt,h)}, {gp(tt,h)}")
            for tt,h in TH: e(f"v_pk_fma_f32 {tm(tt,h)}, {tm(tt,h)}, {P1[tt]}, {P0[tt]} op_sel:[0,0,1] op_sel_hi:[1,0,1]")
            for tt,h in TH: e(f"v_pk_mul_f32 {tm(tt,h)}, {tm(tt,h)}, {gp(tt,h)}")
            for c in range(8): e(f"v_exp_f32 v{16+c}, v{16+c}")
            e("s_waitcnt lgkmcnt(1)" if not last else "s_waitcnt lgkmcnt(0)")
            for tt,h in TH: e(f"v_pk_fma_f32 {up(tt,h)}, v[{28+2*h}:{29+2*h}], {P0[tt]}, {up(tt,h)} op_sel_hi:[1,0,1]")
            if not last: e(f"ds_read_b128 v[28:31], v4 offset:{448+nv*64}")
            for tt,h in TH: e(f"v_pk_fma_f32 {tm(tt,h)}, {tm(tt,h)}, {P1[tt]}, {P1[tt]} op_sel:[0,1,1] op_sel_hi:[1,1,1]")
            for c in range(8): e(f"v_rcp_f32 v{16+c}, v{16+c}")
            for tt,h in TH: e(f"v_pk_mul_f32 {up(tt,h)}, {up(tt,h)}, {gp(tt,h)}")
            for tt,h in TH: e(f"v_pk_mul_f32 {up(tt,h)}, {up(tt,h)}, {tm(tt,h)}")
            D=G[0]
            e(f"v_cvt_pk_bf16_f32 v{D}, v{U[0]}, v{U[0]+1}\nv_cvt_pk_bf16_f32 v{D+1}, v{U[0]+2}, v{U[0]+3}")
            e(f"v_cvt_pk_bf16_f32 v{D+2}, v{U[1]}, v{U[1]+1}\nv_cvt_pk_bf16_f32 v{D+3}, v{U[1]+2}, v{U[1]+3}")
            e("s_nop 1")
            e(f"v_permlane16_swap_b32 v{D}, v{D+2}\nv_permlane16_swap_b32 v{D+1}, v{D+3}")
            e(f"buffer_store_dwordx4 v[{D}:{D+3}], v1, s[20:23], s38 offen {os.environ.get('K3STF','sc1')}")
    if os.environ.get('K3ST')=='3': k.stamp_mid(0)
    e("s_waitcnt vmcnt(0)")
    k.stamp_end(3)
    e(f"{END}:")
    e("s_endpgm")
    return k
```

```python
from base import *
import os
BST=8192

class GDA:
    D=16
    def __init__(s,k,R,S,srdA,srdB,NS,nst,b_blocked,b_step,kperm,base=0):
        s.k=k; s.R=R; s.S=S; s.srdA=srdA; s.srdB=srdB; s.NS=NS; s.nst=nst
        s.b_blocked=b_blocked; s.b_step=b_step; s.kperm=kperm; s.base=base
    def setup_loader(s, vlane, tmp, ldb, s_b0):
        k=s.k; e=k.e; R=s.R; S=s.S; t0,t1,t2=tmp,tmp+1,tmp+2; w=S['w']
        if s.b_blocked:
            e(f"s_lshl_b32 s{S['t']}, s{w}, 11\ns_add_u32 s{S['t']}, s{S['t']}, s{s_b0}")
            e(f"v_lshlrev_b32 v{t0}, 4, v{vlane}\nv_add_u32 v{R['vB']}, s{S['t']}, v{t0}")
        else:
            e(f"v_lshrrev_b32 v{t0}, 3, v{vlane}\ns_lshl_b32 s{S['t']}, s{w}, 4\nv_add_u32 v{t0}, s{S['t']}, v{t0}")
            e(f"s_mov_b32 s{S['t']}, {ldb}\nv_mul_lo_u32 v{t0}, v{t0}, s{S['t']}\nv_add_u32 v{t0}, s{s_b0}, v{t0}")
            e(f"v_bfe_u32 v{t1}, v{vlane}, 4, 1\nv_lshlrev_b32 v{t1}, 2, v{t1}\nv_and_b32 v{t2}, 7, v{vlane}\nv_xor_b32 v{t1}, v{t1}, v{t2}")
            e(f"v_lshl_add_u32 v{R['vB']}, v{t1}, 4, v{t0}\nv_add_u32 v{R['vB']+1}, {8*ldb}, v{R['vB']}")
        e(f"s_lshl_b32 s{S['wB']}, s{w}, 11\ns_mov_b32 s{S['wr']}, {s.base}\ns_mov_b32 s{S['sB']}, 0")
    def dma(s):
        k=s.k; e=k.e; R=s.R; S=s.S
        if s.b_blocked:
            e(f"s_add_u32 m0, s{S['wr']}, s{S['wB']}\ns_nop 0")
            for i in range(2):
                e(f"buffer_load_dwordx4 v{R['vB']}, s[{s.srdB}:{s.srdB+3}], s{S['sB']} offen offset:{i*1024} lds")
        else:
            e(f"s_add_u32 s{S['t']}, s{S['wr']}, s{S['wB']}")
            for i in range(2):
                e(f"s_add_u32 m0, s{S['t']}, {i*1024}\ns_nop 0")
                e(f"buffer_load_dwordx4 v{R['vB']+i}, s[{s.srdB}:{s.srdB+3}], s{S['sB']} offen lds")
        e(f"s_add_u32 s{S['sB']}, s{S['sB']}, {s.b_step}")
        e(f"s_add_u32 s{S['wr']}, s{S['wr']}, {BST}\ns_cmp_eq_u32 s{S['wr']}, {s.base+s.NS*BST}\ns_cselect_b32 s{S['wr']}, {s.base}, s{S['wr']}")
    def loader(s, cnt, hooks=None):
        k=s.k; e=k.e; NS=s.NS; nst=s.nst
        for i in range(NS-1): s.dma()
        e(f"s_waitcnt vmcnt({(NS-2)*2})\ns_barrier")
        nloop=nst-(NS-1)
        L=k.lab("LD")
        e(f"s_mov_b32 s{cnt}, {nloop}\n{L}:")
        e(f"s_waitcnt vmcnt({(NS-3)*2})\ns_barrier")
        s.dma()
        e(f"s_sub_u32 s{cnt}, s{cnt}, 1\ns_cmp_lg_u32 s{cnt}, 0\ns_cbranch_scc1 {L}")
        extra=0; hooks=hooks or {}
        for t in range(nloop, nst-1):
            e(f"s_waitcnt vmcnt({((nst-1)-(t+1))*2+extra})\ns_barrier")
            if t in hooks:
                fn,n=hooks[t]; fn(); extra+=n
    def setup_consumer(s, vlane, tmp, s_a0):
        k=s.k; e=k.e; R=s.R; S=s.S; t0,t1,t2=tmp,tmp+1,tmp+2
        e(f"v_lshlrev_b32 v{R['vA']}, 4, v{vlane}\nv_add_u32 v{R['vA']}, s{s_a0}, v{R['vA']}")
        hs = 4 if s.kperm else 3
        e(f"v_lshrrev_b32 v{t0}, 5, v{vlane}\nv_lshlrev_b32 v{t0}, {hs}, v{t0}\nv_bfe_u32 v{t1}, v{vlane}, 2, 2\nv_add_u32 v{t0}, v{t0}, v{t1}\nv_lshlrev_b32 v{t0}, 7, v{t0}")
        e(f"v_and_b32 v{t1}, 1, v{vlane}\nv_lshlrev_b32 v{t1}, 1, v{t1}\nv_bfe_u32 v{t2}, v{vlane}, 4, 1\nv_add_u32 v{t1}, v{t1}, v{t2}")
        e(f"v_bfe_u32 v{t2}, v{vlane}, 3, 1\nv_lshlrev_b32 v{t2}, 2, v{t2}\nv_xor_b32 v{t1}, v{t1}, v{t2}")
        e(f"v_bfe_u32 v{t2}, v{vlane}, 1, 1\nv_lshlrev_b32 v{t2}, 3, v{t2}\nv_add_u32 v{t0}, v{t0}, v{t2}")
        if s.base: e(f"v_add_u32 v{t0}, {s.base}, v{t0}")
        e(f"v_lshl_add_u32 v{R['vW']}, v{t1}, 4, v{t0}")
        e(f"v_xor_b32 v{t1}, 4, v{t1}\nv_lshl_add_u32 v{R['vW']+1}, v{t1}, 4, v{t0}")
        e(f"s_mov_b32 s{S['rd']}, {s.base}\ns_mov_b32 s{S['sA']}, 0")
        for i in range(32): e(f"v_mov_b32 v{R['acc']+i}, 0")
    def aload(s, buf, ks, so):
        R=s.R; b=R['AF']+4*buf
        s.k.e(f"buffer_load_dwordx4 v[{b}:{b+3}], v{R['vA']}, s[{s.srdA}:{s.srdA+3}], s{so} offen offset:{ks*1024}")
    def a_prologue(s):
        e=s.k.e; S=s.S
        for st in range(4):
            for ks in range(4): s.aload(4*st+ks, ks, S['sA'])
            e(f"s_add_u32 s{S['sA']}, s{S['sA']}, 4096")
    def wreads(s, ks, buf):
        e=s.k.e; R=s.R; W=R['W']+8*buf
        row = (32*(ks>>1)+8*(ks&1)) if s.kperm else 16*ks
        for f in range(2):
            for t in range(2):
                e(f"ds_read_b64_tr_b16 v[{W+4*f+2*t}:{W+4*f+2*t+1}], v{R['vW']+f} offset:{(row+4*t)*128}")
    def advance_read(s):
        e=s.k.e; R=s.R; S=s.S
        e(f"s_add_u32 s{S['t']}, s{S['rd']}, {BST}\ns_cmp_eq_u32 s{S['t']}, {s.base+s.NS*BST}\ns_cselect_b32 s{S['t']}, {s.base}, s{S['t']}")
        e(f"s_sub_u32 s{S['inc']}, s{S['t']}, s{S['rd']}\ns_mov_b32 s{S['rd']}, s{S['t']}")
        for i in range(2): e(f"v_add_u32 v{R['vW']+i}, s{S['inc']}, v{R['vW']+i}")
    def cstage(s, p, tail=None, nres=0):
        e=s.k.e; R=s.R; S=s.S
        last = tail==3
        for ks in range(4):
            if ks==2 and not last:
                e("s_barrier"); s.advance_read()
            if ks<2: s.wreads(ks+2,ks+2); n=8
            elif not last: s.wreads(ks-2,ks-2); n=8
            else: n=4 if ks==2 else 0
            vm = 15 if tail is None else (15-4*tail-ks+nres)
            e(f"s_waitcnt vmcnt({vm}) lgkmcnt({n})")
            T=R['AF']+4*(4*p+ks); W=R['W']+8*ks
            for f in range(2):
                a=R['acc']+16*f
                e(f"v_mfma_f32_32x32x16_bf16 v[{a}:{a+15}], v[{W+4*f}:{W+4*f+3}], v[{T}:{T+3}], v[{a}:{a+15}]")
            if tail is None: s.aload(4*p+ks, ks, S['sA'])
        if tail is None: e(f"s_add_u32 s{S['sA']}, s{S['sA']}, 4096")
    def consumer(s, cnt, stamp=None, res_hook=None, nres=0):
        k=s.k; e=k.e
        e("s_barrier")
        if stamp is not None and STAMP:
            k.stamp_mid(stamp); e('s_waitcnt lgkmcnt(0)')
        s.wreads(0,0); s.wreads(1,1)
        assert s.nst%4==0
        L=k.lab("CS")
        e(f"s_mov_b32 s{cnt}, {s.nst//4-1}\n{L}:")
        for p in range(4): s.cstage(p)
        e(f"s_sub_u32 s{cnt}, s{cnt}, 1\ns_cmp_lg_u32 s{cnt}, 0\ns_cbranch_scc1 {L}")
        if res_hook: res_hook()
        for p in range(4): s.cstage(p, tail=p, nres=nres)
```

```python
from base import *
import os

def dpp_reduce(k, regs):
    seq=["row_shr:1 row_mask:0xf bank_mask:0xf","row_shr:2 row_mask:0xf bank_mask:0xf",
         "row_shr:4 row_mask:0xf bank_mask:0xf","row_shr:8 row_mask:0xf bank_mask:0xf",
         "row_bcast:15 row_mask:0xa bank_mask:0xf","row_bcast:31 row_mask:0xc bank_mask:0xf"]
    for s in seq:
        k.nop(max(0,2-(len(regs)-1)))
        for r in regs:
            k.e(f"v_add_f32_dpp v{r}, v{r}, v{r} {s}")

def gen_k0():
    XL=65536; XLS=2080; RED=XL+16*XLS; DUMMY=RED+2048
    k=Kern("k0_ln_kv_kernel", 256, 256, DUMMY+4096, vgpr=128, sgpr=64)
    e=k.e
    END=k.lab("END")
    e(f"s_cmp_ge_u32 s2, 256\ns_cbranch_scc1 {END}")
    k.stamp_begin()
    k.load_ptr(4,'x'); k.load_ptr(8,'wk'); k.load_ptr(12,'wv'); k.load_ptr(24,'wq'); k.load_ptr(28,'ws')
    e("v_lshrrev_b32 v1, 6, v0\nv_and_b32 v2, 63, v0")
    e("s_and_b32 s40, s2, 7\ns_lshr_b32 s41, s2, 3\ns_lshl_b32 s40, s40, 4\ns_lshr_b32 s42, s41, 1\ns_add_u32 s32, s40, s42\ns_and_b32 s43, s41, 1")
    e("v_readfirstlane_b32 s33, v1")
    e("v_lshlrev_b32 v3, 4, v2")
    e("v_lshrrev_b32 v4, 2, v2\nv_lshlrev_b32 v4, 6, v4\nv_lshrrev_b32 v5, 5, v2\nv_lshlrev_b32 v5, 1, v5\nv_and_b32 v6, 3, v2\nv_xor_b32 v5, v5, v6\nv_lshl_add_u32 v4, v5, 4, v4")
    e("s_waitcnt lgkmcnt(0)")
    e("s_cmp_eq_u32 s43, 1\ns_cselect_b32 s8, s12, s8\ns_cselect_b32 s9, s13, s9")
    k.srd(4, 2048*2048); k.srd(8, 65536); k.srd(24, 2*MB)
    k.srd(16, 4*MB, src=28, add=WS_XN) ; k.srd(20, 64*4096, src=28, add=WS_KV)
    e("s_lshl_b32 s40, s32, 4\ns_lshl_b32 s41, s33, 2\ns_add_u32 s40, s40, s41\ns_lshl_b32 s34, s40, 11")
    e("s_add_u32 s44, s34, 4096")
    for r in range(4):
        so = "s34" if r<2 else "s44"
        for j in range(2):
            e(f"buffer_load_dwordx4 v[{8+8*r+4*j}:{11+8*r+4*j}], v3, s[4:7], {so} offen offset:{(r&1)*2048+1024*j}")
    e("s_lshl_b32 s35, s33, 14")
    for g in range(4):
        e(f"s_add_u32 s36, s35, {g*4096}")
        e(f"s_mov_b32 m0, s36\ns_nop 0")
        for i in range(4):
            e(f"buffer_load_dwordx4 v4, s[8:11], s36 offen offset:{1024*i} lds")
    PFULL=os.environ.get('K0PF','small')=='full'
    NPF=16 if PFULL else 2
    if PFULL: e("s_lshr_b32 s40, s2, 3\ns_lshl_b32 s40, s40, 16\ns_add_u32 s37, s40, s35")
    else:     e("s_lshl_b32 s40, s2, 13\ns_lshl_b32 s37, s33, 11\ns_add_u32 s37, s37, s40")
    e(f"s_mov_b32 m0, {DUMMY}")
    pf=[]
    for n in range(NPF):
        g,i=divmod(n,4)
        pf.append((f"s_add_u32 s36, s37, {g*4096}\n" if i==0 else "")+f"buffer_load_dwordx4 v3, s[24:27], s36 offen offset:{1024*i} lds")
    e0=e; cnt=[0]
    def e(t):
        for l in t.split("\n"):
            e0(l)
            if l.startswith("v_") and not "dpp" in l and not "readlane" in l:
                cnt[0]+=1
                if cnt[0]%20==0 and pf and live[0]: e0(pf.pop(0))
    live=[False]
    e("s_waitcnt vmcnt(16)")
    live[0]=True
    if os.environ.get('K0ST')=='1': k.stamp_mid(0)
    X=48
    for row in range(4):
        for j in range(8):
            e(f"v_lshlrev_b32 v{X+16*row+2*j}, 16, v{8+8*row+j}")
            e(f"v_and_b32 v{X+1+16*row+2*j}, 0xffff0000, v{8+8*row+j}")
    for row in range(4):
        b=X+16*row; d=40+row
        e(f"v_add_f32 v{d}, v{b}, v{b+1}")
        for i in range(2,16): e(f"v_add_f32 v{d}, v{d}, v{b+i}")
    dpp_reduce(k,[40,41,42,43])
    e(f"v_mov_b32 v112, {hex(f2u(1/1024.))}\nv_mov_b32 v113, {hex(f2u(1e-5))}")
    for row in range(4): e(f"v_readlane_b32 s{48+row}, v{40+row}, 63")
    e("s_nop 0")
    for row in range(4): e(f"v_mul_f32 v{44+row}, s{48+row}, v112")
    for row in range(4):
        b=X+16*row
        for i in range(16): e(f"v_sub_f32 v{b+i}, v{b+i}, v{44+row}")
    for row in range(4):
        b=X+16*row; d=40+row
        e(f"v_mul_f32 v{d}, v{b}, v{b}")
        for i in range(1,16): e(f"v_fmac_f32 v{d}, v{b+i}, v{b+i}")
    dpp_reduce(k,[40,41,42,43])
    e("s_nop 0")
    for row in range(4): e(f"v_readlane_b32 s{48+row}, v{40+row}, 63")
    e("s_nop 0")
    for row in range(4): e(f"v_fma_f32 v{44+row}, s{48+row}, v112, v113")
    for row in range(4): e(f"v_rsq_f32 v{44+row}, v{44+row}")
    for row in range(4):
        b=X+16*row
        for i in range(16): e(f"v_mul_f32 v{b+i}, v{b+i}, v{44+row}")
    for row in range(4):
        b=X+16*row
        for j in range(8): e(f"v_cvt_pk_bf16_f32 v{8+8*row+j}, v{b+2*j}, v{b+2*j+1}")
    live[0]=False
    for x in pf: e0(x)
    del pf[:]
    e(f"s_lshl_b32 s40, s33, 2\ns_mul_i32 s40, s40, {XLS}\ns_add_u32 s40, s40, {XL}")
    e("v_add_u32 v5, s40, v3")
    for r in range(4):
        e(f"ds_write_b128 v5, v[{8+8*r}:{11+8*r}] offset:{r*XLS}")
        e(f"ds_write_b128 v5, v[{12+8*r}:{15+8*r}] offset:{r*XLS+1024}")
    e("s_and_b32 s41, s33, 1\ns_lshr_b32 s42, s33, 1")
    e("v_lshrrev_b32 v6, 4, v2\nv_and_b32 v7, 15, v2\nv_lshrrev_b32 v44, 2, v7\nv_and_b32 v45, 3, v2")
    e("v_lshl_add_u32 v44, v6, 3, v44\nv_lshlrev_b32 v44, 6, v44")
    e("v_lshrrev_b32 v46, 1, v45\ns_lshl_b32 s45, s41, 1\nv_add_u32 v46, s45, v46")
    e("v_and_b32 v47, 1, v6\nv_lshlrev_b32 v47, 1, v47\nv_xor_b32 v46, v46, v47")
    e("v_lshl_add_u32 v44, v46, 4, v44")
    e("v_and_b32 v47, 1, v45\nv_lshl_add_u32 v44, v47, 3, v44")
    e("s_lshl_b32 s45, s42, 15\nv_add_u32 v44, s45, v44")
    e(f"v_mul_u32_u24 v46, {XLS}, v7\nv_lshl_add_u32 v46, v6, 4, v46\ns_lshl_b32 s45, s42, 10\ns_add_u32 s45, s45, {XL}\nv_add_u32 v45, s45, v46")
    if os.environ.get('K0ST')=='1': k.stamp_mid(1)
    e(f"s_waitcnt vmcnt({NPF}) lgkmcnt(0)")
    e("s_barrier")
    if os.environ.get('K0ST')=='2':
        k.stamp_mid(0); e("s_waitcnt lgkmcnt(0)")
    e(f"s_lshl_b32 s45, s43, 4\ns_lshl_b32 s46, s33, 2\ns_add_u32 s45, s45, s46")
    e(f"v_mul_u32_u24 v46, {XLS}, v7\nv_lshl_add_u32 v46, v6, 4, v46\ns_lshl_b32 s46, s45, 6\ns_add_u32 s46, s46, {XL}\nv_add_u32 v46, s46, v46")
    for i in range(4): e(f"ds_read_b128 v[{96+4*i}:{99+4*i}], v46 offset:{64*i}")
    e("v_lshrrev_b32 v47, 1, v6\nv_lshlrev_b32 v47, 10, v47\nv_and_b32 v112, 1, v6\nv_lshl_add_u32 v47, v112, 9, v47\nv_lshl_add_u32 v47, v7, 4, v47")
    e("s_lshr_b32 s46, s32, 1\ns_lshl_b32 s46, s46, 16\ns_and_b32 s47, s32, 1\ns_lshl_b32 s47, s47, 8\ns_add_u32 s46, s46, s47\ns_lshl_b32 s47, s45, 11\ns_add_u32 s46, s46, s47")
    e("s_waitcnt lgkmcnt(0)")
    for i in range(4):
        e(f"s_add_u32 s47, s46, {i*2048}\nbuffer_store_dwordx4 v[{96+4*i}:{99+4*i}], v47, s[16:19], s47 offen {os.environ.get('K0STF','sc1')}")
    LK=k.lab("V"); LE=k.lab("EPI")
    def gemm(swap):
        D=4
        def rd(s):
            b=48+8*(s%D)
            e(f"ds_read_b64_tr_b16 v[{b}:{b+1}], v44 offset:{s*2048}")
            e(f"ds_read_b64_tr_b16 v[{b+2}:{b+3}], v44 offset:{s*2048+256}")
            e(f"ds_read_b128 v[{b+4}:{b+7}], v45 offset:{s*64}")
        for s in range(D-1): rd(s)
        for s in range(16):
            if s+D-1<16: rd(s+D-1)
            left=min(D-1,15-s)
            e(f"s_waitcnt lgkmcnt({3*left})")
            b=48+8*(s%D)
            c = "0" if s==0 else "v[40:43]"
            if not swap: e(f"v_mfma_f32_16x16x32_bf16 v[40:43], v[{b}:{b+3}], v[{b+4}:{b+7}], {c}")
            else:        e(f"v_mfma_f32_16x16x32_bf16 v[40:43], v[{b+4}:{b+7}], v[{b}:{b+3}], {c}")
        LR=k.lab("RED");
        e(f"s_lshl_b32 s45, s41, 10\ns_add_u32 s45, s45, {RED}\nv_add_u32 v46, s45, v3")
        k.nop(4)
        e(f"s_cmp_eq_u32 s42, 0\ns_cbranch_scc1 {LR}")
        e("ds_write_b128 v46, v[40:43]\ns_waitcnt lgkmcnt(0)\ns_barrier")
        e(f"s_branch {LE}")
        e(f"{LR}:")
        e("s_barrier\nds_read_b128 v[48:51], v46\ns_waitcnt lgkmcnt(0)")
        for i in range(4): e(f"v_add_f32 v{40+i}, v{40+i}, v{48+i}")
    e(f"s_cmp_eq_u32 s43, 1\ns_cbranch_scc1 {LK} ; @alt")
    gemm(False)
    e("v_bfe_u32 v64, v7, 2, 1\nv_lshrrev_b32 v65, 3, v7\nv_and_b32 v66, 3, v7")
    e("v_lshl_add_u32 v66, v64, 3, v66\nv_lshl_add_u32 v66, v65, 2, v66\ns_and_b32 s44, s32, 1\ns_lshl_b32 s44, s44, 4\nv_add_u32 v66, s44, v66")
    e("v_lshlrev_b32 v67, 6, v66")
    e("v_lshrrev_b32 v68, 1, v6\nv_lshlrev_b32 v68, 1, v68\nv_add_u32 v68, s41, v68\nv_bfe_u32 v65, v66, 2, 2\nv_xor_b32 v68, v68, v65")
    e("v_lshl_add_u32 v67, v68, 4, v67\nv_and_b32 v68, 1, v6\nv_lshl_add_u32 v67, v68, 3, v67")
    e("s_lshr_b32 s44, s32, 1\ns_lshl_b32 s44, s44, 12")
    e("v_cvt_pk_bf16_f32 v40, v40, v41\nv_cvt_pk_bf16_f32 v41, v42, v43")
    e("buffer_store_dwordx2 v[40:41], v67, s[20:23], s44 offen")
    e(f"s_branch {LE}")
    e(f"{LK}:")
    gemm(True)
    e("v_lshrrev_b32 v65, 2, v7\nv_and_b32 v66, 3, v7\nv_lshl_add_u32 v66, v65, 3, v66\ns_lshl_b32 s44, s41, 2\nv_add_u32 v66, s44, v66")
    e("v_lshlrev_b32 v67, 6, v66")
    e("v_lshlrev_b32 v65, 1, v65\nv_add_u32 v65, s41, v65\nv_and_b32 v65, 3, v65")
    e("v_lshrrev_b32 v68, 1, v6\ns_and_b32 s44, s32, 1\ns_lshl_b32 s44, s44, 1\nv_add_u32 v68, s44, v68\nv_xor_b32 v65, v68, v65")
    e("v_lshl_add_u32 v67, v65, 4, v67\nv_and_b32 v68, 1, v6\nv_lshl_add_u32 v67, v68, 3, v67")
    e("s_lshr_b32 s44, s32, 1\ns_lshl_b32 s44, s44, 12\ns_add_u32 s44, s44, 2048")
    e("v_cvt_pk_bf16_f32 v40, v40, v41\nv_cvt_pk_bf16_f32 v41, v42, v43")
    e("buffer_store_dwordx2 v[40:41], v67, s[20:23], s44 offen")
    e(f"{LE}:")
    if os.environ.get('K0ST')=='2': k.stamp_mid(1)
    e("s_waitcnt vmcnt(0)")
    k.stamp_end(0)
    e(f"{END}:")
    e("s_endpgm")
    return k
```

```python
from base import *
from gda import *
import os
VAR=os.environ.get('K1VAR','')

QSCALE = (32**-0.5)*1.4426950408889634

def gen_k1():
    k=Kern("k1_q_attn_kernel", 256, 512, 163840, vgpr=224, sgpr=96)
    e=k.e
    END=k.lab("END")
    R=dict(vA=4,vB=8,vW=14,AF=48,W=112,acc=16)
    S=dict(w=33,sA=40,sB=41,wr=42,rd=43,inc=44,wB=46,t=47)
    SS=48; KF=80; V0=88; V1=92; P=96; Q=144; O=152; Lr=168; SEL=172; AK=176; AV0=178; AV1=179; VO=180; VCR=181; VWD=182
    ONES=184; CSV=188; WDR=196; CSACC=16; CSF=104
    BBASE=98304; QX=BBASE+5*8192; CST=131072; CSS=CST+4*7168; DUM=CSS+1792+256
    e(f"s_cmp_ge_u32 s2, 256\ns_cbranch_scc1 {END}")
    k.stamp_begin()
    k.load_ptr(8,'wq'); k.load_ptr(28,'ws'); k.load_ptr(20,'wg'); k.load_ptr(22,'wu'); k.load_ptr(48,'wo'); k.load_ptr(52,'wd')
    e("v_lshrrev_b32 v1, 6, v0\nv_and_b32 v2, 63, v0")
    e("s_and_b32 s30, s2, 7\ns_lshr_b32 s31, s2, 3")
    e("s_and_b32 s32, s31, 1\ns_lshl_b32 s30, s30, 1\ns_add_u32 s34, s30, s32")
    e("s_lshr_b32 s35, s31, 1")
    e("v_readfirstlane_b32 s58, v1")
    e("v_lshlrev_b32 v3, 4, v2")
    e("s_and_b32 s33, s58, 3")
    e("s_lshl_b32 s37, s35, 7")
    e("s_lshl_b32 s38, s33, 13")
    e("v_and_b32 v4, 31, v2\nv_bfe_u32 v5, v2, 2, 2\nv_lshrrev_b32 v6, 5, v2\nv_xor_b32 v5, v5, v6")
    e(f"v_lshlrev_b32 v4, 6, v4\nv_lshl_add_u32 v{AK}, v5, 4, v4\nv_xor_b32 v5, 2, v5\nv_lshl_add_u32 v{AK+1}, v5, 4, v4")
    e(f"v_mov_b32 v{AV0}, v{AK}\nv_mov_b32 v{AV1}, v{AK+1}")
    e("v_bfe_u32 v4, v2, 2, 1\nv_bfe_u32 v5, v2, 4, 1\nv_xor_b32 v4, v4, v5\nv_and_b32 v5, 3, v2\nv_or_b32 v4, v4, v5")
    e("v_mov_b32 v5, 0x3f803f80\nv_cmp_eq_u32 vcc, 0, v4\ns_nop 1")
    e(f"v_cndmask_b32 v{SEL}, 0, v5, vcc")
    for i in range(1,4): e(f"v_mov_b32 v{SEL+i}, v{SEL}")
    e(f"s_lshl_b32 s47, s34, 2\ns_add_u32 s47, s47, s33\ns_lshl_b32 s47, s47, 6\ns_lshr_b32 s30, s58, 2\ns_lshl_b32 s31, s35, 1\ns_add_u32 s30, s30, s31\ns_lshl_b32 s30, s30, 1\ns_add_u32 s47, s47, s30\ns_lshl_b32 s47, s47, 10")
    e(f"v_add_u32 v{VO}, s47, v3")
    for i in range(16): e(f"v_mov_b32 v{O+i}, 0")
    for i in range(4): e(f"v_mov_b32 v{Lr+i}, 0")
    e("s_and_b32 s30, s2, 3\ns_lshl_b32 s30, s30, 8\ns_lshl_b32 s31, s33, 6\ns_add_u32 s30, s30, s31\ns_mul_i32 s30, s30, 7168")
    e("s_bfe_u32 s31, s2, 0x50002\ns_mul_i32 s31, s31, 224\ns_add_u32 s30, s30, s31")
    for i in range(7):
        e(f"v_add_u32 v5, {64*i}, v2\nv_mul_u32_u24 v6, 4682, v5\nv_lshrrev_b32 v6, 16, v6\nv_mul_u32_u24 v7, 14, v6\nv_sub_u32 v7, v5, v7")
        e(f"v_mul_u32_u24 v6, 7168, v6\nv_lshl_add_u32 v6, v7, 4, v6\nv_add_u32 v{CSV+i}, s30, v6")
    e(f"s_mul_i32 s56, s33, 7168\ns_add_u32 s56, s56, {CST}")
    e(f"v_lshrrev_b32 v5, 2, v2\nv_mul_u32_u24 v5, 224, v5\nv_and_b32 v6, 3, v2\nv_lshl_add_u32 v5, v6, 3, v5\nv_add_u32 v{VCR}, s56, v5")
    for i in range(4): e(f"v_mov_b32 v{ONES+i}, 0x3f803f80")
    e("s_lshr_b32 s62, s2, 3\ns_lshl_b32 s62, s62, 16\ns_lshl_b32 s63, s33, 14\ns_add_u32 s62, s62, s63")
    e("s_lshl_b32 s63, s2, 2\ns_add_u32 s63, s63, s33\ns_and_b32 s30, s63, 63\ns_mul_i32 s30, s30, 56\ns_lshr_b32 s31, s63, 6\ns_lshl_b32 s31, s31, 7\ns_mul_i32 s63, s63, 7168")
    e(f"v_lshrrev_b32 v5, 3, v2\nv_add_u32 v5, s30, v5\nv_lshlrev_b32 v5, 11, v5\nv_add_u32 v5, s31, v5")
    e(f"v_bfe_u32 v6, v2, 4, 1\nv_lshlrev_b32 v6, 2, v6\nv_and_b32 v7, 7, v2\nv_xor_b32 v6, v6, v7\nv_lshl_add_u32 v{VWD}, v6, 4, v5")
    g=GDA(k,R,S,4,8,8,16,False,64*2048,False,base=BBASE)
    LCONS=k.lab("CONS"); LJ=k.lab("JOIN")
    e(f"s_cmp_lt_u32 s58, 4\ns_cbranch_scc1 {LCONS} ; @alt")
    def kv_dma(c):
        for gi in range(2):
            e(f"s_add_u32 s47, s38, {c*32768+gi*4096}")
            e(f"s_add_u32 m0, s38, {(c&3)*32768+gi*4096}\ns_nop 0")
            for i in range(4):
                e(f"buffer_load_dwordx4 v3, s[12:15], s47 offen offset:{i*1024} lds")
    g.setup_loader(2, 60, 2048, 37)
    e("s_waitcnt lgkmcnt(0)")
    k.srd(8, 2*MB)
    k.srd(12, 64*4096, src=28, add=WS_KV); k.srd(16, 4*MB, src=28, add=WS_O)
    g.loader(39, hooks={12:(lambda:kv_dma(0),8)})
    e("s_waitcnt vmcnt(0)\ns_barrier")
    e(f"s_lshl_b32 s47, s33, 11\ns_add_u32 s47, s47, {QX}\nv_add_u32 v4, s47, v3")
    e(f"ds_read_b128 v[{Q}:{Q+3}], v4\nds_read_b128 v[{Q+4}:{Q+7}], v4 offset:1024")
    kv_dma(1)
    e(f"s_branch {LJ}")
    e(f"{LCONS}:")
    e(f"s_lshl_b32 s36, s34, 2\ns_add_u32 s36, s36, s33\ns_lshl_b32 s36, s36, 16")
    g.setup_consumer(2, 60, 36)
    e("s_waitcnt lgkmcnt(0)")
    k.srd(4, 4*MB, src=28, add=WS_XN)
    g.a_prologue()
    k.srd(12, 64*4096, src=28, add=WS_KV); k.srd(16, 4*MB, src=28, add=WS_O)
    e("s_cmp_ge_u32 s2, 128\ns_cselect_b32 s20, s22, s20\ns_cselect_b32 s21, s23, s21")
    k.srd(20, 3584*1024*2); k.srd(48, 2*MB); k.srd(52, 3584*1024*2); k.srd(72, 3584*2048, src=28, add=WS_WDB)
    k.srd(24, 4*7168*4, src=28, add=WS_CS)
    g.consumer(39, stamp=(1 if os.environ.get('K1ST')=='1' else None))
    if os.environ.get('K1ST')=='2': k.stamp_mid(1)
    e(f"v_mov_b32 v60, {hex(f2u(QSCALE))}")
    k.nop(12)
    for i in range(32): e(f"v_mul_f32 v{R['acc']+i}, v{R['acc']+i}, v60")
    for i in range(8): e(f"v_cvt_pk_bf16_f32 v{Q+i}, v{R['acc']+2*i}, v{R['acc']+2*i+1}")
    for i in range(8): e(f"v_cvt_pk_bf16_f32 v{64+i}, v{R['acc']+16+2*i}, v{R['acc']+16+2*i+1}")
    e(f"s_lshl_b32 s47, s33, 11\ns_add_u32 s47, s47, {QX}\nv_add_u32 v4, s47, v3")
    e(f"ds_write_b128 v4, v[64:67]\nds_write_b128 v4, v[68:71] offset:1024")
    e("s_waitcnt lgkmcnt(0)\ns_barrier")
    e(f"{LJ}:")
    k.stamp_mid(0)
    def rdK(tl):
        for m in range(2): e(f"ds_read_b128 v[{KF+4*m}:{KF+4*m+3}], v{AK+m} offset:{tl*4096}")
    def rdV0(tl): e(f"ds_read_b128 v[{V0}:{V0+3}], v{AV0} offset:{tl*4096+2048}")
    def rdV1(tl): e(f"ds_read_b128 v[{V1}:{V1+3}], v{AV1} offset:{tl*4096+2048}")
    rdK(0); rdV0(0)
    for i in range(4): e(f"v_mov_b32 v{P+4+i}, 0\nv_mov_b32 v{V1+i}, 0")
    e("s_waitcnt lgkmcnt(0)")
    def mf(d,a,b,c=None):
        cs = c if c else f"v[{d}:{d+15}]"
        e(f"v_mfma_f32_32x32x16_bf16 v[{d}:{d+15}], v[{a}:{a+3}], v[{b}:{b+3}], {cs}")
    def rs(b): e(f"v_mfma_f32_16x16x32_bf16 v[{Lr}:{Lr+3}], v[{SEL}:{SEL+3}], v[{b}:{b+3}], v[{Lr}:{Lr+3}]")
    mf(SS,KF,Q,"0"); mf(SS,KF+4,Q+4)
    rdK(1)
    e("s_waitcnt lgkmcnt(0)")
    k.nop(10)
    PAT="W3 E0 E1 PV1p RV1 E2 E3 C0 E4 W2 QK0 E5 C1 E6 E7 RS1p C2 E8 QK1 RK C3 E9 E10 E11 W3 PV0 RV0 C4 E12 E13 C5 RS0 E14 E15 C6 C7".split()
    def slot(tl):
        par=tl&1
        Sc=SS+16*par; Sn=SS+16*(1-par)
        for t in PAT:
            if t[0]=='E': i=int(t[1:]); e(f"v_exp_f32 v{Sc+i}, v{Sc+i}")
            elif t[0]=='C': i=int(t[1:]); e(f"v_cvt_pk_bf16_f32 v{P+i}, v{Sc+2*i}, v{Sc+2*i+1}")
            elif t[0]=='W':
                if 'nowait' not in VAR: e(f"s_waitcnt lgkmcnt({t[1]})")
            elif t=='QK0': mf(Sn,KF,Q,"0")
            elif t=='QK1': mf(Sn,KF+4,Q+4)
            elif t=='PV0': mf(O,V0,P)
            elif t=='PV1p': mf(O,V1,P+4)
            elif t=='RS0': rs(P)
            elif t=='RS1p': rs(P+4)
            elif 'noread' in VAR: pass
            elif t=='RV1': rdV1(tl)
            elif t=='RK': rdK((tl+2)&7)
            elif t=='RV0': rdV0((tl+1)&7)
    LT0=k.lab("T0"); LT6=k.lab("T6"); LX=k.lab("X"); LG1=k.lab("G1")
    e("s_mov_b32 s39, 0")
    e(f"s_branch {LT0}")
    e(f"{LT6}:")
    e(f"v_add_u32 v{AK}, s59, v{AK}\nv_add_u32 v{AK+1}, s59, v{AK+1}")
    slot(6)
    e(f"v_add_u32 v{AV0}, s59, v{AV0}")
    slot(7)
    e(f"v_add_u32 v{AV1}, s59, v{AV1}")
    e(f"s_cmp_eq_u32 s39, 8\ns_cbranch_scc1 {LX} ; @exit")
    e(f"{LT0}:")
    slot(0); slot(1)
    LMR=k.lab("MR"); MID=[k.lab(f"MID{c}") for c in range(8)]; LMD=k.lab("MD")
    e(f"s_cmp_lt_u32 s58, 4\ns_cbranch_scc1 {LMD} ; @alt")
    e(f"{LMR}:")
    for tl in range(2,6): slot(tl)
    e("s_and_b32 s47, s39, 3\ns_mov_b32 s59, 0xfffe8000\ns_cmp_eq_u32 s47, 3\ns_cselect_b32 s59, s59, 0x8000")
    e(f"s_cmp_ge_u32 s58, 4\ns_cbranch_scc1 {LG1} ; @g1")
    LNB=k.lab("NB")
    e(f"s_cmp_eq_u32 s39, 7\ns_cbranch_scc1 {LNB}")
    e("s_barrier")
    e(f"{LNB}:")
    e(f"s_add_u32 s39, s39, 1\ns_branch {LT6}")
    e(f"{LG1}:")
    LG1c=k.lab("G1c")
    e(f"s_cmp_eq_u32 s39, 7\ns_cbranch_scc1 {LG1c}")
    e("s_waitcnt vmcnt(0)\ns_barrier")
    e(f"s_cmp_ge_u32 s39, 6\ns_cbranch_scc1 {LG1c}")
    e("s_add_u32 s30, s39, 2\ns_lshl_b32 s31, s30, 15\ns_and_b32 s30, s30, 3\ns_lshl_b32 s30, s30, 15\ns_add_u32 s30, s30, s38\ns_add_u32 s31, s31, s38")
    for gi in range(2):
        e(f"s_add_u32 m0, s30, {gi*4096}\ns_add_u32 s47, s31, {gi*4096}")
        for i in range(4):
            e(f"buffer_load_dwordx4 v3, s[12:15], s47 offen offset:{i*1024} lds")
    e(f"{LG1c}:")
    e(f"s_add_u32 s39, s39, 1\ns_branch {LT6}")
    def cs_dma(r):
        e(f"s_mov_b32 s30, {r*32*7168}")
        for i in range(7):
            e(f"s_add_u32 m0, s56, {i*1024}\ns_nop 0")
            e(f"buffer_load_dwordx4 v{CSV+i}, s[20:23], s30 offen lds")
    def cs_mfma(r):
        for v in range(7):
            for t in range(2):
                e(f"ds_read_b64_tr_b16 v[{CSF+4*v+2*t}:{CSF+4*v+2*t+1}], v{VCR} offset:{v*32+t*3584}")
        e("s_waitcnt lgkmcnt(0)")
        for v in range(7):
            a=CSACC+4*v
            c="0" if r==0 else f"v[{a}:{a+3}]"
            e(f"v_mfma_f32_16x16x32_bf16 v[{a}:{a+3}], v[{CSF+4*v}:{CSF+4*v+3}], v[{ONES}:{ONES+3}], {c}")
    def prefetch(srd, base_s, first, n):
        e(f"s_mov_b32 m0, {DUM}")
        for i in range(n):
            e(f"s_add_u32 s47, s{base_s}, {(first+i)*1024}")
            e(f"buffer_load_dwordx4 v3, s[{srd}:{srd+3}], s47 offen lds")
    side='noside' not in VAR
    e(f"{LMD}:")
    if side:
        for c in (1,3,4,5,6,7):
            e(f"s_cmp_eq_u32 s39, {c}\ns_cbranch_scc1 {MID[c]}")
    e(f"s_branch {LMR}")
    for c in (1,3,4,5,6,7):
        if not side: break
        e(f"{MID[c]}:")
        if c==1: cs_dma(0)
        if c==3:
            e("s_waitcnt vmcnt(0)"); cs_mfma(0); cs_dma(1)
        if c==4:
            for i in range(7):
                e(f"s_mov_b32 s30, {i*8*2048}\nbuffer_load_dwordx4 v[{WDR+4*i}:{WDR+4*i+3}], v{VWD}, s[52:55], s30 offen")
        if c==5:
            e("s_waitcnt vmcnt(7)"); cs_mfma(1)
            e(f"v_lshrrev_b32 v4, 4, v2\nv_lshlrev_b32 v4, 4, v4\ns_mul_i32 s30, s33, 448\ns_add_u32 s30, s30, {CSS}\nv_add_u32 v4, s30, v4")
            e("v_and_b32 v5, 15, v2\nv_cmp_eq_u32 vcc, 0, v5\ns_and_saveexec_b64 s[66:67], vcc")
            k.nop(2)
            for v in range(7): e(f"ds_write_b128 v4, v[{CSACC+4*v}:{CSACC+4*v+3}] offset:{v*64}")
            e("s_mov_b64 exec, s[66:67]\ns_waitcnt lgkmcnt(0)")
        if c==6:
            e("s_waitcnt vmcnt(0)")
            for i in range(7):
                e(f"s_add_u32 s30, s63, {i*1024}\nbuffer_store_dwordx4 v[{WDR+4*i}:{WDR+4*i+3}], v3, s[72:75], s30 offen {os.environ.get('WDST','sc1')}")
            LS=k.lab("CSS")
            e("v_cmp_gt_u32 vcc, 112, v0\ns_and_saveexec_b64 s[66:67], vcc")
            e(f"s_cbranch_execz {LS}")
            e(f"v_lshlrev_b32 v4, 2, v0\nv_add_u32 v4, {CSS}, v4")
            for j in range(4): e(f"ds_read_b32 v{16+j}, v4 offset:{j*448}")
            e("s_and_b32 s30, s2, 3\ns_mul_i32 s30, s30, 28672\ns_lshr_b32 s31, s2, 7\ns_mul_i32 s31, s31, 14336\ns_add_u32 s30, s30, s31")
            e("s_bfe_u32 s31, s2, 0x50002\ns_mul_i32 s31, s31, 448\ns_add_u32 s30, s30, s31")
            e("v_lshlrev_b32 v4, 2, v0\ns_waitcnt lgkmcnt(0)")
            e("v_add_f32 v16, v16, v17\nv_add_f32 v18, v18, v19\nv_add_f32 v16, v16, v18")
            e("buffer_store_dword v16, v4, s[24:27], s30 offen")
            e(f"{LS}:\ns_mov_b64 exec, s[66:67]")
            prefetch(48,62,0,8)
        if c==7: prefetch(48,62,8,8)
        e(f"s_branch {LMR}")
    e(f"{LX}:")
    if os.environ.get('K1ST') not in ('1','2'): k.stamp_mid(1)
    e("s_waitcnt lgkmcnt(0)")
    mf(O,V1,P+4); rs(P+4)
    k.nop(12)
    LFB=k.lab("FB"); LFIN=k.lab("FIN")
    e(f"v_mov_b32 v8, 0")
    for i in range(16): e(f"v_fmac_f32 v8, 0, v{O+i}")
    e(f"v_mov_b32 v9, {hex(f2u(2.0**-60))}\nv_mov_b32 v10, {hex(f2u(2.0**60))}")
    e(f"v_cmp_o_f32 s[64:65], v8, v8")
    e(f"v_cmp_le_f32 s[66:67], v9, v{Lr}")
    e(f"v_cmp_ge_f32 s[70:71], v10, v{Lr}")
    e("s_and_b64 s[64:65], s[64:65], s[66:67]\ns_and_b64 s[64:65], s[64:65], s[70:71]")
    e(f"s_cmp_eq_u64 s[64:65], exec\ns_cbranch_scc0 {LFB}")
    e(f"{LFIN}:")
    e(f"v_rcp_f32 v8, v{Lr}")
    e("s_nop 0")
    for i in range(16): e(f"v_mul_f32 v{O+i}, v{O+i}, v8")
    for i in range(8): e(f"v_cvt_pk_bf16_f32 v{16+i}, v{O+2*i}, v{O+2*i+1}")
    for j in range(2):
        e(f"buffer_store_dwordx4 v[{16+4*j}:{19+4*j}], v{VO}, s[16:19], 0 offen offset:{j*1024} {os.environ.get('K1STF','sc1')}")
    e("s_waitcnt vmcnt(0)")
    k.stamp_end(1)
    e("s_endpgm")
    e(f"{LFB}:")
    e("s_waitcnt vmcnt(0)")
    e("v_and_b32 v8, 31, v2\nv_bfe_u32 v9, v2, 2, 2\nv_lshrrev_b32 v10, 5, v2\nv_xor_b32 v9, v9, v10")
    e(f"v_lshlrev_b32 v8, 6, v8\nv_lshl_add_u32 v{AK}, v9, 4, v8\nv_xor_b32 v9, 2, v9\nv_lshl_add_u32 v{AK+1}, v9, 4, v8")
    e("v_mov_b32 v8, 0xff800000")
    F1=k.lab("F1"); F2=k.lab("F2")
    e(f"s_mov_b32 s47, 0\n{F1}:")
    for m in range(2): e(f"buffer_load_dwordx4 v[{KF+4*m}:{KF+4*m+3}], v{AK+m}, s[12:15], s47 offen")
    e("s_waitcnt vmcnt(0)")
    mf(SS,KF,Q,"0"); mf(SS,KF+4,Q+4)
    k.nop(12)
    for i in range(16): e(f"v_max_f32 v8, v8, v{SS+i}")
    e(f"s_add_u32 s47, s47, 4096\ns_cmp_lt_u32 s47, {64*4096}\ns_cbranch_scc1 {F1}")
    e("v_mov_b32 v10, v8\ns_nop 1\nv_permlane32_swap_b32 v8, v10\ns_nop 1\nv_max_f32 v8, v8, v10")
    for i in range(16): e(f"v_mov_b32 v{O+i}, 0")
    for i in range(4): e(f"v_mov_b32 v{Lr+i}, 0")
    e(f"s_mov_b32 s47, 0\n{F2}:")
    for m in range(2): e(f"buffer_load_dwordx4 v[{KF+4*m}:{KF+4*m+3}], v{AK+m}, s[12:15], s47 offen")
    e(f"buffer_load_dwordx4 v[{V0}:{V0+3}], v{AK}, s[12:15], s47 offen offset:2048")
    e(f"buffer_load_dwordx4 v[{V1}:{V1+3}], v{AK+1}, s[12:15], s47 offen offset:2048")
    e("s_waitcnt vmcnt(0)")
    mf(SS,KF,Q,"0"); mf(SS,KF+4,Q+4)
    k.nop(12)
    for i in range(16): e(f"v_sub_f32 v{SS+i}, v{SS+i}, v8")
    for i in range(16): e(f"v_exp_f32 v{SS+i}, v{SS+i}")
    e("s_nop 0")
    for i in range(8): e(f"v_cvt_pk_bf16_f32 v{P+i}, v{SS+2*i}, v{SS+2*i+1}")
    e("s_nop 1")
    mf(O,V0,P); mf(O,V1,P+4); rs(P); rs(P+4)
    k.nop(12)
    e(f"s_add_u32 s47, s47, 4096\ns_cmp_lt_u32 s47, {64*4096}\ns_cbranch_scc1 {F2}")
    e(f"s_branch {LFIN}")
    e(f"{END}:")
    e("s_endpgm")
    return k
```

```python
from base import *
from gda import *
import os

def common(name, kidx, nst, NS):
    k=Kern(name, 256, 512, NS*BST+(0 if name.startswith('k2') else 16384), vgpr=208, sgpr=80)
    return k

def h_addr(k, vdst, t, s_m, s_n, s_w):
    e=k.e
    e(f"s_lshr_b32 s30, s{s_m}, 1\ns_lshl_b32 s30, s30, 5\ns_lshl_b32 s31, s{s_n}, 1\ns_add_u32 s30, s30, s31\ns_lshl_b32 s30, s30, 14")
    e(f"s_and_b32 s31, s{s_m}, 1\ns_lshl_b32 s31, s31, 13\ns_add_u32 s30, s30, s31\ns_lshl_b32 s31, s{s_w}, 11\ns_add_u32 s30, s30, s31")
    e(f"v_bfe_u32 v{t}, v2, 4, 1\nv_lshlrev_b32 v{t}, 10, v{t}\nv_and_b32 v{t+1}, 15, v2\nv_lshl_add_u32 v{t}, v{t+1}, 4, v{t}")
    e(f"v_lshrrev_b32 v{t+1}, 5, v2\nv_lshl_add_u32 v{t}, v{t+1}, 3, v{t}\nv_add_u32 v{vdst}, s30, v{t}")
    for g in range(1,4): e(f"v_add_u32 v{vdst+g}, {256*g}, v{vdst}")

def gen_gemm(kind):
    isWo = kind=='wo'
    nst = 16 if isWo else 56
    NS=10
    name = "k2_wo_kernel" if isWo else "k4_down_kernel"
    kidx = 2 if isWo else 4
    k=common(name,kidx,nst,NS); e=k.e
    END=k.lab("END")
    R=dict(vA=4,vB=8,vW=14,AF=128,W=96,acc=40)
    S=dict(w=33,sA=40,sB=41,wr=42,rd=43,inc=44,wB=46,t=47,big=52,st=53,ea=54)
    RES=72; VH=88; VOUT=92; VST=93
    e(f"s_cmp_ge_u32 s2, 256\ns_cbranch_scc1 {END}")
    k.stamp_begin()
    k.load_ptr(28,'ws')
    if isWo: k.load_ptr(8,'wo')
    k.load_ptr(20,'x' if isWo else 'out')
    e("v_lshrrev_b32 v1, 6, v0\nv_and_b32 v2, 63, v0")
    e("s_and_b32 s30, s2, 7\ns_lshr_b32 s31, s2, 3")
    if isWo:
        e("s_and_b32 s32, s31, 1\ns_lshl_b32 s30, s30, 1\ns_add_u32 s34, s30, s32\ns_lshr_b32 s35, s31, 1")
    else:
        e("s_lshr_b32 s32, s30, 1\ns_lshl_b32 s32, s32, 2\ns_and_b32 s34, s31, 3\ns_add_u32 s34, s34, s32")
        e("s_and_b32 s32, s30, 1\ns_lshl_b32 s32, s32, 3\ns_lshr_b32 s35, s31, 2\ns_add_u32 s35, s35, s32")
    e("v_readfirstlane_b32 s58, v1")
    e("s_lshl_b32 s37, s35, 7")
    if not isWo: e(f"s_mul_i32 s38, s35, {3584*128}")
    NKS=64 if isWo else 224
    e("s_and_b32 s33, s58, 3")
    if isWo: g=GDA(k,R,S,4,8,NS,nst,False,64*2048,True)
    else:    g=GDA(k,R,S,4,8,NS,nst,True,8192,False)
    LCONS=k.lab("CONS")
    e(f"s_cmp_lt_u32 s58, 4\ns_cbranch_scc1 {LCONS} ; @alt")
    g.setup_loader(2, 60, 2048, 37 if isWo else 38)
    e("s_waitcnt lgkmcnt(0)")
    if isWo: k.srd(8, 2*MB)
    else:    k.srd(8, 3584*2048, src=28, add=WS_WDB)
    g.loader(39)
    if os.environ.get('LDST'): k.stamp_end(kidx, 256)
    e("s_endpgm")
    e(f"{LCONS}:")
    h_addr(k, VH, 60, 34, 35, 33)
    e(f"s_lshl_b32 s30, s34, 7\ns_lshl_b32 s31, s33, 5\ns_add_u32 s30, s30, s31\nv_and_b32 v60, 31, v2\nv_add_u32 v61, s30, v60\nv_lshlrev_b32 v60, 11, v61")
    e(f"v_lshrrev_b32 v62, 5, v2\nv_lshl_add_u32 v60, v62, 5, v60\nv_add_u32 v{VOUT}, s37, v60")
    e("s_mov_b32 s48, 16384")
    if isWo: e(f"v_lshlrev_b32 v61, 3, v61\ns_lshl_b32 s30, s35, 14\nv_add_u32 v{VST}, s30, v61")
    e(f"s_lshl_b32 s36, s34, 2\ns_add_u32 s36, s36, s33\ns_mul_i32 s36, s36, {NKS*1024}")
    g.setup_consumer(2, 60, 36)
    e("s_waitcnt lgkmcnt(0)")
    if isWo: k.srd(4, 4*MB, src=28, add=WS_O)
    else:    k.srd(4, 2048*3584*2, src=28, add=WS_ACT)
    k.srd(12, 4*MB, src=28, add=WS_H)
    k.srd(20, 4*MB)
    if isWo: k.srd(16, 2048*128, src=28, add=WS_ST)
    def res_loads():
        if isWo:
            for f in range(2):
                for j in range(2):
                    e(f"buffer_load_dwordx4 v[{RES+8*f+4*j}:{RES+8*f+4*j+3}], v{VOUT}, s[20:23], 0 offen offset:{f*64+j*16}")
        else:
            for f in range(2):
                so = "0" if f==0 else "s48"
                for g4 in range(4):
                    e(f"buffer_load_dwordx2 v[{RES+8*f+2*g4}:{RES+8*f+2*g4+1}], v{VH+g4}, s[12:15], {so} offen")
    g.a_prologue()
    g.consumer(39, stamp=0, res_hook=res_loads, nres=4 if isWo else 8)
    k.stamp_mid(1)
    A=R['acc']
    e("s_waitcnt vmcnt(0)")
    for f in range(2):
        for j in range(8):
            e(f"v_lshlrev_b32 v{16+2*j}, 16, v{RES+8*f+j}\nv_and_b32 v{17+2*j}, 0xffff0000, v{RES+8*f+j}")
        if f==0: k.nop(2)
        for i in range(16): e(f"v_add_f32 v{A+16*f+i}, v{A+16*f+i}, v{16+i}")
    for f in range(2):
        for j in range(8): e(f"v_cvt_pk_bf16_f32 v{RES+8*f+j}, v{A+16*f+2*j}, v{A+16*f+2*j+1}")
    if isWo:
        for f in range(2):
            so = "0" if f==0 else "s48"
            for g4 in range(4):
                e(f"buffer_store_dwordx2 v[{RES+8*f+2*g4}:{RES+8*f+2*g4+1}], v{VH+g4}, s[12:15], {so} offen {os.environ.get('K2STF','sc1')}")
        e(f"v_add_f32 v16, v{A}, v{A+1}")
        for i in range(2,32): e(f"v_add_f32 v16, v16, v{A+i}")
        e("v_mov_b32 v17, v16\ns_nop 1\nv_permlane32_swap_b32 v16, v17\ns_nop 1\nv_add_f32 v16, v16, v17")
        e(f"v_mul_f32 v18, {hex(f2u(1/64.))}, v16")
        for i in range(32): e(f"v_sub_f32 v{A+i}, v{A+i}, v18")
        e(f"v_mul_f32 v17, v{A}, v{A}")
        for i in range(1,32): e(f"v_fmac_f32 v17, v{A+i}, v{A+i}")
        e("v_mov_b32 v19, v17\ns_nop 1\nv_permlane32_swap_b32 v17, v19\ns_nop 1\nv_add_f32 v17, v17, v19")
        e("v_cmp_gt_u32 vcc, 32, v2\ns_and_saveexec_b64 s[50:51], vcc")
        e(f"buffer_store_dwordx2 v[16:17], v{VST}, s[16:19], 0 offen")
        e("s_mov_b64 exec, s[50:51]")
    else:
        TB=NS*BST
        e(f"s_lshl_b32 s30, s33, 12\ns_add_u32 s30, s30, {TB}")
        e("v_and_b32 v16, 31, v2\nv_lshlrev_b32 v17, 7, v16\nv_add_u32 v17, s30, v17")
        e("v_lshrrev_b32 v18, 5, v2\nv_lshlrev_b32 v18, 1, v18\nv_and_b32 v19, 7, v2")
        for f in range(2):
            for j in range(2):
                e(f"v_or_b32 v20, {4*f+j}, v18\nv_xor_b32 v20, v20, v19\nv_lshl_add_u32 v20, v20, 4, v17")
                e(f"ds_write_b128 v20, v[{RES+8*f+4*j}:{RES+8*f+4*j+3}]")
        e("v_lshrrev_b32 v16, 3, v2\nv_and_b32 v18, 7, v2\nv_xor_b32 v19, v18, v16\nv_lshlrev_b32 v17, 7, v16\nv_lshl_add_u32 v17, v19, 4, v17\nv_add_u32 v17, s30, v17")
        e("s_lshl_b32 s30, s34, 7\ns_lshl_b32 s31, s33, 5\ns_add_u32 s30, s30, s31\nv_add_u32 v16, s30, v16\nv_lshlrev_b32 v16, 11, v16\nv_lshl_add_u32 v16, v18, 4, v16\nv_add_u32 v16, s37, v16")
        e("s_waitcnt lgkmcnt(0)")
        for i in range(4): e(f"ds_read_b128 v[{24+4*i}:{27+4*i}], v17 offset:{i*1024}")
        for i in range(4):
            e(f"s_waitcnt lgkmcnt({3-i})\ns_mov_b32 s31, {i*8*2048}")
            e(f"buffer_store_dwordx4 v[{24+4*i}:{27+4*i}], v16, s[20:23], s31 offen {os.environ.get('K4STF','sc1')}")
    e("s_waitcnt vmcnt(0)")
    if not os.environ.get('LDST'): k.stamp_end(kidx)
    e(f"{END}:")
    e("s_endpgm")
    return k
def gen_k2(): return gen_gemm('wo')
def gen_k4(): return gen_gemm('down')
```

```python
from base import *
import os
BST=8192

class GDA:
    D=16
    def __init__(s,k,R,S,srdA,srdB,NS,nst,b_blocked,b_step,kperm,base=0):
        s.k=k; s.R=R; s.S=S; s.srdA=srdA; s.srdB=srdB; s.NS=NS; s.nst=nst
        s.b_blocked=b_blocked; s.b_step=b_step; s.kperm=kperm; s.base=base
    def setup_loader(s, vlane, tmp, ldb, s_b0):
        k=s.k; e=k.e; R=s.R; S=s.S; t0,t1,t2=tmp,tmp+1,tmp+2; w=S['w']
        if s.b_blocked:
            e(f"s_lshl_b32 s{S['t']}, s{w}, 11\ns_add_u32 s{S['t']}, s{S['t']}, s{s_b0}")
            e(f"v_lshlrev_b32 v{t0}, 4, v{vlane}\nv_add_u32 v{R['vB']}, s{S['t']}, v{t0}")
        else:
            e(f"v_lshrrev_b32 v{t0}, 3, v{vlane}\ns_lshl_b32 s{S['t']}, s{w}, 4\nv_add_u32 v{t0}, s{S['t']}, v{t0}")
            e(f"s_mov_b32 s{S['t']}, {ldb}\nv_mul_lo_u32 v{t0}, v{t0}, s{S['t']}\nv_add_u32 v{t0}, s{s_b0}, v{t0}")
            e(f"v_bfe_u32 v{t1}, v{vlane}, 4, 1\nv_lshlrev_b32 v{t1}, 2, v{t1}\nv_and_b32 v{t2}, 7, v{vlane}\nv_xor_b32 v{t1}, v{t1}, v{t2}")
            e(f"v_lshl_add_u32 v{R['vB']}, v{t1}, 4, v{t0}\nv_add_u32 v{R['vB']+1}, {8*ldb}, v{R['vB']}")
        e(f"s_lshl_b32 s{S['wB']}, s{w}, 11\ns_mov_b32 s{S['wr']}, {s.base}\ns_mov_b32 s{S['sB']}, 0")
    def dma(s):
        k=s.k; e=k.e; R=s.R; S=s.S
        if s.b_blocked:
            e(f"s_add_u32 m0, s{S['wr']}, s{S['wB']}\ns_nop 0")
            for i in range(2):
                e(f"buffer_load_dwordx4 v{R['vB']}, s[{s.srdB}:{s.srdB+3}], s{S['sB']} offen offset:{i*1024} lds")
        else:
            e(f"s_add_u32 s{S['t']}, s{S['wr']}, s{S['wB']}")
            for i in range(2):
                e(f"s_add_u32 m0, s{S['t']}, {i*1024}\ns_nop 0")
                e(f"buffer_load_dwordx4 v{R['vB']+i}, s[{s.srdB}:{s.srdB+3}], s{S['sB']} offen lds")
        e(f"s_add_u32 s{S['sB']}, s{S['sB']}, {s.b_step}")
        e(f"s_add_u32 s{S['wr']}, s{S['wr']}, {BST}\ns_cmp_eq_u32 s{S['wr']}, {s.base+s.NS*BST}\ns_cselect_b32 s{S['wr']}, {s.base}, s{S['wr']}")
    def loader(s, cnt, hooks=None, after_first=None):
        k=s.k; e=k.e; NS=s.NS; nst=s.nst
        for i in range(NS-1): s.dma()
        if after_first: after_first()
        e(f"s_waitcnt vmcnt({(NS-2)*2})\ns_barrier")
        nloop=nst-(NS-1)
        L=k.lab("LD")
        e(f"s_mov_b32 s{cnt}, {nloop}\n{L}:")
        e(f"s_waitcnt vmcnt({(NS-3)*2})\ns_barrier")
        s.dma()
        e(f"s_sub_u32 s{cnt}, s{cnt}, 1\ns_cmp_lg_u32 s{cnt}, 0\ns_cbranch_scc1 {L}")
        extra=0; hooks=hooks or {}
        for t in range(nloop, nst-1):
            e(f"s_waitcnt vmcnt({((nst-1)-(t+1))*2+extra})\ns_barrier")
            if t in hooks:
                fn,n=hooks[t]; fn(); extra+=n
    def setup_consumer(s, vlane, tmp, s_a0):
        k=s.k; e=k.e; R=s.R; S=s.S; t0,t1,t2=tmp,tmp+1,tmp+2
        e(f"v_lshlrev_b32 v{R['vA']}, 4, v{vlane}\nv_add_u32 v{R['vA']}, s{s_a0}, v{R['vA']}")
        hs = 4 if s.kperm else 3
        e(f"v_lshrrev_b32 v{t0}, 5, v{vlane}\nv_lshlrev_b32 v{t0}, {hs}, v{t0}\nv_bfe_u32 v{t1}, v{vlane}, 2, 2\nv_add_u32 v{t0}, v{t0}, v{t1}\nv_lshlrev_b32 v{t0}, 7, v{t0}")
        e(f"v_and_b32 v{t1}, 1, v{vlane}\nv_lshlrev_b32 v{t1}, 1, v{t1}\nv_bfe_u32 v{t2}, v{vlane}, 4, 1\nv_add_u32 v{t1}, v{t1}, v{t2}")
        e(f"v_bfe_u32 v{t2}, v{vlane}, 3, 1\nv_lshlrev_b32 v{t2}, 2, v{t2}\nv_xor_b32 v{t1}, v{t1}, v{t2}")
        e(f"v_bfe_u32 v{t2}, v{vlane}, 1, 1\nv_lshlrev_b32 v{t2}, 3, v{t2}\nv_add_u32 v{t0}, v{t0}, v{t2}")
        if s.base: e(f"v_add_u32 v{t0}, {s.base}, v{t0}")
        e(f"v_lshl_add_u32 v{R['vW']}, v{t1}, 4, v{t0}")
        e(f"v_xor_b32 v{t1}, 4, v{t1}\nv_lshl_add_u32 v{R['vW']+1}, v{t1}, 4, v{t0}")
        e(f"s_mov_b32 s{S['rd']}, {s.base}\ns_mov_b32 s{S['sA']}, 0")
        for i in range(32): e(f"v_mov_b32 v{R['acc']+i}, 0")
    def aload(s, buf, ks, so):
        R=s.R; b=R['AF']+4*buf
        s.k.e(f"buffer_load_dwordx4 v[{b}:{b+3}], v{R['vA']}, s[{s.srdA}:{s.srdA+3}], s{so} offen offset:{ks*1024}")
    def a_prologue(s):
        e=s.k.e; S=s.S
        for st in range(4):
            for ks in range(4): s.aload(4*st+ks, ks, S['sA'])
            e(f"s_add_u32 s{S['sA']}, s{S['sA']}, 4096")
    def wreads(s, ks, buf, fs=(0,1)):
        e=s.k.e; R=s.R; W=R['W']+8*buf
        row = (32*(ks>>1)+8*(ks&1)) if s.kperm else 16*ks
        for f in fs:
            for t in range(2):
                e(f"ds_read_b64_tr_b16 v[{W+4*f+2*t}:{W+4*f+2*t+1}], v{R['vW']+f} offset:{(row+4*t)*128}")
    def advance_salu(s):
        e=s.k.e; S=s.S
        e(f"s_add_u32 s{S['t']}, s{S['rd']}, {BST}\ns_cmp_eq_u32 s{S['t']}, {s.base+s.NS*BST}\ns_cselect_b32 s{S['t']}, {s.base}, s{S['t']}")
        e(f"s_sub_u32 s{S['inc']}, s{S['t']}, s{S['rd']}\ns_mov_b32 s{S['rd']}, s{S['t']}")
    def cstage(s, p, tail=None, nres=0):
        e=s.k.e; R=s.R; S=s.S
        last = tail==3
        for ks in range(4):
            nxt = ks+2 if ks<2 else (None if last else ks-2)
            if ks==2 and not last:
                e("s_barrier")
                for i in range(2): e(f"v_add_u32 v{R['vW']+i}, s{S['inc']}, v{R['vW']+i}")
            vm = 15 if tail is None else (15-4*tail-ks+nres)
            n = 4 if not (last and ks==3) else 0
            e(f"s_waitcnt vmcnt({vm}) lgkmcnt({n})")
            T=R['AF']+4*(4*p+ks); W=R['W']+8*ks
            for f in range(2):
                a=R['acc']+16*f
                e(f"v_mfma_f32_32x32x16_bf16 v[{a}:{a+15}], v[{W+4*f}:{W+4*f+3}], v[{T}:{T+3}], v[{a}:{a+15}]")
                if nxt is not None: s.wreads(nxt,nxt,(f,))
                if f==0 and ks==1 and not last: s.advance_salu()
            if tail is None: s.aload(4*p+ks, ks, S['sA'])
        if tail is None: e(f"s_add_u32 s{S['sA']}, s{S['sA']}, 4096")
    def consumer(s, cnt, stamp=None, res_hook=None, nres=0):
        k=s.k; e=k.e
        if os.environ.get('CPRIO','1')!='0': e("s_setprio 1")
        e("s_barrier")
        if stamp is not None and STAMP:
            k.stamp_mid(stamp); e('s_waitcnt lgkmcnt(0)')
        s.wreads(0,0); s.wreads(1,1)
        assert s.nst%4==0
        L=k.lab("CS")
        e(f"s_mov_b32 s{cnt}, {s.nst//4-1}\n{L}:")
        for p in range(4): s.cstage(p)
        e(f"s_sub_u32 s{cnt}, s{cnt}, 1\ns_cmp_lg_u32 s{cnt}, 0\ns_cbranch_scc1 {L}")
        if res_hook: res_hook()
        for p in range(4): s.cstage(p, tail=p, nres=nres)
        if os.environ.get('CPRIO','1')!='0': e("s_setprio 0")
```

```python
from base import *
import os

def dpp_reduce(k, regs):
    seq=["row_shr:1 row_mask:0xf bank_mask:0xf","row_shr:2 row_mask:0xf bank_mask:0xf",
         "row_shr:4 row_mask:0xf bank_mask:0xf","row_shr:8 row_mask:0xf bank_mask:0xf",
         "row_bcast:15 row_mask:0xa bank_mask:0xf","row_bcast:31 row_mask:0xc bank_mask:0xf"]
    for s in seq:
        k.nop(max(0,2-(len(regs)-1)))
        for r in regs:
            k.e(f"v_add_f32_dpp v{r}, v{r}, v{r} {s}")

def gen_k0():
    XL=65536; XLS=2080; RED=XL+16*XLS; DUMMY=RED+2048
    k=Kern("k0_ln_kv_kernel", 256, 256, DUMMY+4096, vgpr=128, sgpr=64)
    e=k.e
    END=k.lab("END")
    e(f"s_cmp_ge_u32 s2, 256\ns_cbranch_scc1 {END}")
    k.stamp_begin()
    k.code_prefetch_all("k0_ln_kv_kernel", 124, 124, 60)
    k.load_ptr(4,'x'); k.load_ptr(8,'wk'); k.load_ptr(12,'wv'); k.load_ptr(24,'wq'); k.load_ptr(28,'ws')
    e("v_lshrrev_b32 v1, 6, v0\nv_and_b32 v2, 63, v0")
    e("s_and_b32 s40, s2, 7\ns_lshr_b32 s41, s2, 3\ns_lshl_b32 s40, s40, 4\ns_lshr_b32 s42, s41, 1\ns_add_u32 s32, s40, s42\ns_and_b32 s43, s41, 1")
    e("v_readfirstlane_b32 s33, v1")
    e("v_lshlrev_b32 v3, 4, v2")
    e("v_lshrrev_b32 v4, 2, v2\nv_lshlrev_b32 v4, 6, v4\nv_lshrrev_b32 v5, 5, v2\nv_lshlrev_b32 v5, 1, v5\nv_and_b32 v6, 3, v2\nv_xor_b32 v5, v5, v6\nv_lshl_add_u32 v4, v5, 4, v4")
    e("s_waitcnt lgkmcnt(0)")
    e("s_cmp_eq_u32 s43, 1\ns_cselect_b32 s8, s12, s8\ns_cselect_b32 s9, s13, s9")
    k.srd(4, 2048*2048); k.srd(8, 65536); k.srd(24, 2*MB)
    k.srd(16, 4*MB, src=28, add=WS_XN) ; k.srd(20, 64*4096, src=28, add=WS_KV); k.srd(56, 2*MB, src=28, add=WS_WQB)
    e("s_lshl_b32 s40, s32, 4\ns_lshl_b32 s41, s33, 2\ns_add_u32 s40, s40, s41\ns_lshl_b32 s34, s40, 11")
    e("s_add_u32 s44, s34, 4096")
    for r in range(4):
        so = "s34" if r<2 else "s44"
        for j in range(2):
            e(f"buffer_load_dwordx4 v[{8+8*r+4*j}:{11+8*r+4*j}], v3, s[4:7], {so} offen offset:{(r&1)*2048+1024*j}")
    e("s_lshl_b32 s35, s33, 14")
    for g in range(4):
        e(f"s_add_u32 s36, s35, {g*4096}")
        e(f"s_mov_b32 m0, s36\ns_nop 0")
        for i in range(4):
            e(f"buffer_load_dwordx4 v4, s[8:11], s36 offen offset:{1024*i} lds")
    e("s_lshl_b32 s40, s2, 2\ns_add_u32 s40, s40, s33\ns_and_b32 s41, s40, 63\ns_lshl_b32 s41, s41, 4\ns_lshr_b32 s42, s40, 6\ns_lshl_b32 s42, s42, 7\ns_lshl_b32 s52, s40, 11")
    e("v_lshrrev_b32 v112, 3, v2\nv_add_u32 v112, s41, v112\nv_lshlrev_b32 v112, 11, v112\nv_add_u32 v112, s42, v112")
    e("v_bfe_u32 v113, v2, 4, 1\nv_lshlrev_b32 v113, 2, v113\nv_and_b32 v114, 7, v2\nv_xor_b32 v113, v113, v114\nv_lshl_add_u32 v112, v113, 4, v112")
    e("s_mov_b32 s53, 16384")
    e("buffer_load_dwordx4 v[116:119], v112, s[24:27], 0 offen\nbuffer_load_dwordx4 v[120:123], v112, s[24:27], s53 offen")
    e("s_waitcnt vmcnt(18)")
    if os.environ.get('K0ST')=='1': k.stamp_mid(0)
    X=48
    for row in range(4):
        for j in range(8):
            e(f"v_lshlrev_b32 v{X+16*row+2*j}, 16, v{8+8*row+j}")
            e(f"v_and_b32 v{X+1+16*row+2*j}, 0xffff0000, v{8+8*row+j}")
    for row in range(4):
        b=X+16*row; d=40+row
        e(f"v_add_f32 v{d}, v{b}, v{b+1}")
        for i in range(2,16): e(f"v_add_f32 v{d}, v{d}, v{b+i}")
    dpp_reduce(k,[40,41,42,43])
    e(f"v_mov_b32 v112, {hex(f2u(1/1024.))}\nv_mov_b32 v113, {hex(f2u(1e-5))}")
    for row in range(4): e(f"v_readlane_b32 s{48+row}, v{40+row}, 63")
    e("s_nop 0")
    for row in range(4): e(f"v_mul_f32 v{44+row}, s{48+row}, v112")
    for row in range(4):
        b=X+16*row
        for i in range(16): e(f"v_sub_f32 v{b+i}, v{b+i}, v{44+row}")
    for row in range(4):
        b=X+16*row; d=40+row
        e(f"v_mul_f32 v{d}, v{b}, v{b}")
        for i in range(1,16): e(f"v_fmac_f32 v{d}, v{b+i}, v{b+i}")
    dpp_reduce(k,[40,41,42,43])
    e("s_nop 0")
    for row in range(4): e(f"v_readlane_b32 s{48+row}, v{40+row}, 63")
    e("s_nop 0")
    for row in range(4): e(f"v_fma_f32 v{44+row}, s{48+row}, v112, v113")
    for row in range(4): e(f"v_rsq_f32 v{44+row}, v{44+row}")
    for row in range(4):
        b=X+16*row
        for i in range(16): e(f"v_mul_f32 v{b+i}, v{b+i}, v{44+row}")
    for row in range(4):
        b=X+16*row
        for j in range(8): e(f"v_cvt_pk_bf16_f32 v{8+8*row+j}, v{b+2*j}, v{b+2*j+1}")
    e(f"s_lshl_b32 s40, s33, 2\ns_mul_i32 s40, s40, {XLS}\ns_add_u32 s40, s40, {XL}")
    e("v_add_u32 v5, s40, v3")
    for r in range(4):
        e(f"ds_write_b128 v5, v[{8+8*r}:{11+8*r}] offset:{r*XLS}")
        e(f"ds_write_b128 v5, v[{12+8*r}:{15+8*r}] offset:{r*XLS+1024}")
    e("s_and_b32 s41, s33, 1\ns_lshr_b32 s42, s33, 1")
    e("v_lshrrev_b32 v6, 4, v2\nv_and_b32 v7, 15, v2\nv_lshrrev_b32 v44, 2, v7\nv_and_b32 v45, 3, v2")
    e("v_lshl_add_u32 v44, v6, 3, v44\nv_lshlrev_b32 v44, 6, v44")
    e("v_lshrrev_b32 v46, 1, v45\ns_lshl_b32 s45, s41, 1\nv_add_u32 v46, s45, v46")
    e("v_and_b32 v47, 1, v6\nv_lshlrev_b32 v47, 1, v47\nv_xor_b32 v46, v46, v47")
    e("v_lshl_add_u32 v44, v46, 4, v44")
    e("v_and_b32 v47, 1, v45\nv_lshl_add_u32 v44, v47, 3, v44")
    e("s_lshl_b32 s45, s42, 15\nv_add_u32 v44, s45, v44")
    e(f"v_mul_u32_u24 v46, {XLS}, v7\nv_lshl_add_u32 v46, v6, 4, v46\ns_lshl_b32 s45, s42, 10\ns_add_u32 s45, s45, {XL}\nv_add_u32 v45, s45, v46")
    if os.environ.get('K0ST')=='1': k.stamp_mid(1)
    e("s_waitcnt vmcnt(0) lgkmcnt(0)")
    e("buffer_store_dwordx4 v[116:119], v3, s[56:59], s52 offen sc1\nbuffer_store_dwordx4 v[120:123], v3, s[56:59], s52 offen offset:1024 sc1")
    e("s_barrier")
    if os.environ.get('K0ST')=='2':
        k.stamp_mid(0); e("s_waitcnt lgkmcnt(0)")
    e(f"s_lshl_b32 s45, s43, 4\ns_lshl_b32 s46, s33, 2\ns_add_u32 s45, s45, s46")
    e(f"v_mul_u32_u24 v46, {XLS}, v7\nv_lshl_add_u32 v46, v6, 4, v46\ns_lshl_b32 s46, s45, 6\ns_add_u32 s46, s46, {XL}\nv_add_u32 v46, s46, v46")
    for i in range(4): e(f"ds_read_b128 v[{96+4*i}:{99+4*i}], v46 offset:{64*i}")
    e("v_lshrrev_b32 v47, 1, v6\nv_lshlrev_b32 v47, 10, v47\nv_and_b32 v112, 1, v6\nv_lshl_add_u32 v47, v112, 9, v47\nv_lshl_add_u32 v47, v7, 4, v47")
    e("s_lshr_b32 s46, s32, 1\ns_lshl_b32 s46, s46, 16\ns_and_b32 s47, s32, 1\ns_lshl_b32 s47, s47, 8\ns_add_u32 s46, s46, s47\ns_lshl_b32 s47, s45, 11\ns_add_u32 s46, s46, s47")
    e("s_waitcnt lgkmcnt(0)")
    for i in range(4):
        e(f"s_add_u32 s47, s46, {i*2048}\nbuffer_store_dwordx4 v[{96+4*i}:{99+4*i}], v47, s[16:19], s47 offen {os.environ.get('K0STF','sc1')}")
    LK=k.lab("V"); LE=k.lab("EPI")
    def gemm(swap):
        D=4
        def rd(s):
            b=48+8*(s%D)
            e(f"ds_read_b64_tr_b16 v[{b}:{b+1}], v44 offset:{s*2048}")
            e(f"ds_read_b64_tr_b16 v[{b+2}:{b+3}], v44 offset:{s*2048+256}")
            e(f"ds_read_b128 v[{b+4}:{b+7}], v45 offset:{s*64}")
        for s in range(D-1): rd(s)
        for s in range(16):
            if s+D-1<16: rd(s+D-1)
            left=min(D-1,15-s)
            e(f"s_waitcnt lgkmcnt({3*left})")
            b=48+8*(s%D)
            c = "0" if s==0 else "v[40:43]"
            if not swap: e(f"v_mfma_f32_16x16x32_bf16 v[40:43], v[{b}:{b+3}], v[{b+4}:{b+7}], {c}")
            else:        e(f"v_mfma_f32_16x16x32_bf16 v[40:43], v[{b+4}:{b+7}], v[{b}:{b+3}], {c}")
        LR=k.lab("RED");
        e(f"s_lshl_b32 s45, s41, 10\ns_add_u32 s45, s45, {RED}\nv_add_u32 v46, s45, v3")
        k.nop(4)
        e(f"s_cmp_eq_u32 s42, 0\ns_cbranch_scc1 {LR}")
        e("ds_write_b128 v46, v[40:43]\ns_waitcnt lgkmcnt(0)\ns_barrier")
        e(f"s_branch {LE}")
        e(f"{LR}:")
        e("s_barrier\nds_read_b128 v[48:51], v46\ns_waitcnt lgkmcnt(0)")
        for i in range(4): e(f"v_add_f32 v{40+i}, v{40+i}, v{48+i}")
    e(f"s_cmp_eq_u32 s43, 1\ns_cbranch_scc1 {LK} ; @alt")
    gemm(False)
    e("v_bfe_u32 v64, v7, 2, 1\nv_lshrrev_b32 v65, 3, v7\nv_and_b32 v66, 3, v7")
    e("v_lshl_add_u32 v66, v64, 3, v66\nv_lshl_add_u32 v66, v65, 2, v66\ns_and_b32 s44, s32, 1\ns_lshl_b32 s44, s44, 4\nv_add_u32 v66, s44, v66")
    e("v_lshlrev_b32 v67, 6, v66")
    e("v_lshrrev_b32 v68, 1, v6\nv_lshlrev_b32 v68, 1, v68\nv_add_u32 v68, s41, v68\nv_bfe_u32 v65, v66, 2, 2\nv_xor_b32 v68, v68, v65")
    e("v_lshl_add_u32 v67, v68, 4, v67\nv_and_b32 v68, 1, v6\nv_lshl_add_u32 v67, v68, 3, v67")
    e("s_lshr_b32 s44, s32, 1\ns_lshl_b32 s44, s44, 12")
    e("v_cvt_pk_bf16_f32 v40, v40, v41\nv_cvt_pk_bf16_f32 v41, v42, v43")
    e("buffer_store_dwordx2 v[40:41], v67, s[20:23], s44 offen")
    e(f"s_branch {LE}")
    e(f"{LK}:")
    gemm(True)
    e("v_lshrrev_b32 v65, 2, v7\nv_and_b32 v66, 3, v7\nv_lshl_add_u32 v66, v65, 3, v66\ns_lshl_b32 s44, s41, 2\nv_add_u32 v66, s44, v66")
    e("v_lshlrev_b32 v67, 6, v66")
    e("v_lshlrev_b32 v65, 1, v65\nv_add_u32 v65, s41, v65\nv_and_b32 v65, 3, v65")
    e("v_lshrrev_b32 v68, 1, v6\ns_and_b32 s44, s32, 1\ns_lshl_b32 s44, s44, 1\nv_add_u32 v68, s44, v68\nv_xor_b32 v65, v68, v65")
    e("v_lshl_add_u32 v67, v65, 4, v67\nv_and_b32 v68, 1, v6\nv_lshl_add_u32 v67, v68, 3, v67")
    e("s_lshr_b32 s44, s32, 1\ns_lshl_b32 s44, s44, 12\ns_add_u32 s44, s44, 2048")
    e("v_cvt_pk_bf16_f32 v40, v40, v41\nv_cvt_pk_bf16_f32 v41, v42, v43")
    e("buffer_store_dwordx2 v[40:41], v67, s[20:23], s44 offen")
    e(f"{LE}:")
    if os.environ.get('K0ST')=='2': k.stamp_mid(1)
    e("s_waitcnt vmcnt(0)")
    k.stamp_end(0)
    e(f"{END}:")
    e("s_endpgm")
    return k
```

```python
from base import *
from gda import *
import os
VAR=os.environ.get('K1VAR','')

QSCALE = (32**-0.5)*1.4426950408889634

def gen_k1():
    k=Kern("k1_q_attn_kernel", 256, 512, 163840, vgpr=224, sgpr=96)
    e=k.e
    END=k.lab("END")
    R=dict(vA=4,vB=8,vW=14,AF=48,W=112,acc=16)
    S=dict(w=33,sA=40,sB=41,wr=42,rd=43,inc=44,wB=46,t=47)
    SS=48; KF=80; V0=88; V1=92; P=96; Q=144; O=152; Lr=168; SEL=172; AK=176; AV0=178; AV1=179; VO=180; VCR=181; VWD=182
    ONES=184; CSV=188; WDR=196; CSACC=16; CSF=104
    BBASE=98304; QX=BBASE+5*8192; CST=131072; CSS=CST+4*7168; DUM=CSS+1792+256
    e(f"s_cmp_ge_u32 s2, 256\ns_cbranch_scc1 {END}")
    k.stamp_begin()
    k.load_ptr(28,'ws'); k.load_ptr(20,'wg'); k.load_ptr(22,'wu'); k.load_ptr(48,'wo'); k.load_ptr(52,'wd')
    e("v_lshrrev_b32 v1, 6, v0\nv_and_b32 v2, 63, v0")
    e("s_and_b32 s30, s2, 7\ns_lshr_b32 s31, s2, 3")
    if os.environ.get('K1MAP','42')=='81':
        e("s_and_b32 s32, s31, 1\ns_lshl_b32 s30, s30, 1\ns_add_u32 s34, s30, s32")
        e("s_lshr_b32 s35, s31, 1")
    else:
        e("s_lshr_b32 s32, s30, 1\ns_lshl_b32 s32, s32, 2\ns_and_b32 s34, s31, 3\ns_add_u32 s34, s34, s32")
        e("s_and_b32 s32, s30, 1\ns_lshl_b32 s32, s32, 3\ns_lshr_b32 s35, s31, 2\ns_add_u32 s35, s35, s32")
    e("v_readfirstlane_b32 s58, v1")
    e("v_lshlrev_b32 v3, 4, v2")
    e("s_and_b32 s33, s58, 3")
    e("s_lshl_b32 s37, s35, 7")
    e("s_lshl_b32 s38, s33, 13")
    e("v_and_b32 v4, 31, v2\nv_bfe_u32 v5, v2, 2, 2\nv_lshrrev_b32 v6, 5, v2\nv_xor_b32 v5, v5, v6")
    e(f"v_lshlrev_b32 v4, 6, v4\nv_lshl_add_u32 v{AK}, v5, 4, v4\nv_xor_b32 v5, 2, v5\nv_lshl_add_u32 v{AK+1}, v5, 4, v4")
    e(f"v_mov_b32 v{AV0}, v{AK}\nv_mov_b32 v{AV1}, v{AK+1}")
    e("v_bfe_u32 v4, v2, 2, 1\nv_bfe_u32 v5, v2, 4, 1\nv_xor_b32 v4, v4, v5\nv_and_b32 v5, 3, v2\nv_or_b32 v4, v4, v5")
    e("v_mov_b32 v5, 0x3f803f80\nv_cmp_eq_u32 vcc, 0, v4\ns_nop 1")
    e(f"v_cndmask_b32 v{SEL}, 0, v5, vcc")
    for i in range(1,4): e(f"v_mov_b32 v{SEL+i}, v{SEL}")
    e(f"s_lshl_b32 s47, s34, 2\ns_add_u32 s47, s47, s33\ns_lshl_b32 s47, s47, 6\ns_lshr_b32 s30, s58, 2\ns_lshl_b32 s31, s35, 1\ns_add_u32 s30, s30, s31\ns_lshl_b32 s30, s30, 1\ns_add_u32 s47, s47, s30\ns_lshl_b32 s47, s47, 10")
    e(f"v_add_u32 v{VO}, s47, v3")
    for i in range(16): e(f"v_mov_b32 v{O+i}, 0")
    for i in range(4): e(f"v_mov_b32 v{Lr+i}, 0")
    e("s_and_b32 s30, s2, 3\ns_lshl_b32 s30, s30, 8\ns_lshl_b32 s31, s33, 6\ns_add_u32 s30, s30, s31\ns_mul_i32 s30, s30, 7168")
    e("s_bfe_u32 s31, s2, 0x50002\ns_mul_i32 s31, s31, 224\ns_add_u32 s30, s30, s31")
    for i in range(7):
        e(f"v_add_u32 v5, {64*i}, v2\nv_mul_u32_u24 v6, 4682, v5\nv_lshrrev_b32 v6, 16, v6\nv_mul_u32_u24 v7, 14, v6\nv_sub_u32 v7, v5, v7")
        e(f"v_mul_u32_u24 v6, 7168, v6\nv_lshl_add_u32 v6, v7, 4, v6\nv_add_u32 v{CSV+i}, s30, v6")
    e(f"s_mul_i32 s56, s33, 7168\ns_add_u32 s56, s56, {CST}")
    e(f"v_lshrrev_b32 v5, 2, v2\nv_mul_u32_u24 v5, 224, v5\nv_and_b32 v6, 3, v2\nv_lshl_add_u32 v5, v6, 3, v5\nv_add_u32 v{VCR}, s56, v5")
    for i in range(4): e(f"v_mov_b32 v{ONES+i}, 0x3f803f80")
    e("s_lshr_b32 s62, s2, 3\ns_lshl_b32 s62, s62, 16\ns_lshl_b32 s63, s33, 14\ns_add_u32 s62, s62, s63")
    e("s_lshl_b32 s63, s2, 2\ns_add_u32 s63, s63, s33\ns_and_b32 s30, s63, 63\ns_mul_i32 s30, s30, 56\ns_lshr_b32 s31, s63, 6\ns_lshl_b32 s31, s31, 7\ns_mul_i32 s63, s63, 7168")
    e(f"v_lshrrev_b32 v5, 3, v2\nv_add_u32 v5, s30, v5\nv_lshlrev_b32 v5, 11, v5\nv_add_u32 v5, s31, v5")
    e(f"v_bfe_u32 v6, v2, 4, 1\nv_lshlrev_b32 v6, 2, v6\nv_and_b32 v7, 7, v2\nv_xor_b32 v6, v6, v7\nv_lshl_add_u32 v{VWD}, v6, 4, v5")
    g=GDA(k,R,S,4,8,8,16,True,8192,False,base=BBASE)
    LCONS=k.lab("CONS"); LJ=k.lab("JOIN")
    e(f"s_cmp_lt_u32 s58, 4\ns_cbranch_scc1 {LCONS} ; @alt")
    def kv_dma(c):
        for gi in range(2):
            e(f"s_add_u32 s47, s38, {c*32768+gi*4096}")
            e(f"s_add_u32 m0, s38, {(c&3)*32768+gi*4096}\ns_nop 0")
            for i in range(4):
                e(f"buffer_load_dwordx4 v3, s[12:15], s47 offen offset:{i*1024} lds")
    e("s_lshl_b32 s36, s35, 17")
    g.setup_loader(2, 60, 2048, 36)
    e("s_waitcnt lgkmcnt(0)")
    k.srd(8, 2*MB, src=28, add=WS_WQB)
    k.srd(12, 64*4096, src=28, add=WS_KV); k.srd(16, 4*MB, src=28, add=WS_O)
    g.loader(39, hooks={12:(lambda:kv_dma(0),8)})
    e("s_waitcnt vmcnt(0)\ns_barrier")
    e(f"s_lshl_b32 s47, s33, 11\ns_add_u32 s47, s47, {QX}\nv_add_u32 v4, s47, v3")
    e(f"ds_read_b128 v[{Q}:{Q+3}], v4\nds_read_b128 v[{Q+4}:{Q+7}], v4 offset:1024")
    kv_dma(1)
    e(f"s_branch {LJ}")
    e(f"{LCONS}:")
    e(f"s_lshl_b32 s36, s34, 2\ns_add_u32 s36, s36, s33\ns_lshl_b32 s36, s36, 16")
    g.setup_consumer(2, 60, 36)
    e("s_waitcnt lgkmcnt(0)")
    k.srd(4, 4*MB, src=28, add=WS_XN)
    g.a_prologue()
    k.srd(12, 64*4096, src=28, add=WS_KV); k.srd(16, 4*MB, src=28, add=WS_O)
    e("s_cmp_ge_u32 s2, 128\ns_cselect_b32 s20, s22, s20\ns_cselect_b32 s21, s23, s21")
    k.srd(20, 3584*1024*2); k.srd(48, 2*MB); k.srd(52, 3584*1024*2); k.srd(72, 3584*2048, src=28, add=WS_WDB)
    k.srd(24, 4*7168*4, src=28, add=WS_CS)
    g.consumer(39, stamp=(1 if os.environ.get('K1ST')=='1' else None))
    if os.environ.get('K1ST')=='2': k.stamp_mid(1)
    e(f"v_mov_b32 v60, {hex(f2u(QSCALE))}")
    k.nop(12)
    for i in range(32): e(f"v_mul_f32 v{R['acc']+i}, v{R['acc']+i}, v60")
    for i in range(8): e(f"v_cvt_pk_bf16_f32 v{Q+i}, v{R['acc']+2*i}, v{R['acc']+2*i+1}")
    for i in range(8): e(f"v_cvt_pk_bf16_f32 v{64+i}, v{R['acc']+16+2*i}, v{R['acc']+16+2*i+1}")
    e(f"s_lshl_b32 s47, s33, 11\ns_add_u32 s47, s47, {QX}\nv_add_u32 v4, s47, v3")
    e(f"ds_write_b128 v4, v[64:67]\nds_write_b128 v4, v[68:71] offset:1024")
    e("s_waitcnt lgkmcnt(0)\ns_barrier")
    e(f"{LJ}:")
    k.stamp_mid(0)
    def rdK(tl):
        for m in range(2): e(f"ds_read_b128 v[{KF+4*m}:{KF+4*m+3}], v{AK+m} offset:{tl*4096}")
    def rdV0(tl): e(f"ds_read_b128 v[{V0}:{V0+3}], v{AV0} offset:{tl*4096+2048}")
    def rdV1(tl): e(f"ds_read_b128 v[{V1}:{V1+3}], v{AV1} offset:{tl*4096+2048}")
    rdK(0); rdV0(0)
    for i in range(4): e(f"v_mov_b32 v{P+4+i}, 0\nv_mov_b32 v{V1+i}, 0")
    e("s_waitcnt lgkmcnt(0)")
    def mf(d,a,b,c=None):
        cs = c if c else f"v[{d}:{d+15}]"
        e(f"v_mfma_f32_32x32x16_bf16 v[{d}:{d+15}], v[{a}:{a+3}], v[{b}:{b+3}], {cs}")
    def rs(b): e(f"v_mfma_f32_16x16x32_bf16 v[{Lr}:{Lr+3}], v[{SEL}:{SEL+3}], v[{b}:{b+3}], v[{Lr}:{Lr+3}]")
    mf(SS,KF,Q,"0"); mf(SS,KF+4,Q+4)
    rdK(1)
    e("s_waitcnt lgkmcnt(0)")
    k.nop(10)
    PAT="W3 E0 E1 PV1p RV1 E2 E3 C0 E4 W2 QK0 E5 C1 E6 E7 RS1p C2 E8 QK1 RK C3 E9 E10 E11 W3 PV0 RV0 C4 E12 E13 C5 RS0 E14 E15 C6 C7".split()
    def slot(tl):
        par=tl&1
        Sc=SS+16*par; Sn=SS+16*(1-par)
        if 'tog' in VAR: e(f"s_setprio {par}")
        for t in PAT:
            if t[0]=='E': i=int(t[1:]); e(f"v_exp_f32 v{Sc+i}, v{Sc+i}")
            elif t[0]=='C': i=int(t[1:]); e(f"v_cvt_pk_bf16_f32 v{P+i}, v{Sc+2*i}, v{Sc+2*i+1}")
            elif t[0]=='W':
                if 'nowait' not in VAR: e(f"s_waitcnt lgkmcnt({t[1]})")
            elif t=='QK0': mf(Sn,KF,Q,"0")
            elif t=='QK1': mf(Sn,KF+4,Q+4)
            elif t=='PV0': mf(O,V0,P)
            elif t=='PV1p': mf(O,V1,P+4)
            elif t=='RS0': rs(P)
            elif t=='RS1p': rs(P+4)
            elif 'noread' in VAR: pass
            elif t=='RV1': rdV1(tl)
            elif t=='RK': rdK((tl+2)&7)
            elif t=='RV0': rdV0((tl+1)&7)
    LT0=k.lab("T0"); LT6=k.lab("T6"); LX=k.lab("X"); LG1=k.lab("G1")
    if 'sprio' in VAR:
        LP=k.lab("P"); e(f"s_cmp_lt_u32 s58, 4\ns_cbranch_scc1 {LP}\ns_setprio 1\n{LP}:")
    e("s_mov_b32 s39, 0")
    e(f"s_branch {LT0}")
    e(f"{LT6}:")
    e(f"v_add_u32 v{AK}, s59, v{AK}\nv_add_u32 v{AK+1}, s59, v{AK+1}")
    slot(6)
    e(f"v_add_u32 v{AV0}, s59, v{AV0}")
    slot(7)
    e(f"v_add_u32 v{AV1}, s59, v{AV1}")
    e(f"s_cmp_eq_u32 s39, 8\ns_cbranch_scc1 {LX} ; @exit")
    e(f"{LT0}:")
    slot(0); slot(1)
    LMR=k.lab("MR"); MID=[k.lab(f"MID{c}") for c in range(8)]; LMD=k.lab("MD")
    e(f"s_cmp_lt_u32 s58, 4\ns_cbranch_scc1 {LMD} ; @alt")
    e(f"{LMR}:")
    for tl in range(2,6): slot(tl)
    e("s_and_b32 s47, s39, 3\ns_mov_b32 s59, 0xfffe8000\ns_cmp_eq_u32 s47, 3\ns_cselect_b32 s59, s59, 0x8000")
    e(f"s_cmp_ge_u32 s58, 4\ns_cbranch_scc1 {LG1} ; @g1")
    LNB=k.lab("NB")
    e(f"s_cmp_eq_u32 s39, 7\ns_cbranch_scc1 {LNB}")
    e("s_barrier")
    e(f"{LNB}:")
    e(f"s_add_u32 s39, s39, 1\ns_branch {LT6}")
    e(f"{LG1}:")
    LG1c=k.lab("G1c")
    e(f"s_cmp_eq_u32 s39, 7\ns_cbranch_scc1 {LG1c}")
    e("s_waitcnt vmcnt(0)\ns_barrier")
    e(f"s_cmp_ge_u32 s39, 6\ns_cbranch_scc1 {LG1c}")
    e("s_add_u32 s30, s39, 2\ns_lshl_b32 s31, s30, 15\ns_and_b32 s30, s30, 3\ns_lshl_b32 s30, s30, 15\ns_add_u32 s30, s30, s38\ns_add_u32 s31, s31, s38")
    for gi in range(2):
        e(f"s_add_u32 m0, s30, {gi*4096}\ns_add_u32 s47, s31, {gi*4096}")
        for i in range(4):
            e(f"buffer_load_dwordx4 v3, s[12:15], s47 offen offset:{i*1024} lds")
    e(f"{LG1c}:")
    e(f"s_add_u32 s39, s39, 1\ns_branch {LT6}")
    def cs_dma(r):
        e(f"s_mov_b32 s30, {r*32*7168}")
        for i in range(7):
            e(f"s_add_u32 m0, s56, {i*1024}\ns_nop 0")
            e(f"buffer_load_dwordx4 v{CSV+i}, s[20:23], s30 offen lds")
    def cs_mfma(r):
        for v in range(7):
            for t in range(2):
                e(f"ds_read_b64_tr_b16 v[{CSF+4*v+2*t}:{CSF+4*v+2*t+1}], v{VCR} offset:{v*32+t*3584}")
        e("s_waitcnt lgkmcnt(0)")
        for v in range(7):
            a=CSACC+4*v
            c="0" if r==0 else f"v[{a}:{a+3}]"
            e(f"v_mfma_f32_16x16x32_bf16 v[{a}:{a+3}], v[{CSF+4*v}:{CSF+4*v+3}], v[{ONES}:{ONES+3}], {c}")
    def prefetch(srd, base_s, first, n):
        e(f"s_mov_b32 m0, {DUM}")
        for i in range(n):
            e(f"s_add_u32 s47, s{base_s}, {(first+i)*1024}")
            e(f"buffer_load_dwordx4 v3, s[{srd}:{srd+3}], s47 offen lds")
    side='noside' not in VAR
    e(f"{LMD}:")
    if side:
        for c in (1,3,4,5,6,7):
            e(f"s_cmp_eq_u32 s39, {c}\ns_cbranch_scc1 {MID[c]}")
    e(f"s_branch {LMR}")
    for c in (1,3,4,5,6,7):
        if not side: break
        e(f"{MID[c]}:")
        if c==1: cs_dma(0)
        if c==3:
            e("s_waitcnt vmcnt(0)"); cs_mfma(0); cs_dma(1)
        if c==4:
            for i in range(7):
                e(f"s_mov_b32 s30, {i*8*2048}\nbuffer_load_dwordx4 v[{WDR+4*i}:{WDR+4*i+3}], v{VWD}, s[52:55], s30 offen")
        if c==5:
            e("s_waitcnt vmcnt(7)"); cs_mfma(1)
            e(f"v_lshrrev_b32 v4, 4, v2\nv_lshlrev_b32 v4, 4, v4\ns_mul_i32 s30, s33, 448\ns_add_u32 s30, s30, {CSS}\nv_add_u32 v4, s30, v4")
            e("v_and_b32 v5, 15, v2\nv_cmp_eq_u32 vcc, 0, v5\ns_and_saveexec_b64 s[66:67], vcc")
            k.nop(2)
            for v in range(7): e(f"ds_write_b128 v4, v[{CSACC+4*v}:{CSACC+4*v+3}] offset:{v*64}")
            e("s_mov_b64 exec, s[66:67]\ns_waitcnt lgkmcnt(0)")
        if c==6:
            e("s_waitcnt vmcnt(0)")
            for i in range(7):
                e(f"s_add_u32 s30, s63, {i*1024}\nbuffer_store_dwordx4 v[{WDR+4*i}:{WDR+4*i+3}], v3, s[72:75], s30 offen {os.environ.get('WDST','sc1')}")
            LS=k.lab("CSS")
            e("v_cmp_gt_u32 vcc, 112, v0\ns_and_saveexec_b64 s[66:67], vcc")
            e(f"s_cbranch_execz {LS}")
            e(f"v_lshlrev_b32 v4, 2, v0\nv_add_u32 v4, {CSS}, v4")
            for j in range(4): e(f"ds_read_b32 v{16+j}, v4 offset:{j*448}")
            e("s_and_b32 s30, s2, 3\ns_mul_i32 s30, s30, 28672\ns_lshr_b32 s31, s2, 7\ns_mul_i32 s31, s31, 14336\ns_add_u32 s30, s30, s31")
            e("s_bfe_u32 s31, s2, 0x50002\ns_mul_i32 s31, s31, 448\ns_add_u32 s30, s30, s31")
            e("v_lshlrev_b32 v4, 2, v0\ns_waitcnt lgkmcnt(0)")
            e("v_add_f32 v16, v16, v17\nv_add_f32 v18, v18, v19\nv_add_f32 v16, v16, v18")
            e("buffer_store_dword v16, v4, s[24:27], s30 offen")
            e(f"{LS}:\ns_mov_b64 exec, s[66:67]")
            prefetch(48,62,0,8)
        if c==7:
            prefetch(48,62,8,8)
            k.code_prefetch("k2_wo_kernel", 4864, 4, 132, 76)
        e(f"s_branch {LMR}")
    e(f"{LX}:")
    if os.environ.get('K1ST') not in ('1','2'): k.stamp_mid(1)
    e("s_waitcnt lgkmcnt(0)")
    mf(O,V1,P+4); rs(P+4)
    k.nop(12)
    LFB=k.lab("FB"); LFIN=k.lab("FIN")
    e(f"v_mov_b32 v8, 0")
    for i in range(16): e(f"v_fmac_f32 v8, 0, v{O+i}")
    e(f"v_mov_b32 v9, {hex(f2u(2.0**-60))}\nv_mov_b32 v10, {hex(f2u(2.0**60))}")
    e(f"v_cmp_o_f32 s[64:65], v8, v8")
    e(f"v_cmp_le_f32 s[66:67], v9, v{Lr}")
    e(f"v_cmp_ge_f32 s[70:71], v10, v{Lr}")
    e("s_and_b64 s[64:65], s[64:65], s[66:67]\ns_and_b64 s[64:65], s[64:65], s[70:71]")
    e(f"s_cmp_eq_u64 s[64:65], exec\ns_cbranch_scc0 {LFB}")
    e(f"{LFIN}:")
    e(f"v_rcp_f32 v8, v{Lr}")
    e("s_nop 0")
    for i in range(16): e(f"v_mul_f32 v{O+i}, v{O+i}, v8")
    for i in range(8): e(f"v_cvt_pk_bf16_f32 v{16+i}, v{O+2*i}, v{O+2*i+1}")
    for j in range(2):
        e(f"buffer_store_dwordx4 v[{16+4*j}:{19+4*j}], v{VO}, s[16:19], 0 offen offset:{j*1024} {os.environ.get('K1STF','sc1')}")
    e("s_waitcnt vmcnt(0)")
    k.stamp_end(1)
    e("s_endpgm")
    e(f"{LFB}:")
    e("s_waitcnt vmcnt(0)")
    e("v_and_b32 v8, 31, v2\nv_bfe_u32 v9, v2, 2, 2\nv_lshrrev_b32 v10, 5, v2\nv_xor_b32 v9, v9, v10")
    e(f"v_lshlrev_b32 v8, 6, v8\nv_lshl_add_u32 v{AK}, v9, 4, v8\nv_xor_b32 v9, 2, v9\nv_lshl_add_u32 v{AK+1}, v9, 4, v8")
    e("v_mov_b32 v8, 0xff800000")
    F1=k.lab("F1"); F2=k.lab("F2")
    e(f"s_mov_b32 s47, 0\n{F1}:")
    for m in range(2): e(f"buffer_load_dwordx4 v[{KF+4*m}:{KF+4*m+3}], v{AK+m}, s[12:15], s47 offen")
    e("s_waitcnt vmcnt(0)")
    mf(SS,KF,Q,"0"); mf(SS,KF+4,Q+4)
    k.nop(12)
    for i in range(16): e(f"v_max_f32 v8, v8, v{SS+i}")
    e(f"s_add_u32 s47, s47, 4096\ns_cmp_lt_u32 s47, {64*4096}\ns_cbranch_scc1 {F1}")
    e("v_mov_b32 v10, v8\ns_nop 1\nv_permlane32_swap_b32 v8, v10\ns_nop 1\nv_max_f32 v8, v8, v10")
    for i in range(16): e(f"v_mov_b32 v{O+i}, 0")
    for i in range(4): e(f"v_mov_b32 v{Lr+i}, 0")
    e(f"s_mov_b32 s47, 0\n{F2}:")
    for m in range(2): e(f"buffer_load_dwordx4 v[{KF+4*m}:{KF+4*m+3}], v{AK+m}, s[12:15], s47 offen")
    e(f"buffer_load_dwordx4 v[{V0}:{V0+3}], v{AK}, s[12:15], s47 offen offset:2048")
    e(f"buffer_load_dwordx4 v[{V1}:{V1+3}], v{AK+1}, s[12:15], s47 offen offset:2048")
    e("s_waitcnt vmcnt(0)")
    mf(SS,KF,Q,"0"); mf(SS,KF+4,Q+4)
    k.nop(12)
    for i in range(16): e(f"v_sub_f32 v{SS+i}, v{SS+i}, v8")
    for i in range(16): e(f"v_exp_f32 v{SS+i}, v{SS+i}")
    e("s_nop 0")
    for i in range(8): e(f"v_cvt_pk_bf16_f32 v{P+i}, v{SS+2*i}, v{SS+2*i+1}")
    e("s_nop 1")
    mf(O,V0,P); mf(O,V1,P+4); rs(P); rs(P+4)
    k.nop(12)
    e(f"s_add_u32 s47, s47, 4096\ns_cmp_lt_u32 s47, {64*4096}\ns_cbranch_scc1 {F2}")
    e(f"s_branch {LFIN}")
    e(f"{END}:")
    e("s_endpgm")
    return k
```

```python
from base import *
from gda import *
import os

def common(name, kidx, nst, NS):
    k=Kern(name, 256, 512, NS*BST+(0 if name.startswith('k2') else 16384), vgpr=208, sgpr=80)
    return k

def h_addr(k, vdst, t, s_m, s_n, s_w):
    e=k.e
    e(f"s_lshr_b32 s30, s{s_m}, 1\ns_lshl_b32 s30, s30, 5\ns_lshl_b32 s31, s{s_n}, 1\ns_add_u32 s30, s30, s31\ns_lshl_b32 s30, s30, 14")
    e(f"s_and_b32 s31, s{s_m}, 1\ns_lshl_b32 s31, s31, 13\ns_add_u32 s30, s30, s31\ns_lshl_b32 s31, s{s_w}, 11\ns_add_u32 s30, s30, s31")
    e(f"v_bfe_u32 v{t}, v2, 4, 1\nv_lshlrev_b32 v{t}, 10, v{t}\nv_and_b32 v{t+1}, 15, v2\nv_lshl_add_u32 v{t}, v{t+1}, 4, v{t}")
    e(f"v_lshrrev_b32 v{t+1}, 5, v2\nv_lshl_add_u32 v{t}, v{t+1}, 3, v{t}\nv_add_u32 v{vdst}, s30, v{t}")
    for g in range(1,4): e(f"v_add_u32 v{vdst+g}, {256*g}, v{vdst}")

def gen_gemm(kind):
    isWo = kind=='wo'
    nst = 16 if isWo else 56
    NS=10
    name = "k2_wo_kernel" if isWo else "k4_down_kernel"
    kidx = 2 if isWo else 4
    k=common(name,kidx,nst,NS); e=k.e
    END=k.lab("END")
    R=dict(vA=4,vB=8,vW=14,AF=128,W=96,acc=40)
    S=dict(w=33,sA=40,sB=41,wr=42,rd=43,inc=44,wB=46,t=47,big=52,st=53,ea=54)
    RES=72; VH=88; VOUT=92; VST=93
    e(f"s_cmp_ge_u32 s2, 256\ns_cbranch_scc1 {END}")
    k.stamp_begin()
    k.load_ptr(28,'ws')
    if isWo: k.load_ptr(8,'wo')
    k.load_ptr(20,'x' if isWo else 'out')
    e("v_lshrrev_b32 v1, 6, v0\nv_and_b32 v2, 63, v0")
    e("s_and_b32 s30, s2, 7\ns_lshr_b32 s31, s2, 3")
    if isWo:
        e("s_and_b32 s32, s31, 1\ns_lshl_b32 s30, s30, 1\ns_add_u32 s34, s30, s32\ns_lshr_b32 s35, s31, 1")
    else:
        e("s_lshr_b32 s32, s30, 1\ns_lshl_b32 s32, s32, 2\ns_and_b32 s34, s31, 3\ns_add_u32 s34, s34, s32")
        e("s_and_b32 s32, s30, 1\ns_lshl_b32 s32, s32, 3\ns_lshr_b32 s35, s31, 2\ns_add_u32 s35, s35, s32")
    e("v_readfirstlane_b32 s58, v1")
    e("s_lshl_b32 s37, s35, 7")
    if not isWo: e(f"s_mul_i32 s38, s35, {3584*128}")
    NKS=64 if isWo else 224
    e("s_and_b32 s33, s58, 3")
    if isWo: g=GDA(k,R,S,4,8,NS,nst,False,64*2048,True)
    else:    g=GDA(k,R,S,4,8,NS,nst,True,8192,False)
    LCONS=k.lab("CONS")
    e(f"s_cmp_lt_u32 s58, 4\ns_cbranch_scc1 {LCONS} ; @alt")
    g.setup_loader(2, 60, 2048, 37 if isWo else 38)
    e("s_waitcnt lgkmcnt(0)")
    if isWo: k.srd(8, 2*MB)
    else:    k.srd(8, 3584*2048, src=28, add=WS_WDB)
    g.loader(39)
    if isWo: k.code_prefetch("k3_gateup_kernel", 12288, 4, 12, 56)
    if os.environ.get('LDST'): k.stamp_end(kidx, 256)
    e("s_endpgm")
    e(f"{LCONS}:")
    h_addr(k, VH, 60, 34, 35, 33)
    e(f"s_lshl_b32 s30, s34, 7\ns_lshl_b32 s31, s33, 5\ns_add_u32 s30, s30, s31\nv_and_b32 v60, 31, v2\nv_add_u32 v61, s30, v60\nv_lshlrev_b32 v60, 11, v61")
    e(f"v_lshrrev_b32 v62, 5, v2\nv_lshl_add_u32 v60, v62, 5, v60\nv_add_u32 v{VOUT}, s37, v60")
    e("s_mov_b32 s48, 16384")
    if isWo: e(f"v_lshlrev_b32 v61, 3, v61\ns_lshl_b32 s30, s35, 14\nv_add_u32 v{VST}, s30, v61")
    e(f"s_lshl_b32 s36, s34, 2\ns_add_u32 s36, s36, s33\ns_mul_i32 s36, s36, {NKS*1024}")
    g.setup_consumer(2, 60, 36)
    e("s_waitcnt lgkmcnt(0)")
    if isWo: k.srd(4, 4*MB, src=28, add=WS_O)
    else:    k.srd(4, 2048*3584*2, src=28, add=WS_ACT)
    k.srd(12, 4*MB, src=28, add=WS_H)
    k.srd(20, 4*MB)
    if isWo: k.srd(16, 2048*128, src=28, add=WS_ST)
    def res_loads():
        if isWo:
            for f in range(2):
                for j in range(2):
                    e(f"buffer_load_dwordx4 v[{RES+8*f+4*j}:{RES+8*f+4*j+3}], v{VOUT}, s[20:23], 0 offen offset:{f*64+j*16}")
        else:
            for f in range(2):
                so = "0" if f==0 else "s48"
                for g4 in range(4):
                    e(f"buffer_load_dwordx2 v[{RES+8*f+2*g4}:{RES+8*f+2*g4+1}], v{VH+g4}, s[12:15], {so} offen")
    if os.environ.get('LAT'):
        k.stamp_mid(0); e("s_waitcnt lgkmcnt(0)")
        g.aload(0,0,S['sA']); e("s_waitcnt vmcnt(0)"); k.stamp_mid(1); e("s_waitcnt lgkmcnt(0)")
    g.a_prologue()
    g.consumer(39, stamp=(None if os.environ.get('LAT') else 0), res_hook=res_loads, nres=4 if isWo else 8)
    if not os.environ.get('LAT'): k.stamp_mid(1)
    A=R['acc']
    e("s_waitcnt vmcnt(0)")
    for f in range(2):
        for j in range(8):
            e(f"v_lshlrev_b32 v{16+2*j}, 16, v{RES+8*f+j}\nv_and_b32 v{17+2*j}, 0xffff0000, v{RES+8*f+j}")
        if f==0: k.nop(2)
        for i in range(16): e(f"v_add_f32 v{A+16*f+i}, v{A+16*f+i}, v{16+i}")
    for f in range(2):
        for j in range(8): e(f"v_cvt_pk_bf16_f32 v{RES+8*f+j}, v{A+16*f+2*j}, v{A+16*f+2*j+1}")
    if isWo:
        for f in range(2):
            so = "0" if f==0 else "s48"
            for g4 in range(4):
                e(f"buffer_store_dwordx2 v[{RES+8*f+2*g4}:{RES+8*f+2*g4+1}], v{VH+g4}, s[12:15], {so} offen {os.environ.get('K2STF','sc1')}")
        e(f"v_add_f32 v16, v{A}, v{A+1}")
        for i in range(2,32): e(f"v_add_f32 v16, v16, v{A+i}")
        e("v_mov_b32 v17, v16\ns_nop 1\nv_permlane32_swap_b32 v16, v17\ns_nop 1\nv_add_f32 v16, v16, v17")
        e(f"v_mul_f32 v18, {hex(f2u(1/64.))}, v16")
        for i in range(32): e(f"v_sub_f32 v{A+i}, v{A+i}, v18")
        e(f"v_mul_f32 v17, v{A}, v{A}")
        for i in range(1,32): e(f"v_fmac_f32 v17, v{A+i}, v{A+i}")
        e("v_mov_b32 v19, v17\ns_nop 1\nv_permlane32_swap_b32 v17, v19\ns_nop 1\nv_add_f32 v17, v17, v19")
        e("v_cmp_gt_u32 vcc, 32, v2\ns_and_saveexec_b64 s[50:51], vcc")
        e(f"buffer_store_dwordx2 v[16:17], v{VST}, s[16:19], 0 offen")
        e("s_mov_b64 exec, s[50:51]")
    else:
        TB=NS*BST
        e(f"s_lshl_b32 s30, s33, 12\ns_add_u32 s30, s30, {TB}")
        e("v_and_b32 v16, 31, v2\nv_lshlrev_b32 v17, 7, v16\nv_add_u32 v17, s30, v17")
        e("v_lshrrev_b32 v18, 5, v2\nv_lshlrev_b32 v18, 1, v18\nv_and_b32 v19, 7, v2")
        for f in range(2):
            for j in range(2):
                e(f"v_or_b32 v20, {4*f+j}, v18\nv_xor_b32 v20, v20, v19\nv_lshl_add_u32 v20, v20, 4, v17")
                e(f"ds_write_b128 v20, v[{RES+8*f+4*j}:{RES+8*f+4*j+3}]")
        e("v_lshrrev_b32 v16, 3, v2\nv_and_b32 v18, 7, v2\nv_xor_b32 v19, v18, v16\nv_lshlrev_b32 v17, 7, v16\nv_lshl_add_u32 v17, v19, 4, v17\nv_add_u32 v17, s30, v17")
        e("s_lshl_b32 s30, s34, 7\ns_lshl_b32 s31, s33, 5\ns_add_u32 s30, s30, s31\nv_add_u32 v16, s30, v16\nv_lshlrev_b32 v16, 11, v16\nv_lshl_add_u32 v16, v18, 4, v16\nv_add_u32 v16, s37, v16")
        e("s_waitcnt lgkmcnt(0)")
        for i in range(4): e(f"ds_read_b128 v[{24+4*i}:{27+4*i}], v17 offset:{i*1024}")
        for i in range(4):
            e(f"s_waitcnt lgkmcnt({3-i})\ns_mov_b32 s31, {i*8*2048}")
            e(f"buffer_store_dwordx4 v[{24+4*i}:{27+4*i}], v16, s[20:23], s31 offen {os.environ.get('K4STF','sc1')}")
    e("s_waitcnt vmcnt(0)")
    if not os.environ.get('LDST'): k.stamp_end(kidx)
    e(f"{END}:")
    e("s_endpgm")
    return k
def gen_k2(): return gen_gemm('wo')
def gen_k4(): return gen_gemm('down')
```

```python
from base import *
import os, math
VAR=os.environ.get('K3VAR','')
SLOT=30720; NS=5
ST_OFF=NS*SLOT
CS_OFF=ST_OFF+4096
C0=-2.0*1.4426950408889634*math.sqrt(2.0/math.pi)
C1=C0*0.044715

def gen_k3():
    k=Kern("k3_gateup_kernel", 256, 256, CS_OFF+1024, vgpr=256, agpr=120, sgpr=96)
    e=k.e
    END=k.lab("END")
    ACC=32; TB=0; WB=32
    def acc(v,tf): return ACC+4*(4*v+tf)
    e(f"s_cmp_ge_u32 s2, 256\ns_cbranch_scc1 {END}")
    k.stamp_begin()
    k.load_ptr(28,'ws'); k.load_ptr(8,'wg'); k.load_ptr(10,'wu')
    e("v_lshrrev_b32 v1, 6, v0\nv_and_b32 v2, 63, v0")
    e("s_and_b32 s30, s2, 7\ns_lshr_b32 s31, s2, 3")
    e("s_and_b32 s32, s30, 1\ns_lshl_b32 s32, s32, 2\ns_and_b32 s34, s31, 3\ns_add_u32 s34, s34, s32")
    e("s_lshr_b32 s32, s30, 1\ns_lshl_b32 s32, s32, 3\ns_lshr_b32 s35, s31, 2\ns_add_u32 s35, s35, s32")
    e("v_readfirstlane_b32 s33, v1")
    e("s_lshl_b32 s36, s34, 11\nv_lshlrev_b32 v3, 3, v0")
    e("v_min_u32 v11, 223, v0\nv_cmp_le_u32 vcc, 112, v11")
    e("v_mov_b32 v13, 3472\nv_mov_b32 v12, 0\nv_cndmask_b32 v12, v12, v13, vcc\nv_add_u32 v12, v12, v11\ns_mul_i32 s37, s35, 112\nv_add_u32 v12, s37, v12\nv_lshlrev_b32 v28, 2, v12")
    e("s_lshl_b32 s40, s34, 19")
    e("s_lshl_b32 s37, s33, 12\nv_lshlrev_b32 v10, 4, v2\nv_add_u32 v4, s37, v10")
    e("s_and_b32 s37, s33, 1\ns_lshl_b32 s37, s37, 2\ns_mul_i32 s38, s35, 224")
    for i in range(4):
        e(f"s_add_u32 s39, s37, {i}\ns_min_u32 s39, s39, 6\ns_lshl_b32 s{52+i}, s39, 10\ns_lshl_b32 s39, s39, 6")
        e(f"v_add_u32 v10, s39, v2\nv_mul_u32_u24 v11, 4682, v10\nv_lshrrev_b32 v11, 16, v11\nv_mul_u32_u24 v12, 14, v11\nv_sub_u32 v12, v10, v12")
        e(f"v_mul_u32_u24 v11, 7168, v11\nv_lshl_add_u32 v11, v12, 4, v11\nv_add_u32 v{5+i}, s38, v11")
    e("s_lshr_b32 s39, s33, 1\ns_mul_i32 s39, s39, 7168\ns_add_u32 s39, s39, 16384")
    for i in range(4): e(f"s_add_u32 s{52+i}, s{52+i}, s39")
    e("s_lshl_b32 s56, s33, 12")
    e("s_mov_b32 s41, 0\ns_mov_b32 s42, 0\ns_mov_b32 s43, 0")
    e("s_mov_b32 s57, 0x7ff00000")
    e("v_mov_b32 v9, v4")
    e("v_lshrrev_b32 v10, 2, v2\nv_mul_u32_u24 v10, 224, v10\nv_and_b32 v11, 3, v2\nv_lshl_add_u32 v10, v11, 3, v10\nv_add_u32 v10, 16384, v10")
    e("s_waitcnt lgkmcnt(0)")
    e("s_cmp_ge_u32 s33, 2\ns_cselect_b32 s8, s10, s8\ns_cselect_b32 s9, s11, s9")
    k.srd(8, 1024*7168)
    k.srd(4, 4*MB, src=28, add=WS_H); k.srd(12, 2048*128, src=28, add=WS_ST); k.srd(16, 4*7168*4, src=28, add=WS_CS)
    k.srd(20, 2048*3584*2, src=28, add=WS_ACT)
    def dma_list():
        G=[]
        pre=["s_cmp_lt_u32 s43, 32","s_cselect_b32 s44, s40, s57","s_cselect_b32 s45, s41, s57","s_add_u32 m0, s42, s56"]
        G.append(pre+["s_add_u32 s43, s43, 1","buffer_load_dwordx4 v4, s[4:7], s44 offen lds"])
        for i in range(1,4): G.append([f"buffer_load_dwordx4 v4, s[4:7], s44 offen offset:{1024*i} lds"])
        for i in range(4):
            g=[f"s_add_u32 m0, s42, s{52+i}","s_nop 0",f"buffer_load_dwordx4 v{5+i}, s[8:11], s45 offen lds"]
            if i==3:
                g+=["s_add_u32 s40, s40, 16384",f"s_add_u32 s41, s41, {32*7168}",
                    f"s_add_u32 s42, s42, {SLOT}",f"s_cmp_eq_u32 s42, {NS*SLOT}","s_cselect_b32 s42, 0, s42"]
            G.append(g)
        return G
    for g in dma_list(): e("\n".join(g))
    for g in dma_list(): e("\n".join(g))
    STA=88
    SF=[]
    a=SF.append
    a("v_add_f32 v24, v24, v25"); a("v_add_f32 v26, v26, v27"); a(f"v_lshlrev_b32 v25, 2, v0"); a("v_add_f32 v24, v24, v26")
    a(f"v_add_u32 v25, {CS_OFF}, v25"); a("ds_write_b32 v25, v24")
    a(f"v_accvgpr_read_b32 v12, a{STA}")
    for j in range(1,16): a(f"v_accvgpr_read_b32 v13, a{STA+2*j}"); a("v_add_f32 v12, v12, v13")
    a(f"v_mul_f32 v12, {hex(f2u(1/1024.))}, v12")
    a(f"v_mov_b32 v16, {hex(f2u(1/64.))}"); a(f"v_mov_b32 v17, {hex(f2u(64.))}"); a("v_mov_b32 v14, 0"); a("v_mov_b32 v18, 0")
    for j in range(16):
        a(f"v_accvgpr_read_b32 v13, a{STA+2*j}"); a(f"v_accvgpr_read_b32 v15, a{STA+2*j+1}")
        a("v_fma_f32 v13, v13, v16, -v12"); a("v_add_f32 v14, v14, v15"); a("v_fmac_f32 v18, v13, v13")
    a("v_fmac_f32 v14, v18, v17")
    a(f"v_mov_b32 v16, {hex(f2u(1/1024.))}"); a(f"v_mov_b32 v17, {hex(f2u(1e-5))}"); a("v_fma_f32 v14, v14, v16, v17")
    a("v_rsq_f32 v15, v14"); a("v_sub_f32 v20, 0, v12")
    a(f"v_mul_f32 v21, {hex(f2u(C0))}, v15")
    a("v_mul_f32 v22, v15, v15"); a("v_mul_f32 v22, v22, v15"); a(f"v_mul_f32 v22, {hex(f2u(C1))}, v22")
    a("v_mov_b32 v23, v14")
    a("v_lshlrev_b32 v13, 4, v0"); a(f"v_add_u32 v13, {ST_OFF}, v13"); a("ds_write_b128 v13, v[20:23]")
    e("s_waitcnt vmcnt(8)\ns_barrier")
    def rdT(buf):
        return [f"ds_read_b128 a[{TB+16*buf+4*tf}:{TB+16*buf+4*tf+3}], v9 offset:{tf*1024}" for tf in range(4)]
    def rdW(v):
        off=(v%7)*32+(v//7)*7168
        return [f"ds_read_b64_tr_b16 a[{WB+4*v+2*t}:{WB+4*v+2*t+1}], v10 offset:{off+t*3584}" for t in range(2)]
    e("\n".join(rdT(0)))
    for v in range(14):
        e("\n".join(rdW(v)))
        if v==5: e("s_waitcnt lgkmcnt(4)")
    for i in range(16):
        e(f"buffer_load_dwordx2 a[{STA+2*i}:{STA+2*i+1}], v3, s[12:15], s36 offen")
        if i<15: e("s_add_u32 s36, s36, 16384")
    for q in range(4):
        e(f"s_mov_b32 s38, {q*28672}\nbuffer_load_dword v{24+q}, v28, s[16:19], s38 offen")
    e(f"s_mov_b32 s46, {SLOT}\ns_mov_b32 s38, {SLOT}")
    if os.environ.get('K3ST')!='3': k.stamp_mid(0)
    e("s_waitcnt lgkmcnt(0)")
    def stage(par, first=False, ndma=1, X=8*(NS-3), extra=None):
        F={i:[] for i in range(56)}
        rd='nord' not in VAR; dm='nodma' not in VAR
        F[0].append("v_add_u32 v9, s38, v9")
        F[1].append("v_add_u32 v10, s38, v10")
        F[2].append(f"s_waitcnt vmcnt({X})")
        F[3].append("s_barrier")
        if rd:
            for v in range(14):
                a,b=rdW(v)
                F[4*v+3].append(a)
                if v<13: F[4*v+4].append(b)
                else: F[55].append(b)
            T=rdT(1-par)
            for q,gp in enumerate((5,6,9,10)): F[gp].append(T[q])
        F[22].append("s_waitcnt lgkmcnt(4)")
        F[54].append("s_waitcnt lgkmcnt(4)")
        def put(gaps_pre,gapsA,gapsB,gaps_post):
            F[gaps_pre[0]]+=["s_cmp_lt_u32 s43, 32","s_cselect_b32 s44, s40, s57"]
            F[gaps_pre[1]]+=["s_cselect_b32 s45, s41, s57","s_add_u32 m0, s42, s56"]
            for q,gp in enumerate(gapsA):
                F[gp].append(f"buffer_load_dwordx4 v4, s[4:7], s44 offen offset:{1024*q} lds" if q else "buffer_load_dwordx4 v4, s[4:7], s44 offen lds")
            for q,(gm,gp) in enumerate(gapsB):
                F[gm].append(f"s_add_u32 m0, s42, s{52+q}")
                F[gp].append(f"buffer_load_dwordx4 v{5+q}, s[8:11], s45 offen lds")
            F[gaps_post[0]]+=["s_add_u32 s43, s43, 1","s_add_u32 s40, s40, 16384"]
            F[gaps_post[1]]+=[f"s_add_u32 s41, s41, {32*7168}",f"s_add_u32 s42, s42, {SLOT}"]
            F[gaps_post[2]]+=[f"s_cmp_eq_u32 s42, {NS*SLOT}","s_cselect_b32 s42, 0, s42"]
        if dm:
            if ndma==1:
                put((13,14),(17,18,21,25),((26,29),(30,33),(34,37),(38,41)),(42,45,46))
            else:
                put((5,6),(9,10,12,13),((13,14),(14,16),(16,17),(17,18)),(20,21,24))
                put((25,26),(28,29,30,32),((32,33),(33,34),(34,36),(36,37)),(40,41,42))
        F[49]+=[f"s_add_u32 s37, s46, {SLOT}",f"s_cmp_eq_u32 s37, {NS*SLOT}"]
        F[50]+=["s_cselect_b32 s37, 0, s37","s_sub_u32 s38, s37, s46"]
        F[53]+=["s_mov_b32 s46, s37"]
        if extra:
            n=len(extra); g0,g1=4,53
            for q,x in enumerate(extra): F[g0+(q*(g1-g0))//n].append(x)
            F[22]=[x if not x.startswith("s_waitcnt lgkmcnt") else "s_waitcnt lgkmcnt(0)" for x in F[22]]
            F[54]=[x if not x.startswith("s_waitcnt lgkmcnt") else "s_waitcnt lgkmcnt(2)" for x in F[54]]
        for i in range(56):
            v,tf=divmod(i,4)
            a=acc(v,tf)
            c="0" if first else f"v[{a}:{a+3}]"
            e(f"v_mfma_f32_16x16x32_bf16 v[{a}:{a+3}], a[{WB+4*v}:{WB+4*v+3}], a[{TB+16*par+4*tf}:{TB+16*par+4*tf+3}], {c}")
            for x in F[i]: e(x)
    stage(0, first=True, ndma=2, X=20)
    stage(1, ndma=2, X=8, extra=SF)
    e("s_mov_b32 s47, 15")
    L=k.lab("MAIN")
    e(f"{L}:")
    stage(0); stage(1)
    e(f"s_sub_u32 s47, s47, 1\ns_cmp_lg_u32 s47, 0\ns_cbranch_scc1 {L}")
    if os.environ.get('K3ST') in (None,'3'): k.stamp_mid(1)
    e("s_waitcnt lgkmcnt(0)")
    k.code_prefetch("k4_down_kernel", 4096, 3, "a[0:3]", 60)
    e(f"v_and_b32 v3, 15, v2\ns_lshl_b32 s37, s33, 10\nv_lshl_add_u32 v3, v3, 4, s37\nv_add_u32 v3, {ST_OFF}, v3")
    e(f"v_lshrrev_b32 v4, 4, v2\nv_lshlrev_b32 v4, 4, v4\nv_add_u32 v4, {CS_OFF}, v4")
    e("v_lshlrev_b32 v1, 4, v2")
    e("s_lshl_b32 s37, s34, 3\ns_lshl_b32 s38, s33, 1\ns_add_u32 s37, s37, s38\ns_mul_i32 s50, s37, 224\ns_mul_i32 s51, s35, 7\ns_add_u32 s50, s50, s51\ns_lshl_b32 s50, s50, 10")
    for tp in range(2):
        e(f"ds_read_b128 v[8:11], v3 offset:{(2*tp)*256}\nds_read_b128 v[12:15], v3 offset:{(2*tp+1)*256}")
        for v in range(7):
            if v==0 and tp==0: e(f"ds_read_b128 v[24:27], v4 offset:0\nds_read_b128 v[28:31], v4 offset:448")
            e(f"s_add_u32 s38, s50, {(tp*224+v)*1024}")
            e("s_waitcnt lgkmcnt(1)" if not (v==0) else "s_waitcnt lgkmcnt(0)")
            nv=(v+1)%7
            last=(v==6 and tp==1)
            G=[acc(v,2*tp+tt) for tt in range(2)]; U=[acc(7+v,2*tp+tt) for tt in range(2)]
            P0=[f"v[{8+4*tt}:{9+4*tt}]" for tt in range(2)]; P1=[f"v[{10+4*tt}:{11+4*tt}]" for tt in range(2)]
            gp=lambda tt,h: f"v[{G[tt]+2*h}:{G[tt]+2*h+1}]"
            up=lambda tt,h: f"v[{U[tt]+2*h}:{U[tt]+2*h+1}]"
            tm=lambda tt,h: f"v[{16+4*tt+2*h}:{17+4*tt+2*h}]"
            TH=[(tt,h) for tt in range(2) for h in range(2)]
            for tt,h in TH: e(f"v_pk_fma_f32 {gp(tt,h)}, v[{24+2*h}:{25+2*h}], {P0[tt]}, {gp(tt,h)} op_sel_hi:[1,0,1]")
            if not last: e(f"ds_read_b128 v[24:27], v4 offset:{nv*64}")
            for tt,h in TH: e(f"v_pk_mul_f32 {tm(tt,h)}, {gp(tt,h)}, {gp(tt,h)}")
            for tt,h in TH: e(f"v_pk_fma_f32 {tm(tt,h)}, {tm(tt,h)}, {P1[tt]}, {P0[tt]} op_sel:[0,0,1] op_sel_hi:[1,0,1]")
            for tt,h in TH: e(f"v_pk_mul_f32 {tm(tt,h)}, {tm(tt,h)}, {gp(tt,h)}")
            for c in range(8): e(f"v_exp_f32 v{16+c}, v{16+c}")
            e("s_waitcnt lgkmcnt(1)" if not last else "s_waitcnt lgkmcnt(0)")
            for tt,h in TH: e(f"v_pk_fma_f32 {up(tt,h)}, v[{28+2*h}:{29+2*h}], {P0[tt]}, {up(tt,h)} op_sel_hi:[1,0,1]")
            if not last: e(f"ds_read_b128 v[28:31], v4 offset:{448+nv*64}")
            for tt,h in TH: e(f"v_pk_fma_f32 {tm(tt,h)}, {tm(tt,h)}, {P1[tt]}, {P1[tt]} op_sel:[0,1,1] op_sel_hi:[1,1,1]")
            for c in range(8): e(f"v_rcp_f32 v{16+c}, v{16+c}")
            for tt,h in TH: e(f"v_pk_mul_f32 {up(tt,h)}, {up(tt,h)}, {gp(tt,h)}")
            for tt,h in TH: e(f"v_pk_mul_f32 {up(tt,h)}, {up(tt,h)}, {tm(tt,h)}")
            D=G[0]
            e(f"v_cvt_pk_bf16_f32 v{D}, v{U[0]}, v{U[0]+1}\nv_cvt_pk_bf16_f32 v{D+1}, v{U[0]+2}, v{U[0]+3}")
            e(f"v_cvt_pk_bf16_f32 v{D+2}, v{U[1]}, v{U[1]+1}\nv_cvt_pk_bf16_f32 v{D+3}, v{U[1]+2}, v{U[1]+3}")
            e("s_nop 1")
            e(f"v_permlane16_swap_b32 v{D}, v{D+2}\nv_permlane16_swap_b32 v{D+1}, v{D+3}")
            e(f"buffer_store_dwordx4 v[{D}:{D+3}], v1, s[20:23], s38 offen {os.environ.get('K3STF','sc1')}")
    if os.environ.get('K3ST')=='3': k.stamp_mid(0)
    e("s_waitcnt vmcnt(0)")
    k.stamp_end(3)
    e(f"{END}:")
    e("s_endpgm")
    return k
```

```python
import sys
from base import *
import k0
from chk import check
HDR=["; sequential_preLN + MQA attention + GEGLU FFN, gfx950. Generated by my own generator scripts (gen/*.py)."]
def make(which):
    import k1,k2,k3
    def gen_kz():
        k=Kern("kz_empty_kernel", 256, 256, 0, vgpr=8, sgpr=16)
        k.e("s_endpgm")
        return k
    G={'kz':gen_kz,'k0':k0.gen_k0,'k1':k1.gen_k1,'k2':k2.gen_k2,'k3':k3.gen_k3,'k4':k2.gen_k4}
    cache={}; ks=[]
    for w in which:
        if w not in cache: cache[w]=G[w]()
        ks.append(cache[w])
    return ks
if __name__=='__main__':
    out=sys.argv[1]; which=sys.argv[2].split(',')
    ks=make(which)
    txt=build(ks,HDR)
    for k in dict.fromkeys(ks):
        print(k.name, end=': '); check("\n".join(k.L))
    open(out,'w').write(txt)
```

```python
import math

KA = dict(x=0, wq=8, wk=16, wv=24, wo=32, bx=40, wg=48, wu=56, wd=64, out=72, dbg=80, ws=88)

MB = 1 << 20
WS_XN  = 0
WS_KV  = 4*MB
WS_O   = 5*MB
WS_H   = 9*MB
WS_ST  = 13*MB
WS_CS  = 13*MB + 512*1024
WS_ACT = 14*MB
WS_END = 30*MB
WS_STAMP = 31*MB
WS_WQB = 40*MB
WS_WDB = 32*MB
import os
STAMP = os.environ.get('STAMP','0')=='1'

class Kern:
    def __init__(self, name, grid, block, lds, vgpr, agpr=0, sgpr=102):
        self.name=name; self.grid=grid; self.block=block; self.lds=lds
        self.vgpr=vgpr; self.agpr=agpr; self.sgpr=sgpr
        self.L=[]; self._lab=0
    def e(self, s):
        for l in s.split('\n'):
            l=l.strip()
            if l: self.L.append(l)
    def c(self, s): self.L.append('; '+s)
    def lab(self, p='L'):
        self._lab+=1; return f"{p}_{self.name}_{self._lab}"
    def nop(self, n):
        while n>0:
            k=min(n,16); self.e(f"s_nop {k-1}"); n-=k
    def text(self):
        acc = (self.vgpr+3)//4*4
        hdr=f".globl {self.name}\n.p2align 8\n.type {self.name},@function\n{self.name}:\nLcode_{self.name}:\n"
        return hdr+"\n".join(("    "+l if not l.endswith(':') else l) for l in self.L)+"\n"
    def desc(self):
        acc=(self.vgpr+3)//4*4
        nfv = acc+self.agpr if self.agpr else self.vgpr
        return f""".p2align 6
.amdhsa_kernel {self.name}
  .amdhsa_next_free_vgpr {nfv}
  .amdhsa_next_free_sgpr {self.sgpr}
  .amdhsa_accum_offset {acc}
  .amdhsa_group_segment_fixed_size 0
  .amdhsa_kernarg_size 96
  .amdhsa_user_sgpr_count 2
  .amdhsa_user_sgpr_kernarg_segment_ptr 1
  .amdhsa_system_sgpr_workgroup_id_x 1
{'' if os.environ.get('NODENORM') else '  .amdhsa_float_denorm_mode_32 3'}
.end_amdhsa_kernel
"""
    def stamp_begin(self):
        if STAMP:
            self.sgpr=102
            self.e("s_memrealtime s[88:89]\ns_memtime s[90:91]")
    def stamp_mid(self, idx):
        if STAMP: self.e(f"s_memtime s[{96+2*idx}:{97+2*idx}]")
    def stamp_end(self, kidx, tid=0):
        if not STAMP: return
        e=self.e
        L=self.lab("STMP")
        e("s_waitcnt vmcnt(0) lgkmcnt(0)")
        e("s_memrealtime s[92:93]\ns_memtime s[94:95]")
        e(f"s_load_dwordx2 s[86:87], s[0:1], {KA['ws']}")
        e("s_waitcnt lgkmcnt(0)")
        e(f"s_add_u32 s86, s86, {WS_STAMP+kidx*8192}\ns_addc_u32 s87, s87, 0")
        e(f"s_mov_b32 s83, {tid}\nv_cmp_eq_u32 vcc, s83, v0\ns_and_saveexec_b64 s[84:85], vcc")
        e(f"s_cbranch_execz {L}")
        e("s_lshl_b32 s83, s2, 5\nv_mov_b32 v1, s83")
        e("v_mov_b32 v4, s88\nv_mov_b32 v5, s92\nv_mov_b32 v6, s90\nv_mov_b32 v7, s94")
        e("global_store_dwordx4 v1, v[4:7], s[86:87]")
        e("s_getreg_b32 s82, hwreg(HW_REG_XCC_ID)\ns_getreg_b32 s81, hwreg(HW_REG_HW_ID)")
        e("v_mov_b32 v8, s96\nv_mov_b32 v9, s98\nv_mov_b32 v10, s82\nv_mov_b32 v11, s81")
        e("global_store_dwordx4 v1, v[8:11], s[86:87] offset:16")
        e("s_waitcnt vmcnt(0)")
        e(f"{L}:")
    def code_prefetch(self, target, nbytes, vtmp, vdst, stmp):
        if os.environ.get('NOCPF'): return
        e=self.e; L=self.lab("PC")
        e(f"s_getpc_b64 s[{stmp}:{stmp+1}]\n{L}:")
        e(f"s_add_u32 s{stmp}, s{stmp}, Lcode_{target}-{L}\ns_addc_u32 s{stmp+1}, s{stmp+1}, 0")
        e(f"s_lshr_b32 s{stmp+2}, s2, 3\ns_lshl_b32 s{stmp+2}, s{stmp+2}, 10\ns_min_u32 s{stmp+2}, s{stmp+2}, {(nbytes-1)//1024*1024}")
        e(f"v_and_b32 v{vtmp}, 63, v0\nv_lshlrev_b32 v{vtmp}, 4, v{vtmp}\nv_add_u32 v{vtmp}, s{stmp+2}, v{vtmp}")
        dst = vdst if isinstance(vdst,str) else f"v[{vdst}:{vdst+3}]"
        e(f"global_load_dwordx4 {dst}, v{vtmp}, s[{stmp}:{stmp+1}] ; @pf")
    def load_ptr(self, sreg, name):
        self.e(f"s_load_dwordx2 s[{sreg}:{sreg+1}], s[0:1], {KA[name]}")
    def srd(self, s, nbytes, src=None, add=0):
        if src is None: src=s
        if add:
            self.e(f"s_add_u32 s{s}, s{src}, {add}")
            self.e(f"s_addc_u32 s{s+1}, s{src+1}, 0")
        elif src!=s:
            self.e(f"s_mov_b32 s{s}, s{src}\ns_mov_b32 s{s+1}, s{src+1}")
        self.e(f"s_mov_b32 s{s+2}, {nbytes}")
        self.e(f"s_mov_b32 s{s+3}, 0x20000")

def vr(a,n=1): return f"v{a}" if n==1 else f"v[{a}:{a+n-1}]"
def ar(a,n=1): return f"a{a}" if n==1 else f"a[{a}:{a+n-1}]"
def sr(a,n=1): return f"s{a}" if n==1 else f"s[{a}:{a+n-1}]"

def build(kernels, header_comments):
    out=list(header_comments)
    for k in kernels:
        out.append(f"; @launch kernel={k.name} grid=({k.grid},1,1) block=({k.block},1,1) lds={k.lds}")
    out.append('.amdgcn_target "amdgcn-amd-amdhsa--gfx950"')
    out.append('.text')
    seen=[]
    for k in kernels:
        if k.name in seen: continue
        seen.append(k.name); out.append(k.text())
    out.append('.section .rodata,"a"')
    seen=[]
    for k in kernels:
        if k.name in seen: continue
        seen.append(k.name); out.append(k.desc())
    return "\n".join(out)+"\n"

def f2u(x):
    import struct
    return struct.unpack('<I',struct.pack('<f',x))[0]
```

```python
import re, sys

TRANS = ("v_exp_f32","v_log_f32","v_rcp_f32","v_rsq_f32","v_sqrt_f32","v_sin_f32","v_cos_f32","v_rcp_iflag_f32")
def regs_of(tok):
    tok = tok.strip()
    neg = tok.lstrip('-')
    if neg.startswith('abs(') or neg.startswith('|'):
        neg = neg.replace('abs(','').replace(')','').replace('|','')
    tok = neg
    m = re.fullmatch(r'([vas])(\d+)', tok)
    if m: return [(m.group(1), int(m.group(2)))]
    m = re.fullmatch(r'([vas])\[(\d+):(\d+)\]', tok)
    if m: return [(m.group(1), i) for i in range(int(m.group(2)), int(m.group(3))+1)]
    if tok == 'vcc': return [('s','vcc')]
    if tok in ('vcc_lo','vcc_hi'): return [('s','vcc')]
    if tok == 'exec': return [('s','exec')]
    if tok == 'm0': return [('s','m0')]
    return []

class I:
    __slots__=('txt','op','ops','rd','wr','kind','passes','line','ws','isC','mods')
def split_ops(s):
    out=[];depth=0;cur=''
    for ch in s:
        if ch=='[': depth+=1
        if ch==']': depth-=1
        if ch==',' and depth==0: out.append(cur.strip()); cur=''
        else: cur+=ch
    if cur.strip(): out.append(cur.strip())
    return out

def parse(line, ln):
    t = line.split(';')[0].split('//')[0].strip()
    if not t or t.startswith('.') : return None
    if '@pf' in line:
        i=I(); i.kind='vmem'; i.op='global_load_pf'; i.ops=[]; i.txt=t; i.line=ln; i.rd=[]; i.wr=[]; i.ws=1; i.passes=0; i.isC=[]; i.mods=''; return i
    if t.endswith(':'):
        i=I(); i.kind='label'; i.op=t[:-1]; i.txt=t; i.line=ln; i.rd=[]; i.wr=[]; i.ws=0; return i
    parts=t.split(None,1)
    op=parts[0]; rest=parts[1] if len(parts)>1 else ''
    ops=split_ops(rest)
    mods=''
    if ops:
        lp=ops[-1].split(None,1)
        if len(lp)>1 and not ops[-1].startswith('vmcnt') and not ops[-1].startswith('lgkmcnt'):
            ops[-1]=lp[0]; mods=lp[1]
    i=I(); i.txt=t+''.join(' '+a for a in ('@exit','@alt','@g1') if a in line); i.op=op; i.ops=ops; i.line=ln; i.rd=[]; i.wr=[]; i.passes=0; i.ws=1; i.isC=[]; i.mods=mods
    R=lambda k: regs_of(ops[k]) if k<len(ops) else []
    base=op.replace('_e32','').replace('_e64','').replace('_dpp','').replace('_sdwa','')
    if op=='s_nop':
        i.kind='nop'; i.ws=int(ops[0],0)+1
    elif op=='s_waitcnt':
        i.kind='wait'
    elif op.startswith('s_cbranch') or op=='s_branch':
        i.kind='branch'
    elif op in('s_barrier','s_endpgm','s_setprio','s_sleep'):
        i.kind='salu'
    elif op=='s_getpc_b64':
        i.kind='salu'; i.wr=R(0)
    elif op.startswith('s_load') or op.startswith('s_memtime') or op.startswith('s_memrealtime') or op.startswith('s_buffer_load'):
        i.kind='smem'; i.wr=R(0); i.rd=sum((R(k) for k in range(1,len(ops))),[])
    elif op.startswith('s_'):
        i.kind='salu'
        if op.startswith('s_cmp') or op.startswith('s_bitcmp'):
            i.rd=sum((R(k) for k in range(len(ops))),[])
        else:
            i.wr=R(0); i.rd=sum((R(k) for k in range(1,len(ops))),[])
            if 'saveexec' in op: i.wr=i.wr+[('s','exec')]; i.rd=i.rd+[('s','exec')]
            if op in('s_addk_i32','s_mulk_i32'): i.rd=i.rd+R(0)
    elif op.startswith('v_mfma'):
        i.kind='mfma'
        i.passes = 8 if '32x32x16' in op else 4 if '16x16x32' in op else None
        assert i.passes, op
        i.wr=R(0); i.rd=R(1)+R(2)+R(3); i.isC=R(3)
    elif op.startswith('ds_'):
        i.kind='ds'
        if op.startswith('ds_read') or op.startswith('ds_bpermute') or op.startswith('ds_swizzle') or op.startswith('ds_permute'):
            i.wr=R(0); i.rd=sum((R(k) for k in range(1,len(ops))),[])
        else:
            i.rd=sum((R(k) for k in range(len(ops))),[])
    elif op.startswith('buffer_') or op.startswith('global_'):
        i.kind='vmem'
        full=t
        lds = ' lds' in (' '+mods) or op.startswith('global_load_lds')
        if op in('buffer_wbl2','buffer_inv'):
            pass
        elif op.startswith('buffer_load'):
            if lds: i.rd=sum((R(k) for k in range(len(ops))),[])+[('s','m0')]
            else: i.wr=R(0); i.rd=sum((R(k) for k in range(1,len(ops))),[])
        elif op.startswith('buffer_store'):
            i.rd=sum((R(k) for k in range(len(ops))),[])
        elif op.startswith('global_load_lds'):
            i.rd=sum((R(k) for k in range(len(ops))),[])+[('s','m0')]
        elif op.startswith('global_load'):
            i.wr=R(0); i.rd=sum((R(k) for k in range(1,len(ops))),[])
        elif op.startswith('global_store'):
            i.rd=sum((R(k) for k in range(len(ops))),[])
        elif 'atomic' in op:
            if 'sc0' in mods and op.startswith('global'):
                i.wr=R(0); i.rd=sum((R(k) for k in range(1,len(ops))),[])
            elif 'sc0' in mods:
                i.wr=R(0); i.rd=sum((R(k) for k in range(len(ops))),[])
            else: i.rd=sum((R(k) for k in range(len(ops))),[])
        else: raise Exception("unknown vmem "+t)
    elif op.startswith('v_'):
        i.kind='valu'
        if base.startswith('v_cmp'):
            i.wr=R(0); i.rd=R(1)+R(2)
            if base.startswith('v_cmpx'): i.wr=i.wr+[('s','exec')]
        elif base in('v_permlane32_swap_b32','v_permlane16_swap_b32','v_swap_b32'):
            i.wr=R(0)+R(1); i.rd=R(0)+R(1)
        elif base in('v_add_co_u32','v_sub_co_u32','v_addc_co_u32','v_subb_co_u32','v_subrev_co_u32'):
            i.wr=R(0)+R(1); i.rd=sum((R(k) for k in range(2,len(ops))),[])
        else:
            i.wr=R(0); i.rd=sum((R(k) for k in range(1,len(ops))),[])
            if base in('v_fmac_f32','v_dot2c_f32_bf16','v_pk_fmac_f16','v_writelane_b32') : i.rd=i.rd+R(0)
            if base=='v_cndmask_b32' and len(ops)==3: i.rd=i.rd+[('s','vcc')]
            if '_dpp' in op or 'row_' in mods or 'quad_perm' in mods: i.rd=i.rd+R(0)
    else:
        raise Exception("unknown op "+t)
    return i

def is_dpp(i): return i.kind=='valu' and ('_dpp' in i.op or 'row_' in i.mods or 'quad_perm' in i.mods)
def base(i): return i.op.replace('_e32','').replace('_e64','').replace('_dpp','')
def isv(r): return r[0] in 'va'

def trace(instrs, mode='A'):
    labels={i.op:k for k,i in enumerate(instrs) if i.kind=='label'}
    out=[]; k=0; taken=set(); visits={}
    while k<len(instrs):
        i=instrs[k]
        out.append(i)
        if i.kind=='branch':
            tgt=labels.get(i.ops[0])
            visits[k]=visits.get(k,0)+1
            if mode=='L':
                k+=1; continue
            if '@alt' in i.txt and mode=='B':
                k=tgt; continue
            if '@g1' in i.txt and mode=='A':
                k=tgt; continue
            if '@exit' in i.txt and visits[k]>=2:
                k=tgt; continue
            if tgt is not None and tgt<=k and k not in taken and i.op!='s_branch':
                taken.add(k); k=tgt; continue
            if i.op=='s_branch' and tgt is not None and tgt<=k and visits[k]<=2:
                k=tgt; continue
            if i.op=='s_branch' and tgt is not None and tgt>k:
                k=tgt; continue
        if i.op=='s_endpgm' :
            out.append(None)
        k+=1
    return out

def check(text, verbose=True):
    es=[]
    for mode in 'ABL':
        es+=check1(text,mode)
    es=sorted(set(es))
    if verbose:
        for _,e in es[:60]: print("CHK:",e)
        print(f"checker: {len(es)} issue(s)")
    return es

def check1(text, mode):
    instrs=[]
    for ln,l in enumerate(text.split('\n'),1):
        for piece in [l]:
            i=parse(piece,ln)
            if i: instrs.append(i)
    tr=trace(instrs,mode)
    errs=set()
    def err(i,p,need,have,what):
        errs.add((i.line,f"line {i.line}: [{what}] need {need} ws have {have}: '{p.txt}' (line {p.line}) -> '{i.txt}'"))
    hist=[]
    vm=[]; lg=[]; pend={}
    for i in tr:
        if i is None:
            hist=[]; vm=[]; lg=[]; pend={}; continue
        if i.kind=='label': continue
        if i.kind=='wait':
            m=re.search(r'vmcnt\((\d+)\)',i.txt)
            if m:
                n=int(m.group(1))
                while len(vm)>n:
                    tok=vm.pop(0)
                    for r in tok[1]:
                        if pend.get(r)==tok[0]: del pend[r]
            m=re.search(r'lgkmcnt\((\d+)\)',i.txt)
            if m:
                n=int(m.group(1))
                has_smem=any(t[2] for t in lg)
                if has_smem and n>0: errs.add((i.line,f"line {i.line}: lgkmcnt({n}) with SMEM outstanding"))
                while len(lg)>n:
                    tok=lg.pop(0)
                    for r in tok[1]:
                        if pend.get(r)==tok[0]: del pend[r]
        else:
            for r in list(i.rd)+list(i.wr):
                if r in pend and not (i.kind in('ds','vmem','smem') and r in i.wr and r not in i.rd):
                    errs.add((i.line,f"line {i.line}: reg {r} touched while load pending: '{i.txt}'"))
            for r in i.wr:
                if r in pend and i.kind in('ds','vmem','smem'):
                    errs.add((i.line,f"line {i.line}: second load to {r} while pending: '{i.txt}'"))
        if i.kind=='vmem' and i.op not in('buffer_wbl2','buffer_inv'):
            tok=(id(i),len(hist)); vm.append((tok,list(i.wr)))
            for r in i.wr: pend[r]=tok
            if len(vm)>63: errs.add((i.line,f"line {i.line}: >63 vmem outstanding"))
        if i.kind in('ds','smem'):
            tok=(id(i),len(hist));
            lg.append((tok,list(i.wr),i.kind=='smem'))
            if i.kind=='smem' and len(i.wr)>1: lg.append(((id(i),-1),[],True))
            for r in i.wr: pend[r]=tok
        dist=0
        for p in reversed(hist):
            if dist>=20: break
            need=0; what=''
            pw=set(p.wr); pc=set(p.isC) if p.kind=='mfma' else set()
            ird=set(i.rd); iwr=set(i.wr)
            vw={r for r in pw if isv(r)}; sw={r for r in pw if r[0]=='s'}
            if p.kind=='valu':
                if i.kind=='mfma' and vw&ird: need,what=2,'valu->mfma'
                if i.kind=='valu' and base(p) in TRANS and base(i) not in TRANS and vw&ird: need,what=max(need,1),'trans->valu'
                if i.kind=='valu' and base(i) in('v_readlane_b32','v_readfirstlane_b32') and vw&ird: need,what=max(need,1),'valu->readlane'
                if i.kind=='valu' and 'permlane' in i.op and vw&ird: need,what=max(need,2),'valu->permlane'
                if is_dpp(i) and vw&ird: need,what=max(need,2),'valu->dpp'
                if i.kind=='vmem' and sw&ird: need,what=max(need,5),'valu sgpr->vmem'
                if i.kind=='valu' and sw&ird:
                    need,what=max(need,4 if base(i) in('v_readlane_b32','v_writelane_b32') else 2),'valu sgpr->valu'
            if p.kind=='salu' and ('s','m0') in pw and i.kind=='vmem' and ('s','m0') in ird: need,what=1,'m0->dma'
            if p.kind=='mfma':
                P={4:0,8:1}[p.passes]
                if i.kind=='mfma':
                    c=set(i.isC)
                    if vw&c:
                        if not (c==vw and i.passes==p.passes): need,what=(6,10)[P],'mfma->mfmaC overlap'
                    ab=set(regs_of(i.ops[1])+regs_of(i.ops[2]))
                    if vw&ab: need,what=max(need,(8,12)[P]),'mfma->mfmaAB'
                    if vw&set(i.wr) and not (c==vw and i.passes==p.passes) and not (vw&c): need,what=max(need,(8,12)[P]),'mfma WAW'
                elif i.kind in('valu','vmem','ds'):
                    if vw&(ird|iwr): need,what=(8,12)[P],'mfma->use'
                    if i.kind=='valu' and pc&iwr: need,what=max(need,(3,7)[P]),'mfmaC WAR'
            if p.kind=='vmem' and ('store' in p.op) and ('x4' in p.op or 'x3' in p.op):
                data=set(regs_of(p.ops[0] if p.op.startswith('buffer') else p.ops[1]))
                if data&iwr: need,what=max(need,2 if i.kind=='valu' else 1),'store WAR'
            if need>dist: err(i,p,need,dist,what)
            dist+=p.ws
        hist.append(i)
        if len(hist)>64: hist=hist[-40:]
    es=sorted(errs)
    if mode=='L': es=[(l,'[linear] '+m) for l,m in es if 'pending' not in m and 'outstanding' not in m]
    return es

if __name__=='__main__':
    check(open(sys.argv[1]).read())
```

```python
import math

KA = dict(x=0, wq=8, wk=16, wv=24, wo=32, bx=40, wg=48, wu=56, wd=64, out=72, dbg=80, ws=88)

MB = 1 << 20
WS_XN  = 0
WS_KV  = 4*MB
WS_O   = 5*MB
WS_H   = 9*MB
WS_ST  = 13*MB
WS_CS  = 13*MB + 512*1024
WS_ACT = 14*MB
WS_END = 30*MB
WS_STAMP = 31*MB
WS_WQB = 40*MB
WS_WDB = 32*MB
import os
STAMP = os.environ.get('STAMP','0')=='1'

class Kern:
    def __init__(self, name, grid, block, lds, vgpr, agpr=0, sgpr=102):
        self.name=name; self.grid=grid; self.block=block; self.lds=lds
        self.vgpr=vgpr; self.agpr=agpr; self.sgpr=sgpr
        self.L=[]; self._lab=0
    def e(self, s):
        for l in s.split('\n'):
            l=l.strip()
            if l: self.L.append(l)
    def c(self, s): self.L.append('; '+s)
    def lab(self, p='L'):
        self._lab+=1; return f"{p}_{self.name}_{self._lab}"
    def nop(self, n):
        while n>0:
            k=min(n,16); self.e(f"s_nop {k-1}"); n-=k
    def text(self):
        acc = (self.vgpr+3)//4*4
        hdr=f".globl {self.name}\n.p2align 8\n.type {self.name},@function\n{self.name}:\nLcode_{self.name}:\n"
        return hdr+"\n".join(("    "+l if not l.endswith(':') else l) for l in self.L)+"\n"
    def desc(self):
        acc=(self.vgpr+3)//4*4
        nfv = acc+self.agpr if self.agpr else self.vgpr
        return f""".p2align 6
.amdhsa_kernel {self.name}
  .amdhsa_next_free_vgpr {nfv}
  .amdhsa_next_free_sgpr {self.sgpr}
  .amdhsa_accum_offset {acc}
  .amdhsa_group_segment_fixed_size 0
  .amdhsa_kernarg_size 96
  .amdhsa_user_sgpr_count 2
  .amdhsa_user_sgpr_kernarg_segment_ptr 1
  .amdhsa_system_sgpr_workgroup_id_x 1
{'' if os.environ.get('NODENORM') else '  .amdhsa_float_denorm_mode_32 3'}
.end_amdhsa_kernel
"""
    def stamp_begin(self):
        if STAMP:
            self.sgpr=102
            self.e("s_memrealtime s[88:89]\ns_memtime s[90:91]")
    def stamp_mid(self, idx):
        if STAMP: self.e(f"s_memtime s[{96+2*idx}:{97+2*idx}]")
    def stamp_end(self, kidx, tid=0):
        if not STAMP: return
        e=self.e
        L=self.lab("STMP")
        e("s_waitcnt vmcnt(0) lgkmcnt(0)")
        e("s_memrealtime s[92:93]\ns_memtime s[94:95]")
        e(f"s_load_dwordx2 s[86:87], s[0:1], {KA['ws']}")
        e("s_waitcnt lgkmcnt(0)")
        e(f"s_add_u32 s86, s86, {WS_STAMP+kidx*8192}\ns_addc_u32 s87, s87, 0")
        e(f"s_mov_b32 s83, {tid}\nv_cmp_eq_u32 vcc, s83, v0\ns_and_saveexec_b64 s[84:85], vcc")
        e(f"s_cbranch_execz {L}")
        e("s_lshl_b32 s83, s2, 5\nv_mov_b32 v1, s83")
        e("v_mov_b32 v4, s88\nv_mov_b32 v5, s92\nv_mov_b32 v6, s90\nv_mov_b32 v7, s94")
        e("global_store_dwordx4 v1, v[4:7], s[86:87]")
        e("s_getreg_b32 s82, hwreg(HW_REG_XCC_ID)\ns_getreg_b32 s81, hwreg(HW_REG_HW_ID)")
        e("v_mov_b32 v8, s96\nv_mov_b32 v9, s98\nv_mov_b32 v10, s82\nv_mov_b32 v11, s81")
        e("global_store_dwordx4 v1, v[8:11], s[86:87] offset:16")
        e("s_waitcnt vmcnt(0)")
        e(f"{L}:")
    def code_prefetch(self, target, nbytes, vtmp, vdst, stmp):
        if os.environ.get('NOCPF'): return
        e=self.e; L=self.lab("PC")
        e(f"s_getpc_b64 s[{stmp}:{stmp+1}]\n{L}:")
        e(f"s_add_u32 s{stmp}, s{stmp}, Lcode_{target}-{L}\ns_addc_u32 s{stmp+1}, s{stmp+1}, 0")
        e(f"s_lshr_b32 s{stmp+2}, s2, 3\ns_lshl_b32 s{stmp+2}, s{stmp+2}, 10\ns_min_u32 s{stmp+2}, s{stmp+2}, {(nbytes-1)//1024*1024}")
        e(f"v_and_b32 v{vtmp}, 63, v0\nv_lshlrev_b32 v{vtmp}, 4, v{vtmp}\nv_add_u32 v{vtmp}, s{stmp+2}, v{vtmp}")
        dst = vdst if isinstance(vdst,str) else f"v[{vdst}:{vdst+3}]"
        e(f"global_load_dwordx4 {dst}, v{vtmp}, s[{stmp}:{stmp+1}] ; @pf")
    def code_prefetch_all(self, first, vtmp, vdst, stmp):
        if os.environ.get('NOCPF') or os.environ.get('NOCPFA'): return
        e=self.e; L=self.lab("PC")
        e(f"s_getpc_b64 s[{stmp}:{stmp+1}]\n{L}:")
        e(f"s_sub_u32 s{stmp}, s{stmp}, {L}-Lcode_{first}\ns_subb_u32 s{stmp+1}, s{stmp+1}, 0")
        e(f"s_lshr_b32 s{stmp+2}, s2, 3\ns_lshl_b32 s{stmp+2}, s{stmp+2}, 12")
        e(f"v_and_b32 v{vtmp}, 0xc0, v0\nv_lshlrev_b32 v{vtmp}, 4, v{vtmp}\nv_add_u32 v{vtmp}, s{stmp+2}, v{vtmp}\nv_min_u32 v{vtmp}, Lcode_end-Lcode_{first}-1024, v{vtmp}")
        e(f"v_and_b32 v{vtmp+1}, 63, v0\nv_lshl_add_u32 v{vtmp}, v{vtmp+1}, 4, v{vtmp}")
        e(f"global_load_dwordx4 v[{vdst}:{vdst+3}], v{vtmp}, s[{stmp}:{stmp+1}] ; @pf")
    def load_ptr(self, sreg, name):
        self.e(f"s_load_dwordx2 s[{sreg}:{sreg+1}], s[0:1], {KA[name]}")
    def srd(self, s, nbytes, src=None, add=0):
        if src is None: src=s
        if add:
            self.e(f"s_add_u32 s{s}, s{src}, {add}")
            self.e(f"s_addc_u32 s{s+1}, s{src+1}, 0")
        elif src!=s:
            self.e(f"s_mov_b32 s{s}, s{src}\ns_mov_b32 s{s+1}, s{src+1}")
        self.e(f"s_mov_b32 s{s+2}, {nbytes}")
        self.e(f"s_mov_b32 s{s+3}, 0x20000")

def vr(a,n=1): return f"v{a}" if n==1 else f"v[{a}:{a+n-1}]"
def ar(a,n=1): return f"a{a}" if n==1 else f"a[{a}:{a+n-1}]"
def sr(a,n=1): return f"s{a}" if n==1 else f"s[{a}:{a+n-1}]"

def build(kernels, header_comments):
    out=list(header_comments)
    for k in kernels:
        out.append(f"; @launch kernel={k.name} grid=({k.grid},1,1) block=({k.block},1,1) lds={k.lds}")
    out.append('.amdgcn_target "amdgcn-amd-amdhsa--gfx950"')
    out.append('.text')
    seen=[]
    for k in kernels:
        if k.name in seen: continue
        seen.append(k.name); out.append(k.text())
    out.append('Lcode_end:')
    out.append('.section .rodata,"a"')
    seen=[]
    for k in kernels:
        if k.name in seen: continue
        seen.append(k.name); out.append(k.desc())
    return "\n".join(out)+"\n"

def f2u(x):
    import struct
    return struct.unpack('<I',struct.pack('<f',x))[0]
```

```python
from base import *
from gda import *
import os
VAR=os.environ.get('K1VAR','')

QSCALE = (32**-0.5)*1.4426950408889634

def gen_k1():
    k=Kern("k1_q_attn_kernel", 256, 512, 163840, vgpr=224, sgpr=96)
    e=k.e
    END=k.lab("END")
    R=dict(vA=4,vB=8,vW=14,AF=48,W=112,acc=16)
    S=dict(w=33,sA=40,sB=41,wr=42,rd=43,inc=44,wB=46,t=47)
    SS=48; KF=80; V0=88; V1=92; P=96; Q=144; O=152; Lr=168; SEL=172; AK=176; AV0=178; AV1=179; VO=180; VCR=181; VWD=182
    ONES=184; CSV=188; WDR=196; CSACC=16; CSF=104
    BBASE=98304; QX=BBASE+2*8192; CST=131072; CSS=CST+4*7168; DUM=CSS+1792+256
    e(f"s_cmp_ge_u32 s2, 256\ns_cbranch_scc1 {END}")
    k.stamp_begin()
    k.load_ptr(28,'ws'); k.load_ptr(20,'wg'); k.load_ptr(22,'wu'); k.load_ptr(48,'wo'); k.load_ptr(52,'wd')
    e("v_lshrrev_b32 v1, 6, v0\nv_and_b32 v2, 63, v0")
    e("s_and_b32 s30, s2, 7\ns_lshr_b32 s31, s2, 3")
    if os.environ.get('K1MAP','42')=='81':
        e("s_and_b32 s32, s31, 1\ns_lshl_b32 s30, s30, 1\ns_add_u32 s34, s30, s32")
        e("s_lshr_b32 s35, s31, 1")
    else:
        e("s_lshr_b32 s32, s30, 1\ns_lshl_b32 s32, s32, 2\ns_and_b32 s34, s31, 3\ns_add_u32 s34, s34, s32")
        e("s_and_b32 s32, s30, 1\ns_lshl_b32 s32, s32, 3\ns_lshr_b32 s35, s31, 2\ns_add_u32 s35, s35, s32")
    e("v_readfirstlane_b32 s58, v1")
    e("v_lshlrev_b32 v3, 4, v2")
    e("s_and_b32 s33, s58, 3")
    e("s_lshl_b32 s37, s35, 7")
    e("s_lshl_b32 s38, s33, 13")
    e("v_and_b32 v4, 31, v2\nv_bfe_u32 v5, v2, 2, 2\nv_lshrrev_b32 v6, 5, v2\nv_xor_b32 v5, v5, v6")
    e(f"v_lshlrev_b32 v4, 6, v4\nv_lshl_add_u32 v{AK}, v5, 4, v4\nv_xor_b32 v5, 2, v5\nv_lshl_add_u32 v{AK+1}, v5, 4, v4")
    e(f"v_mov_b32 v{AV0}, v{AK}\nv_mov_b32 v{AV1}, v{AK+1}")
    e("v_bfe_u32 v4, v2, 2, 1\nv_bfe_u32 v5, v2, 4, 1\nv_xor_b32 v4, v4, v5\nv_and_b32 v5, 3, v2\nv_or_b32 v4, v4, v5")
    e("v_mov_b32 v5, 0x3f803f80\nv_cmp_eq_u32 vcc, 0, v4\ns_nop 1")
    e(f"v_cndmask_b32 v{SEL}, 0, v5, vcc")
    for i in range(1,4): e(f"v_mov_b32 v{SEL+i}, v{SEL}")
    e(f"s_lshl_b32 s47, s34, 2\ns_add_u32 s47, s47, s33\ns_lshl_b32 s47, s47, 6\ns_lshr_b32 s30, s58, 2\ns_lshl_b32 s31, s35, 1\ns_add_u32 s30, s30, s31\ns_lshl_b32 s30, s30, 1\ns_add_u32 s47, s47, s30\ns_lshl_b32 s47, s47, 10")
    e(f"v_add_u32 v{VO}, s47, v3")
    for i in range(16): e(f"v_mov_b32 v{O+i}, 0")
    for i in range(4): e(f"v_mov_b32 v{Lr+i}, 0")
    e("s_and_b32 s30, s2, 3\ns_lshl_b32 s30, s30, 8\ns_lshl_b32 s31, s33, 6\ns_add_u32 s30, s30, s31\ns_mul_i32 s30, s30, 7168")
    e("s_bfe_u32 s31, s2, 0x50002\ns_mul_i32 s31, s31, 224\ns_add_u32 s30, s30, s31")
    for i in range(7):
        e(f"v_add_u32 v5, {64*i}, v2\nv_mul_u32_u24 v6, 4682, v5\nv_lshrrev_b32 v6, 16, v6\nv_mul_u32_u24 v7, 14, v6\nv_sub_u32 v7, v5, v7")
        e(f"v_mul_u32_u24 v6, 7168, v6\nv_lshl_add_u32 v6, v7, 4, v6\nv_add_u32 v{CSV+i}, s30, v6")
    e(f"s_mul_i32 s56, s33, 7168\ns_add_u32 s56, s56, {CST}")
    e(f"v_lshrrev_b32 v5, 2, v2\nv_mul_u32_u24 v5, 224, v5\nv_and_b32 v6, 3, v2\nv_lshl_add_u32 v5, v6, 3, v5\nv_add_u32 v{VCR}, s56, v5")
    for i in range(4): e(f"v_mov_b32 v{ONES+i}, 0x3f803f80")
    e("s_lshr_b32 s62, s2, 3\ns_lshl_b32 s62, s62, 16\ns_lshl_b32 s63, s33, 14\ns_add_u32 s62, s62, s63")
    e("s_lshl_b32 s63, s2, 2\ns_add_u32 s63, s63, s33\ns_and_b32 s30, s63, 63\ns_mul_i32 s30, s30, 56\ns_lshr_b32 s31, s63, 6\ns_lshl_b32 s31, s31, 7\ns_mul_i32 s63, s63, 7168")
    e(f"v_lshrrev_b32 v5, 3, v2\nv_add_u32 v5, s30, v5\nv_lshlrev_b32 v5, 11, v5\nv_add_u32 v5, s31, v5")
    e(f"v_bfe_u32 v6, v2, 4, 1\nv_lshlrev_b32 v6, 2, v6\nv_and_b32 v7, 7, v2\nv_xor_b32 v6, v6, v7\nv_lshl_add_u32 v{VWD}, v6, 4, v5")
    g=GDA(k,R,S,4,8,8,16,True,8192,False,base=BBASE)
    LCONS=k.lab("CONS"); LJ=k.lab("JOIN")
    e(f"s_cmp_lt_u32 s58, 4\ns_cbranch_scc1 {LCONS} ; @alt")
    def kv_dma(c):
        for gi in range(2):
            e(f"s_add_u32 s47, s38, {c*32768+gi*4096}")
            e(f"s_add_u32 m0, s38, {(c&3)*32768+gi*4096}\ns_nop 0")
            for i in range(4):
                e(f"buffer_load_dwordx4 v3, s[12:15], s47 offen offset:{i*1024} lds")
    e("s_lshl_b32 s36, s35, 17")
    g.setup_loader(2, 60, 2048, 36)
    e("s_waitcnt lgkmcnt(0)")
    k.srd(8, 2*MB, src=28, add=WS_WQB)
    k.srd(12, 64*4096, src=28, add=WS_KV); k.srd(16, 4*MB, src=28, add=WS_O)
    g.loader(39, hooks={12:(lambda:kv_dma(0),8)})
    e("s_waitcnt vmcnt(0)\ns_barrier")
    e(f"s_lshl_b32 s47, s33, 11\ns_add_u32 s47, s47, {QX}\nv_add_u32 v4, s47, v3")
    e(f"ds_read_b128 v[{Q}:{Q+3}], v4\nds_read_b128 v[{Q+4}:{Q+7}], v4 offset:1024")
    kv_dma(1)
    e(f"s_branch {LJ}")
    e(f"{LCONS}:")
    e(f"s_lshl_b32 s36, s34, 2\ns_add_u32 s36, s36, s33\ns_lshl_b32 s36, s36, 16")
    g.setup_consumer(2, 60, 36)
    e("s_waitcnt lgkmcnt(0)")
    k.srd(4, 4*MB, src=28, add=WS_XN)
    g.a_prologue()
    k.srd(12, 64*4096, src=28, add=WS_KV); k.srd(16, 4*MB, src=28, add=WS_O)
    e("s_cmp_ge_u32 s2, 128\ns_cselect_b32 s20, s22, s20\ns_cselect_b32 s21, s23, s21")
    k.srd(20, 3584*1024*2); k.srd(48, 2*MB); k.srd(52, 3584*1024*2); k.srd(72, 3584*2048, src=28, add=WS_WDB)
    k.srd(24, 4*7168*4, src=28, add=WS_CS)
    g.consumer(39, stamp=(1 if os.environ.get('K1ST')=='1' else None))
    if os.environ.get('K1ST')=='2': k.stamp_mid(1)
    e(f"v_mov_b32 v60, {hex(f2u(QSCALE))}")
    k.nop(12)
    for i in range(32): e(f"v_mul_f32 v{R['acc']+i}, v{R['acc']+i}, v60")
    for i in range(8): e(f"v_cvt_pk_bf16_f32 v{Q+i}, v{R['acc']+2*i}, v{R['acc']+2*i+1}")
    for i in range(8): e(f"v_cvt_pk_bf16_f32 v{64+i}, v{R['acc']+16+2*i}, v{R['acc']+16+2*i+1}")
    e(f"s_lshl_b32 s47, s33, 11\ns_add_u32 s47, s47, {QX}\nv_add_u32 v4, s47, v3")
    e(f"ds_write_b128 v4, v[64:67]\nds_write_b128 v4, v[68:71] offset:1024")
    e("s_waitcnt lgkmcnt(0)\ns_barrier")
    e(f"{LJ}:")
    k.stamp_mid(0)
    def rdK(tl):
        for m in range(2): e(f"ds_read_b128 v[{KF+4*m}:{KF+4*m+3}], v{AK+m} offset:{tl*4096}")
    def rdV0(tl): e(f"ds_read_b128 v[{V0}:{V0+3}], v{AV0} offset:{tl*4096+2048}")
    def rdV1(tl): e(f"ds_read_b128 v[{V1}:{V1+3}], v{AV1} offset:{tl*4096+2048}")
    rdK(0); rdV0(0)
    for i in range(4): e(f"v_mov_b32 v{P+4+i}, 0\nv_mov_b32 v{V1+i}, 0")
    e("s_waitcnt lgkmcnt(0)")
    def mf(d,a,b,c=None):
        cs = c if c else f"v[{d}:{d+15}]"
        e(f"v_mfma_f32_32x32x16_bf16 v[{d}:{d+15}], v[{a}:{a+3}], v[{b}:{b+3}], {cs}")
    def rs(b): e(f"v_mfma_f32_16x16x32_bf16 v[{Lr}:{Lr+3}], v[{SEL}:{SEL+3}], v[{b}:{b+3}], v[{Lr}:{Lr+3}]")
    mf(SS,KF,Q,"0"); mf(SS,KF+4,Q+4)
    rdK(1)
    e("s_waitcnt lgkmcnt(0)")
    k.nop(10)
    PAT="W3 E0 E1 PV1p RV1 E2 E3 C0 E4 W2 QK0 E5 C1 E6 E7 RS1p C2 E8 QK1 RK C3 E9 E10 E11 W3 PV0 RV0 C4 E12 E13 C5 RS0 E14 E15 C6 C7".split()
    def slot(tl):
        par=tl&1
        Sc=SS+16*par; Sn=SS+16*(1-par)
        if 'tog' in VAR: e(f"s_setprio {par}")
        for t in PAT:
            if t[0]=='E': i=int(t[1:]); e(f"v_exp_f32 v{Sc+i}, v{Sc+i}")
            elif t[0]=='C': i=int(t[1:]); e(f"v_cvt_pk_bf16_f32 v{P+i}, v{Sc+2*i}, v{Sc+2*i+1}")
            elif t[0]=='W':
                if 'nowait' not in VAR: e(f"s_waitcnt lgkmcnt({t[1]})")
            elif t=='QK0': mf(Sn,KF,Q,"0")
            elif t=='QK1': mf(Sn,KF+4,Q+4)
            elif t=='PV0': mf(O,V0,P)
            elif t=='PV1p': mf(O,V1,P+4)
            elif t=='RS0': rs(P)
            elif t=='RS1p': rs(P+4)
            elif 'noread' in VAR: pass
            elif t=='RV1': rdV1(tl)
            elif t=='RK': rdK((tl+2)&7)
            elif t=='RV0': rdV0((tl+1)&7)
    LT0=k.lab("T0"); LT6=k.lab("T6"); LX=k.lab("X"); LG1=k.lab("G1")
    if 'sprio' in VAR:
        LP=k.lab("P"); e(f"s_cmp_lt_u32 s58, 4\ns_cbranch_scc1 {LP}\ns_setprio 1\n{LP}:")
    e("s_mov_b32 s39, 0")
    e(f"s_branch {LT0}")
    e(f"{LT6}:")
    e(f"v_add_u32 v{AK}, s59, v{AK}\nv_add_u32 v{AK+1}, s59, v{AK+1}")
    slot(6)
    e(f"v_add_u32 v{AV0}, s59, v{AV0}")
    slot(7)
    e(f"v_add_u32 v{AV1}, s59, v{AV1}")
    e(f"s_cmp_eq_u32 s39, 8\ns_cbranch_scc1 {LX} ; @exit")
    e(f"{LT0}:")
    slot(0); slot(1)
    LMR=k.lab("MR"); MID=[k.lab(f"MID{c}") for c in range(8)]; LMD=k.lab("MD")
    e(f"s_cmp_lt_u32 s58, 4\ns_cbranch_scc1 {LMD} ; @alt")
    e(f"{LMR}:")
    for tl in range(2,6): slot(tl)
    e("s_and_b32 s47, s39, 3\ns_mov_b32 s59, 0xfffe8000\ns_cmp_eq_u32 s47, 3\ns_cselect_b32 s59, s59, 0x8000")
    e(f"s_cmp_ge_u32 s58, 4\ns_cbranch_scc1 {LG1} ; @g1")
    LNB=k.lab("NB")
    e(f"s_cmp_eq_u32 s39, 7\ns_cbranch_scc1 {LNB}")
    e("s_barrier")
    e(f"{LNB}:")
    e(f"s_add_u32 s39, s39, 1\ns_branch {LT6}")
    e(f"{LG1}:")
    LG1c=k.lab("G1c")
    e(f"s_cmp_eq_u32 s39, 7\ns_cbranch_scc1 {LG1c}")
    e("s_waitcnt vmcnt(0)\ns_barrier")
    e(f"s_cmp_ge_u32 s39, 6\ns_cbranch_scc1 {LG1c}")
    e("s_add_u32 s30, s39, 2\ns_lshl_b32 s31, s30, 15\ns_and_b32 s30, s30, 3\ns_lshl_b32 s30, s30, 15\ns_add_u32 s30, s30, s38\ns_add_u32 s31, s31, s38")
    for gi in range(2):
        e(f"s_add_u32 m0, s30, {gi*4096}\ns_add_u32 s47, s31, {gi*4096}")
        for i in range(4):
            e(f"buffer_load_dwordx4 v3, s[12:15], s47 offen offset:{i*1024} lds")
    e(f"{LG1c}:")
    e(f"s_add_u32 s39, s39, 1\ns_branch {LT6}")
    def cs_dma(r):
        e(f"s_mov_b32 s30, {r*32*7168}")
        for i in range(7):
            e(f"s_add_u32 m0, s56, {i*1024}\ns_nop 0")
            e(f"buffer_load_dwordx4 v{CSV+i}, s[20:23], s30 offen lds")
    def cs_mfma(r):
        for v in range(7):
            for t in range(2):
                e(f"ds_read_b64_tr_b16 v[{CSF+4*v+2*t}:{CSF+4*v+2*t+1}], v{VCR} offset:{v*32+t*3584}")
        e("s_waitcnt lgkmcnt(0)")
        for v in range(7):
            a=CSACC+4*v
            c="0" if r==0 else f"v[{a}:{a+3}]"
            e(f"v_mfma_f32_16x16x32_bf16 v[{a}:{a+3}], v[{CSF+4*v}:{CSF+4*v+3}], v[{ONES}:{ONES+3}], {c}")
    def prefetch(srd, base_s, first, n):
        e(f"s_mov_b32 m0, {DUM}")
        for i in range(n):
            e(f"s_add_u32 s47, s{base_s}, {(first+i)*1024}")
            e(f"buffer_load_dwordx4 v3, s[{srd}:{srd+3}], s47 offen lds")
    side='noside' not in VAR
    SCHED=os.environ.get('K1SCHED','early')
    e(f"{LMD}:")
    hooks=(0,1,3,4,5,6,7) if SCHED=='early' else (1,3,4,5,6,7)
    if side:
        for c in hooks:
            e(f"s_cmp_eq_u32 s39, {c}\ns_cbranch_scc1 {MID[c]}")
    e(f"s_branch {LMR}")
    def wd_loads():
        for i in range(7):
            e(f"s_mov_b32 s30, {i*8*2048}\nbuffer_load_dwordx4 v[{WDR+4*i}:{WDR+4*i+3}], v{VWD}, s[52:55], s30 offen")
    def wd_stores():
        for i in range(7):
            e(f"s_add_u32 s30, s63, {i*1024}\nbuffer_store_dwordx4 v[{WDR+4*i}:{WDR+4*i+3}], v3, s[72:75], s30 offen {os.environ.get('WDST','sc1')}")
    def cs_partials():
        e(f"v_lshrrev_b32 v4, 4, v2\nv_lshlrev_b32 v4, 4, v4\ns_mul_i32 s30, s33, 448\ns_add_u32 s30, s30, {CSS}\nv_add_u32 v4, s30, v4")
        e("v_and_b32 v5, 15, v2\nv_cmp_eq_u32 vcc, 0, v5\ns_and_saveexec_b64 s[66:67], vcc")
        k.nop(2)
        for v in range(7): e(f"ds_write_b128 v4, v[{CSACC+4*v}:{CSACC+4*v+3}] offset:{v*64}")
        e("s_mov_b64 exec, s[66:67]\ns_waitcnt lgkmcnt(0)")
    def cs_final():
        LS=k.lab("CSS")
        e("v_cmp_gt_u32 vcc, 112, v0\ns_and_saveexec_b64 s[66:67], vcc")
        e(f"s_cbranch_execz {LS}")
        e(f"v_lshlrev_b32 v4, 2, v0\nv_add_u32 v4, {CSS}, v4")
        for j in range(4): e(f"ds_read_b32 v{16+j}, v4 offset:{j*448}")
        e("s_and_b32 s30, s2, 3\ns_mul_i32 s30, s30, 28672\ns_lshr_b32 s31, s2, 7\ns_mul_i32 s31, s31, 14336\ns_add_u32 s30, s30, s31")
        e("s_bfe_u32 s31, s2, 0x50002\ns_mul_i32 s31, s31, 448\ns_add_u32 s30, s30, s31")
        e("v_lshlrev_b32 v4, 2, v0\ns_waitcnt lgkmcnt(0)")
        e("v_add_f32 v16, v16, v17\nv_add_f32 v18, v18, v19\nv_add_f32 v16, v16, v18")
        e("buffer_store_dword v16, v4, s[24:27], s30 offen")
        e(f"{LS}:\ns_mov_b64 exec, s[66:67]")
    for c in hooks:
        if not side: break
        e(f"{MID[c]}:")
        if SCHED=='early':
            if c==0: cs_dma(0)
            if c==1: wd_loads()
            if c==3: e("s_waitcnt vmcnt(7)"); cs_mfma(0); cs_dma(1)
            if c==4: e("s_waitcnt vmcnt(7)"); wd_stores()
            if c==5: prefetch(48,62,0,8)
            if c==6: e("s_waitcnt vmcnt(15)"); cs_mfma(1); cs_partials()
            if c==7:
                cs_final(); prefetch(48,62,8,8)
                k.code_prefetch("k2_wo_kernel", 4864, 4, 132, 76)
        else:
            if c==1: cs_dma(0)
            if c==3: e("s_waitcnt vmcnt(0)"); cs_mfma(0); cs_dma(1)
            if c==4: wd_loads()
            if c==5: e("s_waitcnt vmcnt(7)"); cs_mfma(1); cs_partials()
            if c==6:
                e("s_waitcnt vmcnt(0)"); wd_stores(); cs_final(); prefetch(48,62,0,8)
            if c==7:
                prefetch(48,62,8,8)
                k.code_prefetch("k2_wo_kernel", 4864, 4, 132, 76)
        e(f"s_branch {LMR}")
    e(f"{LX}:")
    if os.environ.get('K1ST') not in ('1','2'): k.stamp_mid(1)
    e("s_waitcnt lgkmcnt(0)")
    mf(O,V1,P+4); rs(P+4)
    k.nop(12)
    LFB=k.lab("FB"); LFIN=k.lab("FIN")
    e(f"v_mov_b32 v8, 0")
    for i in range(16): e(f"v_fmac_f32 v8, 0, v{O+i}")
    e(f"v_mov_b32 v9, {hex(f2u(2.0**-60))}\nv_mov_b32 v10, {hex(f2u(2.0**60))}")
    e(f"v_cmp_o_f32 s[64:65], v8, v8")
    e(f"v_cmp_le_f32 s[66:67], v9, v{Lr}")
    e(f"v_cmp_ge_f32 s[70:71], v10, v{Lr}")
    e("s_and_b64 s[64:65], s[64:65], s[66:67]\ns_and_b64 s[64:65], s[64:65], s[70:71]")
    e(f"s_cmp_eq_u64 s[64:65], exec\ns_cbranch_scc0 {LFB}")
    e(f"{LFIN}:")
    e(f"v_rcp_f32 v8, v{Lr}")
    e("s_nop 0")
    for i in range(16): e(f"v_mul_f32 v{O+i}, v{O+i}, v8")
    for i in range(8): e(f"v_cvt_pk_bf16_f32 v{16+i}, v{O+2*i}, v{O+2*i+1}")
    for j in range(2):
        e(f"buffer_store_dwordx4 v[{16+4*j}:{19+4*j}], v{VO}, s[16:19], 0 offen offset:{j*1024} {os.environ.get('K1STF','sc1')}")
    e("s_waitcnt vmcnt(0)")
    k.stamp_end(1)
    e("s_endpgm")
    e(f"{LFB}:")
    e("s_waitcnt vmcnt(0)")
    e("v_and_b32 v8, 31, v2\nv_bfe_u32 v9, v2, 2, 2\nv_lshrrev_b32 v10, 5, v2\nv_xor_b32 v9, v9, v10")
    e(f"v_lshlrev_b32 v8, 6, v8\nv_lshl_add_u32 v{AK}, v9, 4, v8\nv_xor_b32 v9, 2, v9\nv_lshl_add_u32 v{AK+1}, v9, 4, v8")
    e("v_mov_b32 v8, 0xff800000")
    F1=k.lab("F1"); F2=k.lab("F2")
    e(f"s_mov_b32 s47, 0\n{F1}:")
    for m in range(2): e(f"buffer_load_dwordx4 v[{KF+4*m}:{KF+4*m+3}], v{AK+m}, s[12:15], s47 offen")
    e("s_waitcnt vmcnt(0)")
    mf(SS,KF,Q,"0"); mf(SS,KF+4,Q+4)
    k.nop(12)
    for i in range(16): e(f"v_max_f32 v8, v8, v{SS+i}")
    e(f"s_add_u32 s47, s47, 4096\ns_cmp_lt_u32 s47, {64*4096}\ns_cbranch_scc1 {F1}")
    e("v_mov_b32 v10, v8\ns_nop 1\nv_permlane32_swap_b32 v8, v10\ns_nop 1\nv_max_f32 v8, v8, v10")
    for i in range(16): e(f"v_mov_b32 v{O+i}, 0")
    for i in range(4): e(f"v_mov_b32 v{Lr+i}, 0")
    e(f"s_mov_b32 s47, 0\n{F2}:")
    for m in range(2): e(f"buffer_load_dwordx4 v[{KF+4*m}:{KF+4*m+3}], v{AK+m}, s[12:15], s47 offen")
    e(f"buffer_load_dwordx4 v[{V0}:{V0+3}], v{AK}, s[12:15], s47 offen offset:2048")
    e(f"buffer_load_dwordx4 v[{V1}:{V1+3}], v{AK+1}, s[12:15], s47 offen offset:2048")
    e("s_waitcnt vmcnt(0)")
    mf(SS,KF,Q,"0"); mf(SS,KF+4,Q+4)
    k.nop(12)
    for i in range(16): e(f"v_sub_f32 v{SS+i}, v{SS+i}, v8")
    for i in range(16): e(f"v_exp_f32 v{SS+i}, v{SS+i}")
    e("s_nop 0")
    for i in range(8): e(f"v_cvt_pk_bf16_f32 v{P+i}, v{SS+2*i}, v{SS+2*i+1}")
    e("s_nop 1")
    mf(O,V0,P); mf(O,V1,P+4); rs(P); rs(P+4)
    k.nop(12)
    e(f"s_add_u32 s47, s47, 4096\ns_cmp_lt_u32 s47, {64*4096}\ns_cbranch_scc1 {F2}")
    e(f"s_branch {LFIN}")
    e(f"{END}:")
    e("s_endpgm")
    return k
```

```python
from base import *
import os

def dpp_reduce(k, regs):
    seq=["row_shr:1 row_mask:0xf bank_mask:0xf","row_shr:2 row_mask:0xf bank_mask:0xf",
         "row_shr:4 row_mask:0xf bank_mask:0xf","row_shr:8 row_mask:0xf bank_mask:0xf",
         "row_bcast:15 row_mask:0xa bank_mask:0xf","row_bcast:31 row_mask:0xc bank_mask:0xf"]
    for s in seq:
        k.nop(max(0,2-(len(regs)-1)))
        for r in regs:
            k.e(f"v_add_f32_dpp v{r}, v{r}, v{r} {s}")

def gen_k0():
    XL=65536; XLS=2080; RED=XL+16*XLS; DUMMY=RED+2048
    k=Kern("k0_ln_kv_kernel", 256, 256, DUMMY+4096, vgpr=132, sgpr=64)
    e=k.e
    END=k.lab("END")
    e(f"s_cmp_ge_u32 s2, 256\ns_cbranch_scc1 {END}")
    k.stamp_begin()
    k.code_prefetch_all("k0_ln_kv_kernel", 124, 124, 60)
    k.load_ptr(4,'x'); k.load_ptr(8,'wk'); k.load_ptr(12,'wv'); k.load_ptr(24,'wq'); k.load_ptr(28,'ws')
    e("v_lshrrev_b32 v1, 6, v0\nv_and_b32 v2, 63, v0")
    e("s_and_b32 s40, s2, 7\ns_lshr_b32 s41, s2, 3\ns_lshl_b32 s40, s40, 4\ns_lshr_b32 s42, s41, 1\ns_add_u32 s32, s40, s42\ns_and_b32 s43, s41, 1")
    e("v_readfirstlane_b32 s33, v1")
    e("v_lshlrev_b32 v3, 4, v2")
    e("v_lshrrev_b32 v4, 2, v2\nv_lshlrev_b32 v4, 6, v4\nv_lshrrev_b32 v5, 5, v2\nv_lshlrev_b32 v5, 1, v5\nv_and_b32 v6, 3, v2\nv_xor_b32 v5, v5, v6\nv_lshl_add_u32 v4, v5, 4, v4")
    e("s_waitcnt lgkmcnt(0)")
    e("s_cmp_eq_u32 s43, 1\ns_cselect_b32 s8, s12, s8\ns_cselect_b32 s9, s13, s9")
    k.srd(4, 2048*2048); k.srd(8, 65536); k.srd(24, 2*MB)
    k.srd(16, 4*MB, src=28, add=WS_XN) ; k.srd(20, 64*4096, src=28, add=WS_KV); k.srd(56, 2*MB, src=28, add=WS_WQB)
    if os.environ.get('TLBPF','0')=='1':
        LT=k.lab("TLB")
        e(f"s_cmp_ge_u32 s2, 8\ns_cbranch_scc1 {LT}")
        e(f"s_cmp_lg_u32 s33, 3\ns_cbranch_scc1 {LT}")
        for nm,sz,st in (('wo',2*MB,15),('wg',3584*2048,17),('wu',3584*2048,17),('wd',3584*2048,17),('out',4*MB,16)):
            e(f"s_load_dwordx2 s[60:61], s[0:1], {KA[nm]}\nv_lshlrev_b32 v128, {st}, v2\nv_min_u32 v128, {sz-4}, v128\ns_waitcnt lgkmcnt(0)")
            e("global_load_dword v129, v128, s[60:61] ; @pf")
        e(f"v_lshlrev_b32 v128, 20, v2\nv_min_u32 v128, {44*MB}, v128")
        e("global_load_dword v129, v128, s[28:29] ; @pf")
        e(f"{LT}:")
    e("s_lshl_b32 s40, s32, 4\ns_lshl_b32 s41, s33, 2\ns_add_u32 s40, s40, s41\ns_lshl_b32 s34, s40, 11")
    e("s_add_u32 s44, s34, 4096")
    for r in range(4):
        so = "s34" if r<2 else "s44"
        for j in range(2):
            e(f"buffer_load_dwordx4 v[{8+8*r+4*j}:{11+8*r+4*j}], v3, s[4:7], {so} offen offset:{(r&1)*2048+1024*j}")
    e("s_lshl_b32 s35, s33, 14")
    for g in range(4):
        e(f"s_add_u32 s36, s35, {g*4096}")
        e(f"s_mov_b32 m0, s36\ns_nop 0")
        for i in range(4):
            e(f"buffer_load_dwordx4 v4, s[8:11], s36 offen offset:{1024*i} lds")
    e("s_lshl_b32 s40, s2, 2\ns_add_u32 s40, s40, s33\ns_and_b32 s41, s40, 63\ns_lshl_b32 s41, s41, 4\ns_lshr_b32 s42, s40, 6\ns_lshl_b32 s42, s42, 7\ns_lshl_b32 s52, s40, 11")
    e("v_lshrrev_b32 v112, 3, v2\nv_add_u32 v112, s41, v112\nv_lshlrev_b32 v112, 11, v112\nv_add_u32 v112, s42, v112")
    e("v_bfe_u32 v113, v2, 4, 1\nv_lshlrev_b32 v113, 2, v113\nv_and_b32 v114, 7, v2\nv_xor_b32 v113, v113, v114\nv_lshl_add_u32 v112, v113, 4, v112")
    e("s_mov_b32 s53, 16384")
    e("buffer_load_dwordx4 v[116:119], v112, s[24:27], 0 offen\nbuffer_load_dwordx4 v[120:123], v112, s[24:27], s53 offen")
    e("s_waitcnt vmcnt(18)")
    if os.environ.get('K0ST')=='1': k.stamp_mid(0)
    X=48
    for row in range(4):
        for j in range(8):
            e(f"v_lshlrev_b32 v{X+16*row+2*j}, 16, v{8+8*row+j}")
            e(f"v_and_b32 v{X+1+16*row+2*j}, 0xffff0000, v{8+8*row+j}")
    for row in range(4):
        b=X+16*row; d=40+row
        e(f"v_add_f32 v{d}, v{b}, v{b+1}")
        for i in range(2,16): e(f"v_add_f32 v{d}, v{d}, v{b+i}")
    dpp_reduce(k,[40,41,42,43])
    e(f"v_mov_b32 v112, {hex(f2u(1/1024.))}\nv_mov_b32 v113, {hex(f2u(1e-5))}")
    for row in range(4): e(f"v_readlane_b32 s{48+row}, v{40+row}, 63")
    e("s_nop 0")
    for row in range(4): e(f"v_mul_f32 v{44+row}, s{48+row}, v112")
    for row in range(4):
        b=X+16*row
        for i in range(16): e(f"v_sub_f32 v{b+i}, v{b+i}, v{44+row}")
    for row in range(4):
        b=X+16*row; d=40+row
        e(f"v_mul_f32 v{d}, v{b}, v{b}")
        for i in range(1,16): e(f"v_fmac_f32 v{d}, v{b+i}, v{b+i}")
    dpp_reduce(k,[40,41,42,43])
    e("s_nop 0")
    for row in range(4): e(f"v_readlane_b32 s{48+row}, v{40+row}, 63")
    e("s_nop 0")
    for row in range(4): e(f"v_fma_f32 v{44+row}, s{48+row}, v112, v113")
    for row in range(4): e(f"v_rsq_f32 v{44+row}, v{44+row}")
    for row in range(4):
        b=X+16*row
        for i in range(16): e(f"v_mul_f32 v{b+i}, v{b+i}, v{44+row}")
    for row in range(4):
        b=X+16*row
        for j in range(8): e(f"v_cvt_pk_bf16_f32 v{8+8*row+j}, v{b+2*j}, v{b+2*j+1}")
    e(f"s_lshl_b32 s40, s33, 2\ns_mul_i32 s40, s40, {XLS}\ns_add_u32 s40, s40, {XL}")
    e("v_add_u32 v5, s40, v3")
    for r in range(4):
        e(f"ds_write_b128 v5, v[{8+8*r}:{11+8*r}] offset:{r*XLS}")
        e(f"ds_write_b128 v5, v[{12+8*r}:{15+8*r}] offset:{r*XLS+1024}")
    e("s_and_b32 s41, s33, 1\ns_lshr_b32 s42, s33, 1")
    e("v_lshrrev_b32 v6, 4, v2\nv_and_b32 v7, 15, v2\nv_lshrrev_b32 v44, 2, v7\nv_and_b32 v45, 3, v2")
    e("v_lshl_add_u32 v44, v6, 3, v44\nv_lshlrev_b32 v44, 6, v44")
    e("v_lshrrev_b32 v46, 1, v45\ns_lshl_b32 s45, s41, 1\nv_add_u32 v46, s45, v46")
    e("v_and_b32 v47, 1, v6\nv_lshlrev_b32 v47, 1, v47\nv_xor_b32 v46, v46, v47")
    e("v_lshl_add_u32 v44, v46, 4, v44")
    e("v_and_b32 v47, 1, v45\nv_lshl_add_u32 v44, v47, 3, v44")
    e("s_lshl_b32 s45, s42, 15\nv_add_u32 v44, s45, v44")
    e(f"v_mul_u32_u24 v46, {XLS}, v7\nv_lshl_add_u32 v46, v6, 4, v46\ns_lshl_b32 s45, s42, 10\ns_add_u32 s45, s45, {XL}\nv_add_u32 v45, s45, v46")
    if os.environ.get('K0ST')=='1': k.stamp_mid(1)
    e("s_waitcnt vmcnt(0) lgkmcnt(0)")
    e("buffer_store_dwordx4 v[116:119], v3, s[56:59], s52 offen sc1\nbuffer_store_dwordx4 v[120:123], v3, s[56:59], s52 offen offset:1024 sc1")
    e("s_barrier")
    if os.environ.get('K0ST')=='2':
        k.stamp_mid(0); e("s_waitcnt lgkmcnt(0)")
    e(f"s_lshl_b32 s45, s43, 4\ns_lshl_b32 s46, s33, 2\ns_add_u32 s45, s45, s46")
    e(f"v_mul_u32_u24 v46, {XLS}, v7\nv_lshl_add_u32 v46, v6, 4, v46\ns_lshl_b32 s46, s45, 6\ns_add_u32 s46, s46, {XL}\nv_add_u32 v46, s46, v46")
    for i in range(4): e(f"ds_read_b128 v[{96+4*i}:{99+4*i}], v46 offset:{64*i}")
    e("v_lshrrev_b32 v47, 1, v6\nv_lshlrev_b32 v47, 10, v47\nv_and_b32 v112, 1, v6\nv_lshl_add_u32 v47, v112, 9, v47\nv_lshl_add_u32 v47, v7, 4, v47")
    e("s_lshr_b32 s46, s32, 1\ns_lshl_b32 s46, s46, 16\ns_and_b32 s47, s32, 1\ns_lshl_b32 s47, s47, 8\ns_add_u32 s46, s46, s47\ns_lshl_b32 s47, s45, 11\ns_add_u32 s46, s46, s47")
    e("s_waitcnt lgkmcnt(0)")
    for i in range(4):
        e(f"s_add_u32 s47, s46, {i*2048}\nbuffer_store_dwordx4 v[{96+4*i}:{99+4*i}], v47, s[16:19], s47 offen {os.environ.get('K0STF','sc1')}")
    LK=k.lab("V"); LE=k.lab("EPI")
    def gemm(swap):
        D=4
        def rd(s):
            b=48+8*(s%D)
            e(f"ds_read_b64_tr_b16 v[{b}:{b+1}], v44 offset:{s*2048}")
            e(f"ds_read_b64_tr_b16 v[{b+2}:{b+3}], v44 offset:{s*2048+256}")
            e(f"ds_read_b128 v[{b+4}:{b+7}], v45 offset:{s*64}")
        for s in range(D-1): rd(s)
        for s in range(16):
            if s+D-1<16: rd(s+D-1)
            left=min(D-1,15-s)
            e(f"s_waitcnt lgkmcnt({3*left})")
            b=48+8*(s%D)
            c = "0" if s==0 else "v[40:43]"
            if not swap: e(f"v_mfma_f32_16x16x32_bf16 v[40:43], v[{b}:{b+3}], v[{b+4}:{b+7}], {c}")
            else:        e(f"v_mfma_f32_16x16x32_bf16 v[40:43], v[{b+4}:{b+7}], v[{b}:{b+3}], {c}")
        LR=k.lab("RED");
        e(f"s_lshl_b32 s45, s41, 10\ns_add_u32 s45, s45, {RED}\nv_add_u32 v46, s45, v3")
        k.nop(4)
        e(f"s_cmp_eq_u32 s42, 0\ns_cbranch_scc1 {LR}")
        e("ds_write_b128 v46, v[40:43]\ns_waitcnt lgkmcnt(0)\ns_barrier")
        e(f"s_branch {LE}")
        e(f"{LR}:")
        e("s_barrier\nds_read_b128 v[48:51], v46\ns_waitcnt lgkmcnt(0)")
        for i in range(4): e(f"v_add_f32 v{40+i}, v{40+i}, v{48+i}")
    e(f"s_cmp_eq_u32 s43, 1\ns_cbranch_scc1 {LK} ; @alt")
    gemm(False)
    e("v_bfe_u32 v64, v7, 2, 1\nv_lshrrev_b32 v65, 3, v7\nv_and_b32 v66, 3, v7")
    e("v_lshl_add_u32 v66, v64, 3, v66\nv_lshl_add_u32 v66, v65, 2, v66\ns_and_b32 s44, s32, 1\ns_lshl_b32 s44, s44, 4\nv_add_u32 v66, s44, v66")
    e("v_lshlrev_b32 v67, 6, v66")
    e("v_lshrrev_b32 v68, 1, v6\nv_lshlrev_b32 v68, 1, v68\nv_add_u32 v68, s41, v68\nv_bfe_u32 v65, v66, 2, 2\nv_xor_b32 v68, v68, v65")
    e("v_lshl_add_u32 v67, v68, 4, v67\nv_and_b32 v68, 1, v6\nv_lshl_add_u32 v67, v68, 3, v67")
    e("s_lshr_b32 s44, s32, 1\ns_lshl_b32 s44, s44, 12")
    e("v_cvt_pk_bf16_f32 v40, v40, v41\nv_cvt_pk_bf16_f32 v41, v42, v43")
    e("buffer_store_dwordx2 v[40:41], v67, s[20:23], s44 offen")
    e(f"s_branch {LE}")
    e(f"{LK}:")
    gemm(True)
    e("v_lshrrev_b32 v65, 2, v7\nv_and_b32 v66, 3, v7\nv_lshl_add_u32 v66, v65, 3, v66\ns_lshl_b32 s44, s41, 2\nv_add_u32 v66, s44, v66")
    e("v_lshlrev_b32 v67, 6, v66")
    e("v_lshlrev_b32 v65, 1, v65\nv_add_u32 v65, s41, v65\nv_and_b32 v65, 3, v65")
    e("v_lshrrev_b32 v68, 1, v6\ns_and_b32 s44, s32, 1\ns_lshl_b32 s44, s44, 1\nv_add_u32 v68, s44, v68\nv_xor_b32 v65, v68, v65")
    e("v_lshl_add_u32 v67, v65, 4, v67\nv_and_b32 v68, 1, v6\nv_lshl_add_u32 v67, v68, 3, v67")
    e("s_lshr_b32 s44, s32, 1\ns_lshl_b32 s44, s44, 12\ns_add_u32 s44, s44, 2048")
    e("v_cvt_pk_bf16_f32 v40, v40, v41\nv_cvt_pk_bf16_f32 v41, v42, v43")
    e("buffer_store_dwordx2 v[40:41], v67, s[20:23], s44 offen")
    e(f"{LE}:")
    if os.environ.get('K0ST')=='2': k.stamp_mid(1)
    e("s_waitcnt vmcnt(0)")
    k.stamp_end(0)
    e(f"{END}:")
    e("s_endpgm")
    return k
```

```python
from base import *
import os

def dpp_reduce(k, regs):
    seq=["row_shr:1 row_mask:0xf bank_mask:0xf","row_shr:2 row_mask:0xf bank_mask:0xf",
         "row_shr:4 row_mask:0xf bank_mask:0xf","row_shr:8 row_mask:0xf bank_mask:0xf",
         "row_bcast:15 row_mask:0xa bank_mask:0xf","row_bcast:31 row_mask:0xc bank_mask:0xf"]
    for s in seq:
        k.nop(max(0,2-(len(regs)-1)))
        for r in regs:
            k.e(f"v_add_f32_dpp v{r}, v{r}, v{r} {s}")

def gen_k0():
    XL=65536; XLS=2080; RED=XL+16*XLS; DUMMY=RED+2048
    k=Kern("k0_ln_kv_kernel", 256, 256, DUMMY+4096, vgpr=132, sgpr=64)
    e=k.e
    END=k.lab("END")
    e(f"s_cmp_ge_u32 s2, 256\ns_cbranch_scc1 {END}")
    k.stamp_begin()
    k.load_ptr(4,'x'); k.load_ptr(8,'wk'); k.load_ptr(12,'wv'); k.load_ptr(24,'wq'); k.load_ptr(28,'ws')
    k.code_prefetch_all("k0_ln_kv_kernel", 124, 124, 60)
    e("v_lshrrev_b32 v1, 6, v0\nv_and_b32 v2, 63, v0")
    e("s_and_b32 s40, s2, 7\ns_lshr_b32 s41, s2, 3\ns_lshl_b32 s40, s40, 4\ns_lshr_b32 s42, s41, 1\ns_add_u32 s32, s40, s42\ns_and_b32 s43, s41, 1")
    e("v_readfirstlane_b32 s33, v1")
    e("v_lshlrev_b32 v3, 4, v2")
    e("s_lshl_b32 s40, s32, 4\ns_lshl_b32 s41, s33, 2\ns_add_u32 s40, s40, s41\ns_lshl_b32 s34, s40, 11")
    e("s_add_u32 s44, s34, 4096")
    e("s_waitcnt lgkmcnt(0)")
    k.srd(4, 2048*2048)
    for r in range(4):
        so = "s34" if r<2 else "s44"
        for j in range(2):
            e(f"buffer_load_dwordx4 v[{8+8*r+4*j}:{11+8*r+4*j}], v3, s[4:7], {so} offen offset:{(r&1)*2048+1024*j}")
    e("v_lshrrev_b32 v4, 2, v2\nv_lshlrev_b32 v4, 6, v4\nv_lshrrev_b32 v5, 5, v2\nv_lshlrev_b32 v5, 1, v5\nv_and_b32 v6, 3, v2\nv_xor_b32 v5, v5, v6\nv_lshl_add_u32 v4, v5, 4, v4")
    e("s_cmp_eq_u32 s43, 1\ns_cselect_b32 s8, s12, s8\ns_cselect_b32 s9, s13, s9")
    k.srd(8, 65536); k.srd(24, 2*MB)
    k.srd(16, 4*MB, src=28, add=WS_XN) ; k.srd(20, 64*4096, src=28, add=WS_KV); k.srd(56, 2*MB, src=28, add=WS_WQB)
    e("s_lshl_b32 s35, s33, 14")
    for g in range(4):
        e(f"s_add_u32 s36, s35, {g*4096}")
        e(f"s_mov_b32 m0, s36\ns_nop 0")
        for i in range(4):
            e(f"buffer_load_dwordx4 v4, s[8:11], s36 offen offset:{1024*i} lds")
    e("s_lshl_b32 s40, s2, 2\ns_add_u32 s40, s40, s33\ns_and_b32 s41, s40, 63\ns_lshl_b32 s41, s41, 4\ns_lshr_b32 s42, s40, 6\ns_lshl_b32 s42, s42, 7\ns_lshl_b32 s52, s40, 11")
    e("v_lshrrev_b32 v112, 3, v2\nv_add_u32 v112, s41, v112\nv_lshlrev_b32 v112, 11, v112\nv_add_u32 v112, s42, v112")
    e("v_bfe_u32 v113, v2, 4, 1\nv_lshlrev_b32 v113, 2, v113\nv_and_b32 v114, 7, v2\nv_xor_b32 v113, v113, v114\nv_lshl_add_u32 v112, v113, 4, v112")
    e("s_mov_b32 s53, 16384")
    e("buffer_load_dwordx4 v[116:119], v112, s[24:27], 0 offen\nbuffer_load_dwordx4 v[120:123], v112, s[24:27], s53 offen")
    e("s_waitcnt vmcnt(18)")
    if os.environ.get('K0ST')=='1': k.stamp_mid(0)
    X=48
    for row in range(4):
        for j in range(8):
            e(f"v_lshlrev_b32 v{X+16*row+2*j}, 16, v{8+8*row+j}")
            e(f"v_and_b32 v{X+1+16*row+2*j}, 0xffff0000, v{8+8*row+j}")
    for row in range(4):
        b=X+16*row; d=40+row
        e(f"v_add_f32 v{d}, v{b}, v{b+1}")
        for i in range(2,16): e(f"v_add_f32 v{d}, v{d}, v{b+i}")
    dpp_reduce(k,[40,41,42,43])
    e(f"v_mov_b32 v112, {hex(f2u(1/1024.))}\nv_mov_b32 v113, {hex(f2u(1e-5))}")
    for row in range(4): e(f"v_readlane_b32 s{48+row}, v{40+row}, 63")
    e("s_nop 0")
    for row in range(4): e(f"v_mul_f32 v{44+row}, s{48+row}, v112")
    for row in range(4):
        b=X+16*row
        for i in range(16): e(f"v_sub_f32 v{b+i}, v{b+i}, v{44+row}")
    for row in range(4):
        b=X+16*row; d=40+row
        e(f"v_mul_f32 v{d}, v{b}, v{b}")
        for i in range(1,16): e(f"v_fmac_f32 v{d}, v{b+i}, v{b+i}")
    dpp_reduce(k,[40,41,42,43])
    e("s_nop 0")
    for row in range(4): e(f"v_readlane_b32 s{48+row}, v{40+row}, 63")
    e("s_nop 0")
    for row in range(4): e(f"v_fma_f32 v{44+row}, s{48+row}, v112, v113")
    for row in range(4): e(f"v_rsq_f32 v{44+row}, v{44+row}")
    for row in range(4):
        b=X+16*row
        for i in range(16): e(f"v_mul_f32 v{b+i}, v{b+i}, v{44+row}")
    for row in range(4):
        b=X+16*row
        for j in range(8): e(f"v_cvt_pk_bf16_f32 v{8+8*row+j}, v{b+2*j}, v{b+2*j+1}")
    e(f"s_lshl_b32 s40, s33, 2\ns_mul_i32 s40, s40, {XLS}\ns_add_u32 s40, s40, {XL}")
    e("v_add_u32 v5, s40, v3")
    for r in range(4):
        e(f"ds_write_b128 v5, v[{8+8*r}:{11+8*r}] offset:{r*XLS}")
        e(f"ds_write_b128 v5, v[{12+8*r}:{15+8*r}] offset:{r*XLS+1024}")
    e("s_and_b32 s41, s33, 1\ns_lshr_b32 s42, s33, 1")
    e("v_lshrrev_b32 v6, 4, v2\nv_and_b32 v7, 15, v2\nv_lshrrev_b32 v44, 2, v7\nv_and_b32 v45, 3, v2")
    e("v_lshl_add_u32 v44, v6, 3, v44\nv_lshlrev_b32 v44, 6, v44")
    e("v_lshrrev_b32 v46, 1, v45\ns_lshl_b32 s45, s41, 1\nv_add_u32 v46, s45, v46")
    e("v_and_b32 v47, 1, v6\nv_lshlrev_b32 v47, 1, v47\nv_xor_b32 v46, v46, v47")
    e("v_lshl_add_u32 v44, v46, 4, v44")
    e("v_and_b32 v47, 1, v45\nv_lshl_add_u32 v44, v47, 3, v44")
    e("s_lshl_b32 s45, s42, 15\nv_add_u32 v44, s45, v44")
    e(f"v_mul_u32_u24 v46, {XLS}, v7\nv_lshl_add_u32 v46, v6, 4, v46\ns_lshl_b32 s45, s42, 10\ns_add_u32 s45, s45, {XL}\nv_add_u32 v45, s45, v46")
    if os.environ.get('K0ST')=='1': k.stamp_mid(1)
    e("s_waitcnt vmcnt(0) lgkmcnt(0)")
    e("buffer_store_dwordx4 v[116:119], v3, s[56:59], s52 offen sc1\nbuffer_store_dwordx4 v[120:123], v3, s[56:59], s52 offen offset:1024 sc1")
    e("s_barrier")
    if os.environ.get('K0ST')=='2':
        k.stamp_mid(0); e("s_waitcnt lgkmcnt(0)")
    e(f"s_lshl_b32 s45, s43, 4\ns_lshl_b32 s46, s33, 2\ns_add_u32 s45, s45, s46")
    e(f"v_mul_u32_u24 v46, {XLS}, v7\nv_lshl_add_u32 v46, v6, 4, v46\ns_lshl_b32 s46, s45, 6\ns_add_u32 s46, s46, {XL}\nv_add_u32 v46, s46, v46")
    for i in range(4): e(f"ds_read_b128 v[{96+4*i}:{99+4*i}], v46 offset:{64*i}")
    e("v_lshrrev_b32 v47, 1, v6\nv_lshlrev_b32 v47, 10, v47\nv_and_b32 v112, 1, v6\nv_lshl_add_u32 v47, v112, 9, v47\nv_lshl_add_u32 v47, v7, 4, v47")
    e("s_lshr_b32 s46, s32, 1\ns_lshl_b32 s46, s46, 16\ns_and_b32 s47, s32, 1\ns_lshl_b32 s47, s47, 8\ns_add_u32 s46, s46, s47\ns_lshl_b32 s47, s45, 11\ns_add_u32 s46, s46, s47")
    e("s_waitcnt lgkmcnt(0)")
    for i in range(4):
        e(f"s_add_u32 s47, s46, {i*2048}\nbuffer_store_dwordx4 v[{96+4*i}:{99+4*i}], v47, s[16:19], s47 offen {os.environ.get('K0STF','sc1')}")
    LK=k.lab("V"); LE=k.lab("EPI")
    def gemm(swap):
        D=4
        def rd(s):
            b=48+8*(s%D)
            e(f"ds_read_b64_tr_b16 v[{b}:{b+1}], v44 offset:{s*2048}")
            e(f"ds_read_b64_tr_b16 v[{b+2}:{b+3}], v44 offset:{s*2048+256}")
            e(f"ds_read_b128 v[{b+4}:{b+7}], v45 offset:{s*64}")
        for s in range(D-1): rd(s)
        for s in range(16):
            if s+D-1<16: rd(s+D-1)
            left=min(D-1,15-s)
            e(f"s_waitcnt lgkmcnt({3*left})")
            b=48+8*(s%D)
            c = "0" if s==0 else "v[40:43]"
            if not swap: e(f"v_mfma_f32_16x16x32_bf16 v[40:43], v[{b}:{b+3}], v[{b+4}:{b+7}], {c}")
            else:        e(f"v_mfma_f32_16x16x32_bf16 v[40:43], v[{b+4}:{b+7}], v[{b}:{b+3}], {c}")
        LR=k.lab("RED");
        e(f"s_lshl_b32 s45, s41, 10\ns_add_u32 s45, s45, {RED}\nv_add_u32 v46, s45, v3")
        k.nop(4)
        e(f"s_cmp_eq_u32 s42, 0\ns_cbranch_scc1 {LR}")
        e("ds_write_b128 v46, v[40:43]\ns_waitcnt lgkmcnt(0)\ns_barrier")
        e(f"s_branch {LE}")
        e(f"{LR}:")
        e("s_barrier\nds_read_b128 v[48:51], v46\ns_waitcnt lgkmcnt(0)")
        for i in range(4): e(f"v_add_f32 v{40+i}, v{40+i}, v{48+i}")
    e(f"s_cmp_eq_u32 s43, 1\ns_cbranch_scc1 {LK} ; @alt")
    gemm(False)
    e("v_bfe_u32 v64, v7, 2, 1\nv_lshrrev_b32 v65, 3, v7\nv_and_b32 v66, 3, v7")
    e("v_lshl_add_u32 v66, v64, 3, v66\nv_lshl_add_u32 v66, v65, 2, v66\ns_and_b32 s44, s32, 1\ns_lshl_b32 s44, s44, 4\nv_add_u32 v66, s44, v66")
    e("v_lshlrev_b32 v67, 6, v66")
    e("v_lshrrev_b32 v68, 1, v6\nv_lshlrev_b32 v68, 1, v68\nv_add_u32 v68, s41, v68\nv_bfe_u32 v65, v66, 2, 2\nv_xor_b32 v68, v68, v65")
    e("v_lshl_add_u32 v67, v68, 4, v67\nv_and_b32 v68, 1, v6\nv_lshl_add_u32 v67, v68, 3, v67")
    e("s_lshr_b32 s44, s32, 1\ns_lshl_b32 s44, s44, 12")
    e("v_cvt_pk_bf16_f32 v40, v40, v41\nv_cvt_pk_bf16_f32 v41, v42, v43")
    e("buffer_store_dwordx2 v[40:41], v67, s[20:23], s44 offen")
    e(f"s_branch {LE}")
    e(f"{LK}:")
    gemm(True)
    e("v_lshrrev_b32 v65, 2, v7\nv_and_b32 v66, 3, v7\nv_lshl_add_u32 v66, v65, 3, v66\ns_lshl_b32 s44, s41, 2\nv_add_u32 v66, s44, v66")
    e("v_lshlrev_b32 v67, 6, v66")
    e("v_lshlrev_b32 v65, 1, v65\nv_add_u32 v65, s41, v65\nv_and_b32 v65, 3, v65")
    e("v_lshrrev_b32 v68, 1, v6\ns_and_b32 s44, s32, 1\ns_lshl_b32 s44, s44, 1\nv_add_u32 v68, s44, v68\nv_xor_b32 v65, v68, v65")
    e("v_lshl_add_u32 v67, v65, 4, v67\nv_and_b32 v68, 1, v6\nv_lshl_add_u32 v67, v68, 3, v67")
    e("s_lshr_b32 s44, s32, 1\ns_lshl_b32 s44, s44, 12\ns_add_u32 s44, s44, 2048")
    e("v_cvt_pk_bf16_f32 v40, v40, v41\nv_cvt_pk_bf16_f32 v41, v42, v43")
    e("buffer_store_dwordx2 v[40:41], v67, s[20:23], s44 offen")
    e(f"{LE}:")
    if os.environ.get('K0ST')=='2': k.stamp_mid(1)
    e("s_waitcnt vmcnt(0)")
    k.stamp_end(0)
    e(f"{END}:")
    e("s_endpgm")
    return k
```

```python
from base import *
from gda import *
import os
VAR=os.environ.get('K1VAR','')

QSCALE = (32**-0.5)*1.4426950408889634

def gen_k1():
    k=Kern("k1_q_attn_kernel", 256, 512, 163840, vgpr=224, sgpr=96)
    e=k.e
    END=k.lab("END")
    R=dict(vA=10,vB=8,vW=14,AF=48,W=112,acc=16)
    S=dict(w=33,sA=40,sB=41,wr=42,rd=43,inc=44,wB=46,t=47)
    SS=48; KF=80; V0=88; V1=92; P=96; Q=144; O=152; Lr=168; SEL=172; AK=176; AV0=178; AV1=179; VO=180; VCR=181; VWD=182
    ONES=184; CSV=188; WDR=196; CSACC=16; CSF=104
    BBASE=98304; QX=BBASE+2*8192; CST=131072; CSS=CST+4*7168; DUM=CSS+1792+256
    e(f"s_cmp_ge_u32 s2, 256\ns_cbranch_scc1 {END}")
    k.stamp_begin()
    k.load_ptr(28,'ws'); k.load_ptr(20,'wg'); k.load_ptr(22,'wu'); k.load_ptr(48,'wo'); k.load_ptr(52,'wd')
    e("v_lshrrev_b32 v1, 6, v0\nv_and_b32 v2, 63, v0")
    e("s_and_b32 s30, s2, 7\ns_lshr_b32 s31, s2, 3")
    if os.environ.get('K1MAP','42')=='81':
        e("s_and_b32 s32, s31, 1\ns_lshl_b32 s30, s30, 1\ns_add_u32 s34, s30, s32")
        e("s_lshr_b32 s35, s31, 1")
    else:
        e("s_lshr_b32 s32, s30, 1\ns_lshl_b32 s32, s32, 2\ns_and_b32 s34, s31, 3\ns_add_u32 s34, s34, s32")
        e("s_and_b32 s32, s30, 1\ns_lshl_b32 s32, s32, 3\ns_lshr_b32 s35, s31, 2\ns_add_u32 s35, s35, s32")
    e("v_readfirstlane_b32 s58, v1")
    e("v_lshlrev_b32 v3, 4, v2")
    e("s_and_b32 s33, s58, 3")
    e("s_lshl_b32 s37, s35, 7")
    e("s_lshl_b32 s38, s33, 13")
    def attn_setup():
        e("v_and_b32 v4, 31, v2\nv_bfe_u32 v5, v2, 2, 2\nv_lshrrev_b32 v6, 5, v2\nv_xor_b32 v5, v5, v6")
        e(f"v_lshlrev_b32 v4, 6, v4\nv_lshl_add_u32 v{AK}, v5, 4, v4\nv_xor_b32 v5, 2, v5\nv_lshl_add_u32 v{AK+1}, v5, 4, v4")
        e(f"v_mov_b32 v{AV0}, v{AK}\nv_mov_b32 v{AV1}, v{AK+1}")
        e("v_bfe_u32 v4, v2, 2, 1\nv_bfe_u32 v5, v2, 4, 1\nv_xor_b32 v4, v4, v5\nv_and_b32 v5, 3, v2\nv_or_b32 v4, v4, v5")
        e("v_mov_b32 v5, 0x3f803f80\nv_cmp_eq_u32 vcc, 0, v4\ns_nop 1")
        e(f"v_cndmask_b32 v{SEL}, 0, v5, vcc")
        for i in range(1,4): e(f"v_mov_b32 v{SEL+i}, v{SEL}")
        e(f"s_lshl_b32 s47, s34, 2\ns_add_u32 s47, s47, s33\ns_lshl_b32 s47, s47, 6\ns_lshr_b32 s30, s58, 2\ns_lshl_b32 s31, s35, 1\ns_add_u32 s30, s30, s31\ns_lshl_b32 s30, s30, 1\ns_add_u32 s47, s47, s30\ns_lshl_b32 s47, s47, 10")
        e(f"v_add_u32 v{VO}, s47, v3")
        for i in range(16): e(f"v_mov_b32 v{O+i}, 0")
        for i in range(4): e(f"v_mov_b32 v{Lr+i}, 0")
        e("s_and_b32 s30, s2, 3\ns_lshl_b32 s30, s30, 8\ns_lshl_b32 s31, s33, 6\ns_add_u32 s30, s30, s31\ns_mul_i32 s30, s30, 7168")
        e("s_bfe_u32 s31, s2, 0x50002\ns_mul_i32 s31, s31, 224\ns_add_u32 s30, s30, s31")
        for i in range(7):
            e(f"v_add_u32 v5, {64*i}, v2\nv_mul_u32_u24 v6, 4682, v5\nv_lshrrev_b32 v6, 16, v6\nv_mul_u32_u24 v7, 14, v6\nv_sub_u32 v7, v5, v7")
            e(f"v_mul_u32_u24 v6, 7168, v6\nv_lshl_add_u32 v6, v7, 4, v6\nv_add_u32 v{CSV+i}, s30, v6")
        e(f"s_mul_i32 s56, s33, 7168\ns_add_u32 s56, s56, {CST}")
        e(f"v_lshrrev_b32 v5, 2, v2\nv_mul_u32_u24 v5, 224, v5\nv_and_b32 v6, 3, v2\nv_lshl_add_u32 v5, v6, 3, v5\nv_add_u32 v{VCR}, s56, v5")
        for i in range(4): e(f"v_mov_b32 v{ONES+i}, 0x3f803f80")
        e("s_lshr_b32 s62, s2, 3\ns_lshl_b32 s62, s62, 16\ns_lshl_b32 s63, s33, 14\ns_add_u32 s62, s62, s63")
        e("s_lshl_b32 s63, s2, 2\ns_add_u32 s63, s63, s33\ns_and_b32 s30, s63, 63\ns_mul_i32 s30, s30, 56\ns_lshr_b32 s31, s63, 6\ns_lshl_b32 s31, s31, 7\ns_mul_i32 s63, s63, 7168")
        e(f"v_lshrrev_b32 v5, 3, v2\nv_add_u32 v5, s30, v5\nv_lshlrev_b32 v5, 11, v5\nv_add_u32 v5, s31, v5")
        e(f"v_bfe_u32 v6, v2, 4, 1\nv_lshlrev_b32 v6, 2, v6\nv_and_b32 v7, 7, v2\nv_xor_b32 v6, v6, v7\nv_lshl_add_u32 v{VWD}, v6, 4, v5")

    g=GDA(k,R,S,4,8,8,16,True,8192,False,base=BBASE)
    LCONS=k.lab("CONS"); LJ=k.lab("JOIN")
    e(f"s_cmp_lt_u32 s58, 4\ns_cbranch_scc1 {LCONS} ; @alt")
    def kv_dma(c):
        for gi in range(2):
            e(f"s_add_u32 s47, s38, {c*32768+gi*4096}")
            e(f"s_add_u32 m0, s38, {(c&3)*32768+gi*4096}\ns_nop 0")
            for i in range(4):
                e(f"buffer_load_dwordx4 v3, s[12:15], s47 offen offset:{i*1024} lds")
    e("s_lshl_b32 s36, s35, 17")
    g.setup_loader(2, 60, 2048, 36)
    e("s_waitcnt lgkmcnt(0)")
    k.srd(8, 2*MB, src=28, add=WS_WQB)
    k.srd(12, 64*4096, src=28, add=WS_KV); k.srd(16, 4*MB, src=28, add=WS_O)
    g.loader(39, hooks={12:(lambda:kv_dma(0),8)}, after_first=attn_setup)
    e("s_waitcnt vmcnt(0)\ns_barrier")
    e(f"s_lshl_b32 s47, s33, 11\ns_add_u32 s47, s47, {QX}\nv_add_u32 v4, s47, v3")
    e(f"ds_read_b128 v[{Q}:{Q+3}], v4\nds_read_b128 v[{Q+4}:{Q+7}], v4 offset:1024")
    kv_dma(1)
    e(f"s_branch {LJ}")
    e(f"{LCONS}:")
    e(f"s_lshl_b32 s36, s34, 2\ns_add_u32 s36, s36, s33\ns_lshl_b32 s36, s36, 16")
    g.setup_consumer(2, 60, 36)
    e("s_waitcnt lgkmcnt(0)")
    k.srd(4, 4*MB, src=28, add=WS_XN)
    g.a_prologue()
    attn_setup()
    k.srd(12, 64*4096, src=28, add=WS_KV); k.srd(16, 4*MB, src=28, add=WS_O)
    e("s_cmp_ge_u32 s2, 128\ns_cselect_b32 s20, s22, s20\ns_cselect_b32 s21, s23, s21")
    k.srd(20, 3584*1024*2); k.srd(48, 2*MB); k.srd(52, 3584*1024*2); k.srd(72, 3584*2048, src=28, add=WS_WDB)
    k.srd(24, 4*7168*4, src=28, add=WS_CS)
    g.consumer(39, stamp=(1 if os.environ.get('K1ST')=='1' else None))
    if os.environ.get('K1ST')=='2': k.stamp_mid(1)
    e(f"v_mov_b32 v60, {hex(f2u(QSCALE))}")
    k.nop(12)
    for i in range(32): e(f"v_mul_f32 v{R['acc']+i}, v{R['acc']+i}, v60")
    for i in range(8): e(f"v_cvt_pk_bf16_f32 v{Q+i}, v{R['acc']+2*i}, v{R['acc']+2*i+1}")
    for i in range(8): e(f"v_cvt_pk_bf16_f32 v{64+i}, v{R['acc']+16+2*i}, v{R['acc']+16+2*i+1}")
    e(f"s_lshl_b32 s47, s33, 11\ns_add_u32 s47, s47, {QX}\nv_add_u32 v4, s47, v3")
    e(f"ds_write_b128 v4, v[64:67]\nds_write_b128 v4, v[68:71] offset:1024")
    e("s_waitcnt lgkmcnt(0)\ns_barrier")
    e(f"{LJ}:")
    k.stamp_mid(0)
    def rdK(tl):
        for m in range(2): e(f"ds_read_b128 v[{KF+4*m}:{KF+4*m+3}], v{AK+m} offset:{tl*4096}")
    def rdV0(tl): e(f"ds_read_b128 v[{V0}:{V0+3}], v{AV0} offset:{tl*4096+2048}")
    def rdV1(tl): e(f"ds_read_b128 v[{V1}:{V1+3}], v{AV1} offset:{tl*4096+2048}")
    rdK(0); rdV0(0)
    for i in range(4): e(f"v_mov_b32 v{P+4+i}, 0\nv_mov_b32 v{V1+i}, 0")
    e("s_waitcnt lgkmcnt(0)")
    def mf(d,a,b,c=None):
        cs = c if c else f"v[{d}:{d+15}]"
        e(f"v_mfma_f32_32x32x16_bf16 v[{d}:{d+15}], v[{a}:{a+3}], v[{b}:{b+3}], {cs}")
    def rs(b): e(f"v_mfma_f32_16x16x32_bf16 v[{Lr}:{Lr+3}], v[{SEL}:{SEL+3}], v[{b}:{b+3}], v[{Lr}:{Lr+3}]")
    mf(SS,KF,Q,"0"); mf(SS,KF+4,Q+4)
    rdK(1)
    e("s_waitcnt lgkmcnt(0)")
    k.nop(10)
    PAT="W3 E0 E1 PV1p RV1 E2 E3 C0 E4 W2 QK0 E5 C1 E6 E7 RS1p C2 E8 QK1 RK C3 E9 E10 E11 W3 PV0 RV0 C4 E12 E13 C5 RS0 E14 E15 C6 C7".split()
    def slot(tl):
        par=tl&1
        Sc=SS+16*par; Sn=SS+16*(1-par)
        if 'tog' in VAR: e(f"s_setprio {par}")
        for t in PAT:
            if t[0]=='E': i=int(t[1:]); e(f"v_exp_f32 v{Sc+i}, v{Sc+i}")
            elif t[0]=='C': i=int(t[1:]); e(f"v_cvt_pk_bf16_f32 v{P+i}, v{Sc+2*i}, v{Sc+2*i+1}")
            elif t[0]=='W':
                if 'nowait' not in VAR: e(f"s_waitcnt lgkmcnt({t[1]})")
            elif t=='QK0': mf(Sn,KF,Q,"0")
            elif t=='QK1': mf(Sn,KF+4,Q+4)
            elif t=='PV0': mf(O,V0,P)
            elif t=='PV1p': mf(O,V1,P+4)
            elif t=='RS0': rs(P)
            elif t=='RS1p': rs(P+4)
            elif 'noread' in VAR: pass
            elif t=='RV1': rdV1(tl)
            elif t=='RK': rdK((tl+2)&7)
            elif t=='RV0': rdV0((tl+1)&7)
    LT0=k.lab("T0"); LT6=k.lab("T6"); LX=k.lab("X"); LG1=k.lab("G1")
    if 'sprio' in VAR:
        LP=k.lab("P"); e(f"s_cmp_lt_u32 s58, 4\ns_cbranch_scc1 {LP}\ns_setprio 1\n{LP}:")
    e("s_mov_b32 s39, 0")
    e(f"s_branch {LT0}")
    e(f"{LT6}:")
    e(f"v_add_u32 v{AK}, s59, v{AK}\nv_add_u32 v{AK+1}, s59, v{AK+1}")
    slot(6)
    e(f"v_add_u32 v{AV0}, s59, v{AV0}")
    slot(7)
    e(f"v_add_u32 v{AV1}, s59, v{AV1}")
    e(f"s_cmp_eq_u32 s39, 8\ns_cbranch_scc1 {LX} ; @exit")
    e(f"{LT0}:")
    slot(0); slot(1)
    LMR=k.lab("MR"); MID=[k.lab(f"MID{c}") for c in range(8)]; LMD=k.lab("MD")
    e(f"s_cmp_lt_u32 s58, 4\ns_cbranch_scc1 {LMD} ; @alt")
    e(f"{LMR}:")
    for tl in range(2,6): slot(tl)
    e("s_and_b32 s47, s39, 3\ns_mov_b32 s59, 0xfffe8000\ns_cmp_eq_u32 s47, 3\ns_cselect_b32 s59, s59, 0x8000")
    e(f"s_cmp_ge_u32 s58, 4\ns_cbranch_scc1 {LG1} ; @g1")
    LNB=k.lab("NB")
    e(f"s_cmp_eq_u32 s39, 7\ns_cbranch_scc1 {LNB}")
    e("s_barrier")
    e(f"{LNB}:")
    e(f"s_add_u32 s39, s39, 1\ns_branch {LT6}")
    e(f"{LG1}:")
    LG1c=k.lab("G1c")
    e(f"s_cmp_eq_u32 s39, 7\ns_cbranch_scc1 {LG1c}")
    e("s_waitcnt vmcnt(0)\ns_barrier")
    e(f"s_cmp_ge_u32 s39, 6\ns_cbranch_scc1 {LG1c}")
    e("s_add_u32 s30, s39, 2\ns_lshl_b32 s31, s30, 15\ns_and_b32 s30, s30, 3\ns_lshl_b32 s30, s30, 15\ns_add_u32 s30, s30, s38\ns_add_u32 s31, s31, s38")
    for gi in range(2):
        e(f"s_add_u32 m0, s30, {gi*4096}\ns_add_u32 s47, s31, {gi*4096}")
        for i in range(4):
            e(f"buffer_load_dwordx4 v3, s[12:15], s47 offen offset:{i*1024} lds")
    e(f"{LG1c}:")
    e(f"s_add_u32 s39, s39, 1\ns_branch {LT6}")
    def cs_dma(r):
        e(f"s_mov_b32 s30, {r*32*7168}")
        for i in range(7):
            e(f"s_add_u32 m0, s56, {i*1024}\ns_nop 0")
            e(f"buffer_load_dwordx4 v{CSV+i}, s[20:23], s30 offen lds")
    def cs_mfma(r):
        for v in range(7):
            for t in range(2):
                e(f"ds_read_b64_tr_b16 v[{CSF+4*v+2*t}:{CSF+4*v+2*t+1}], v{VCR} offset:{v*32+t*3584}")
        e("s_waitcnt lgkmcnt(0)")
        for v in range(7):
            a=CSACC+4*v
            c="0" if r==0 else f"v[{a}:{a+3}]"
            e(f"v_mfma_f32_16x16x32_bf16 v[{a}:{a+3}], v[{CSF+4*v}:{CSF+4*v+3}], v[{ONES}:{ONES+3}], {c}")
    def prefetch(srd, base_s, first, n):
        e(f"s_mov_b32 m0, {DUM}")
        for i in range(n):
            e(f"s_add_u32 s47, s{base_s}, {(first+i)*1024}")
            e(f"buffer_load_dwordx4 v3, s[{srd}:{srd+3}], s47 offen lds")
    side='noside' not in VAR
    SCHED=os.environ.get('K1SCHED','early')
    e(f"{LMD}:")
    hooks=(0,1,3,4,5,6,7) if SCHED=='early' else (1,3,4,5,6,7)
    if side:
        for c in hooks:
            e(f"s_cmp_eq_u32 s39, {c}\ns_cbranch_scc1 {MID[c]}")
    e(f"s_branch {LMR}")
    def wd_loads():
        for i in range(7):
            e(f"s_mov_b32 s30, {i*8*2048}\nbuffer_load_dwordx4 v[{WDR+4*i}:{WDR+4*i+3}], v{VWD}, s[52:55], s30 offen")
    def wd_stores():
        for i in range(7):
            e(f"s_add_u32 s30, s63, {i*1024}\nbuffer_store_dwordx4 v[{WDR+4*i}:{WDR+4*i+3}], v3, s[72:75], s30 offen {os.environ.get('WDST','sc1')}")
    def cs_partials():
        e(f"v_lshrrev_b32 v4, 4, v2\nv_lshlrev_b32 v4, 4, v4\ns_mul_i32 s30, s33, 448\ns_add_u32 s30, s30, {CSS}\nv_add_u32 v4, s30, v4")
        e("v_and_b32 v5, 15, v2\nv_cmp_eq_u32 vcc, 0, v5\ns_and_saveexec_b64 s[66:67], vcc")
        k.nop(2)
        for v in range(7): e(f"ds_write_b128 v4, v[{CSACC+4*v}:{CSACC+4*v+3}] offset:{v*64}")
        e("s_mov_b64 exec, s[66:67]\ns_waitcnt lgkmcnt(0)")
    def cs_final():
        LS=k.lab("CSS")
        e("v_cmp_gt_u32 vcc, 112, v0\ns_and_saveexec_b64 s[66:67], vcc")
        e(f"s_cbranch_execz {LS}")
        e(f"v_lshlrev_b32 v4, 2, v0\nv_add_u32 v4, {CSS}, v4")
        for j in range(4): e(f"ds_read_b32 v{16+j}, v4 offset:{j*448}")
        e("s_and_b32 s30, s2, 3\ns_mul_i32 s30, s30, 28672\ns_lshr_b32 s31, s2, 7\ns_mul_i32 s31, s31, 14336\ns_add_u32 s30, s30, s31")
        e("s_bfe_u32 s31, s2, 0x50002\ns_mul_i32 s31, s31, 448\ns_add_u32 s30, s30, s31")
        e("v_lshlrev_b32 v4, 2, v0\ns_waitcnt lgkmcnt(0)")
        e("v_add_f32 v16, v16, v17\nv_add_f32 v18, v18, v19\nv_add_f32 v16, v16, v18")
        e("buffer_store_dword v16, v4, s[24:27], s30 offen")
        e(f"{LS}:\ns_mov_b64 exec, s[66:67]")
    for c in hooks:
        if not side: break
        e(f"{MID[c]}:")
        if SCHED=='early':
            if c==0: cs_dma(0)
            if c==1: wd_loads()
            if c==3: e("s_waitcnt vmcnt(7)"); cs_mfma(0); cs_dma(1)
            if c==4: e("s_waitcnt vmcnt(7)"); wd_stores()
            if c==5: prefetch(48,62,0,8)
            if c==6: e("s_waitcnt vmcnt(15)"); cs_mfma(1); cs_partials()
            if c==7:
                cs_final(); prefetch(48,62,8,8)
                k.code_prefetch("k2_wo_kernel", 4864, 4, 132, 76)
        else:
            if c==1: cs_dma(0)
            if c==3: e("s_waitcnt vmcnt(0)"); cs_mfma(0); cs_dma(1)
            if c==4: wd_loads()
            if c==5: e("s_waitcnt vmcnt(7)"); cs_mfma(1); cs_partials()
            if c==6:
                e("s_waitcnt vmcnt(0)"); wd_stores(); cs_final(); prefetch(48,62,0,8)
            if c==7:
                prefetch(48,62,8,8)
                k.code_prefetch("k2_wo_kernel", 4864, 4, 132, 76)
        e(f"s_branch {LMR}")
    e(f"{LX}:")
    if os.environ.get('K1ST') not in ('1','2'): k.stamp_mid(1)
    e("s_waitcnt lgkmcnt(0)")
    mf(O,V1,P+4); rs(P+4)
    k.nop(12)
    LFB=k.lab("FB"); LFIN=k.lab("FIN")
    e(f"v_mov_b32 v8, 0")
    for i in range(16): e(f"v_fmac_f32 v8, 0, v{O+i}")
    e(f"v_mov_b32 v9, {hex(f2u(2.0**-60))}\nv_mov_b32 v10, {hex(f2u(2.0**60))}")
    e(f"v_cmp_o_f32 s[64:65], v8, v8")
    e(f"v_cmp_le_f32 s[66:67], v9, v{Lr}")
    e(f"v_cmp_ge_f32 s[70:71], v10, v{Lr}")
    e("s_and_b64 s[64:65], s[64:65], s[66:67]\ns_and_b64 s[64:65], s[64:65], s[70:71]")
    e(f"s_cmp_eq_u64 s[64:65], exec\ns_cbranch_scc0 {LFB}")
    e(f"{LFIN}:")
    e(f"v_rcp_f32 v8, v{Lr}")
    e("s_nop 0")
    for i in range(16): e(f"v_mul_f32 v{O+i}, v{O+i}, v8")
    for i in range(8): e(f"v_cvt_pk_bf16_f32 v{16+i}, v{O+2*i}, v{O+2*i+1}")
    for j in range(2):
        e(f"buffer_store_dwordx4 v[{16+4*j}:{19+4*j}], v{VO}, s[16:19], 0 offen offset:{j*1024} {os.environ.get('K1STF','sc1')}")
    e("s_waitcnt vmcnt(0)")
    k.stamp_end(1)
    e("s_endpgm")
    e(f"{LFB}:")
    e("s_waitcnt vmcnt(0)")
    e("v_and_b32 v8, 31, v2\nv_bfe_u32 v9, v2, 2, 2\nv_lshrrev_b32 v10, 5, v2\nv_xor_b32 v9, v9, v10")
    e(f"v_lshlrev_b32 v8, 6, v8\nv_lshl_add_u32 v{AK}, v9, 4, v8\nv_xor_b32 v9, 2, v9\nv_lshl_add_u32 v{AK+1}, v9, 4, v8")
    e("v_mov_b32 v8, 0xff800000")
    F1=k.lab("F1"); F2=k.lab("F2")
    e(f"s_mov_b32 s47, 0\n{F1}:")
    for m in range(2): e(f"buffer_load_dwordx4 v[{KF+4*m}:{KF+4*m+3}], v{AK+m}, s[12:15], s47 offen")
    e("s_waitcnt vmcnt(0)")
    mf(SS,KF,Q,"0"); mf(SS,KF+4,Q+4)
    k.nop(12)
    for i in range(16): e(f"v_max_f32 v8, v8, v{SS+i}")
    e(f"s_add_u32 s47, s47, 4096\ns_cmp_lt_u32 s47, {64*4096}\ns_cbranch_scc1 {F1}")
    e("v_mov_b32 v10, v8\ns_nop 1\nv_permlane32_swap_b32 v8, v10\ns_nop 1\nv_max_f32 v8, v8, v10")
    for i in range(16): e(f"v_mov_b32 v{O+i}, 0")
    for i in range(4): e(f"v_mov_b32 v{Lr+i}, 0")
    e(f"s_mov_b32 s47, 0\n{F2}:")
    for m in range(2): e(f"buffer_load_dwordx4 v[{KF+4*m}:{KF+4*m+3}], v{AK+m}, s[12:15], s47 offen")
    e(f"buffer_load_dwordx4 v[{V0}:{V0+3}], v{AK}, s[12:15], s47 offen offset:2048")
    e(f"buffer_load_dwordx4 v[{V1}:{V1+3}], v{AK+1}, s[12:15], s47 offen offset:2048")
    e("s_waitcnt vmcnt(0)")
    mf(SS,KF,Q,"0"); mf(SS,KF+4,Q+4)
    k.nop(12)
    for i in range(16): e(f"v_sub_f32 v{SS+i}, v{SS+i}, v8")
    for i in range(16): e(f"v_exp_f32 v{SS+i}, v{SS+i}")
    e("s_nop 0")
    for i in range(8): e(f"v_cvt_pk_bf16_f32 v{P+i}, v{SS+2*i}, v{SS+2*i+1}")
    e("s_nop 1")
    mf(O,V0,P); mf(O,V1,P+4); rs(P); rs(P+4)
    k.nop(12)
    e(f"s_add_u32 s47, s47, 4096\ns_cmp_lt_u32 s47, {64*4096}\ns_cbranch_scc1 {F2}")
    e(f"s_branch {LFIN}")
    e(f"{END}:")
    e("s_endpgm")
    return k
```

```python
from base import *
import os, math
VAR=os.environ.get('K3VAR','')
SLOT=30720; NS=5
ST_OFF=NS*SLOT
CS_OFF=ST_OFF+4096
C0=-2.0*1.4426950408889634*math.sqrt(2.0/math.pi)
C1=C0*0.044715

def gen_k3():
    k=Kern("k3_gateup_kernel", 256, 256, CS_OFF+1024, vgpr=256, agpr=120, sgpr=96)
    e=k.e
    END=k.lab("END")
    ACC=32; TB=0; WB=32
    def acc(v,tf): return ACC+4*(4*v+tf)
    e(f"s_cmp_ge_u32 s2, 256\ns_cbranch_scc1 {END}")
    k.stamp_begin()
    k.load_ptr(28,'ws'); k.load_ptr(8,'wg'); k.load_ptr(10,'wu')
    e("v_lshrrev_b32 v1, 6, v0\nv_and_b32 v2, 63, v0")
    e("s_and_b32 s30, s2, 7\ns_lshr_b32 s31, s2, 3")
    e("s_and_b32 s32, s30, 1\ns_lshl_b32 s32, s32, 2\ns_and_b32 s34, s31, 3\ns_add_u32 s34, s34, s32")
    e("s_lshr_b32 s32, s30, 1\ns_lshl_b32 s32, s32, 3\ns_lshr_b32 s35, s31, 2\ns_add_u32 s35, s35, s32")
    e("v_readfirstlane_b32 s33, v1")
    e("s_lshl_b32 s40, s34, 19")
    e("s_lshl_b32 s56, s33, 12\nv_lshlrev_b32 v10, 4, v2\nv_add_u32 v4, s56, v10")
    e("s_mov_b32 s41, 0\ns_mov_b32 s42, 0\ns_mov_b32 s43, 0")
    e("s_mov_b32 s57, 0x7ff00000")
    e("s_and_b32 s37, s33, 1\ns_lshl_b32 s37, s37, 2\ns_mul_i32 s38, s35, 224")
    for i in range(4):
        e(f"s_add_u32 s39, s37, {i}\ns_min_u32 s39, s39, 6\ns_lshl_b32 s{52+i}, s39, 10\ns_lshl_b32 s39, s39, 6")
        e(f"v_add_u32 v10, s39, v2\nv_mul_u32_u24 v11, 4682, v10\nv_lshrrev_b32 v11, 16, v11\nv_mul_u32_u24 v12, 14, v11\nv_sub_u32 v12, v10, v12")
        e(f"v_mul_u32_u24 v11, 7168, v11\nv_lshl_add_u32 v11, v12, 4, v11\nv_add_u32 v{5+i}, s38, v11")
    e("s_lshr_b32 s39, s33, 1\ns_mul_i32 s39, s39, 7168\ns_add_u32 s39, s39, 16384")
    for i in range(4): e(f"s_add_u32 s{52+i}, s{52+i}, s39")
    e("s_waitcnt lgkmcnt(0)")
    e("s_cmp_ge_u32 s33, 2\ns_cselect_b32 s8, s10, s8\ns_cselect_b32 s9, s11, s9")
    k.srd(8, 1024*7168)
    k.srd(4, 4*MB, src=28, add=WS_H)
    def late_setup():
        k.srd(12, 2048*128, src=28, add=WS_ST); k.srd(16, 4*7168*4, src=28, add=WS_CS)
        k.srd(20, 2048*3584*2, src=28, add=WS_ACT)
        e("s_lshl_b32 s36, s34, 11\nv_lshlrev_b32 v3, 3, v0")
        e("v_min_u32 v11, 223, v0\nv_cmp_le_u32 vcc, 112, v11")
        e("v_mov_b32 v13, 3472\nv_mov_b32 v12, 0\nv_cndmask_b32 v12, v12, v13, vcc\nv_add_u32 v12, v12, v11\ns_mul_i32 s37, s35, 112\nv_add_u32 v12, s37, v12\nv_lshlrev_b32 v28, 2, v12")
        e("v_mov_b32 v9, v4")
        e("v_lshrrev_b32 v10, 2, v2\nv_mul_u32_u24 v10, 224, v10\nv_and_b32 v11, 3, v2\nv_lshl_add_u32 v10, v11, 3, v10\nv_add_u32 v10, 16384, v10")
    def dma_list():
        G=[]
        pre=["s_cmp_lt_u32 s43, 32","s_cselect_b32 s44, s40, s57","s_cselect_b32 s45, s41, s57","s_add_u32 m0, s42, s56"]
        G.append(pre+["s_add_u32 s43, s43, 1","buffer_load_dwordx4 v4, s[4:7], s44 offen lds"])
        for i in range(1,4): G.append([f"buffer_load_dwordx4 v4, s[4:7], s44 offen offset:{1024*i} lds"])
        for i in range(4):
            g=[f"s_add_u32 m0, s42, s{52+i}","s_nop 0",f"buffer_load_dwordx4 v{5+i}, s[8:11], s45 offen lds"]
            if i==3:
                g+=["s_add_u32 s40, s40, 16384",f"s_add_u32 s41, s41, {32*7168}",
                    f"s_add_u32 s42, s42, {SLOT}",f"s_cmp_eq_u32 s42, {NS*SLOT}","s_cselect_b32 s42, 0, s42"]
            G.append(g)
        return G
    for g in dma_list(): e("\n".join(g))
    for g in dma_list(): e("\n".join(g))
    late_setup()
    STA=88
    SF=[]
    a=SF.append
    a("v_add_f32 v24, v24, v25"); a("v_add_f32 v26, v26, v27"); a(f"v_lshlrev_b32 v25, 2, v0"); a("v_add_f32 v24, v24, v26")
    a(f"v_add_u32 v25, {CS_OFF}, v25"); a("ds_write_b32 v25, v24")
    a(f"v_accvgpr_read_b32 v12, a{STA}")
    for j in range(1,16): a(f"v_accvgpr_read_b32 v13, a{STA+2*j}"); a("v_add_f32 v12, v12, v13")
    a(f"v_mul_f32 v12, {hex(f2u(1/1024.))}, v12")
    a(f"v_mov_b32 v16, {hex(f2u(1/64.))}"); a(f"v_mov_b32 v17, {hex(f2u(64.))}"); a("v_mov_b32 v14, 0"); a("v_mov_b32 v18, 0")
    for j in range(16):
        a(f"v_accvgpr_read_b32 v13, a{STA+2*j}"); a(f"v_accvgpr_read_b32 v15, a{STA+2*j+1}")
        a("v_fma_f32 v13, v13, v16, -v12"); a("v_add_f32 v14, v14, v15"); a("v_fmac_f32 v18, v13, v13")
    a("v_fmac_f32 v14, v18, v17")
    a(f"v_mov_b32 v16, {hex(f2u(1/1024.))}"); a(f"v_mov_b32 v17, {hex(f2u(1e-5))}"); a("v_fma_f32 v14, v14, v16, v17")
    a("v_rsq_f32 v15, v14"); a("v_sub_f32 v20, 0, v12")
    a(f"v_mul_f32 v21, {hex(f2u(C0))}, v15")
    a("v_mul_f32 v22, v15, v15"); a("v_mul_f32 v22, v22, v15"); a(f"v_mul_f32 v22, {hex(f2u(C1))}, v22")
    a("v_mov_b32 v23, v14")
    a("v_lshlrev_b32 v13, 4, v0"); a(f"v_add_u32 v13, {ST_OFF}, v13"); a("ds_write_b128 v13, v[20:23]")
    e("s_waitcnt vmcnt(8)\ns_barrier")
    def rdT(buf):
        return [f"ds_read_b128 a[{TB+16*buf+4*tf}:{TB+16*buf+4*tf+3}], v9 offset:{tf*1024}" for tf in range(4)]
    def rdW(v):
        off=(v%7)*32+(v//7)*7168
        return [f"ds_read_b64_tr_b16 a[{WB+4*v+2*t}:{WB+4*v+2*t+1}], v10 offset:{off+t*3584}" for t in range(2)]
    e("\n".join(rdT(0)))
    for v in range(14):
        e("\n".join(rdW(v)))
        if v==5: e("s_waitcnt lgkmcnt(4)")
    for i in range(16):
        e(f"buffer_load_dwordx2 a[{STA+2*i}:{STA+2*i+1}], v3, s[12:15], s36 offen")
        if i<15: e("s_add_u32 s36, s36, 16384")
    for q in range(4):
        e(f"s_mov_b32 s38, {q*28672}\nbuffer_load_dword v{24+q}, v28, s[16:19], s38 offen")
    e(f"s_mov_b32 s46, {SLOT}\ns_mov_b32 s38, {SLOT}")
    if os.environ.get('K3ST')!='3': k.stamp_mid(0)
    e("s_waitcnt lgkmcnt(0)")
    def stage(par, first=False, ndma=1, X=8*(NS-3), extra=None):
        F={i:[] for i in range(56)}
        rd='nord' not in VAR; dm='nodma' not in VAR
        F[0].append("v_add_u32 v9, s38, v9")
        F[1].append("v_add_u32 v10, s38, v10")
        F[2].append(f"s_waitcnt vmcnt({X})")
        F[3].append("s_barrier")
        if rd:
            for v in range(14):
                a,b=rdW(v)
                F[4*v+3].append(a)
                if v<13: F[4*v+4].append(b)
                else: F[55].append(b)
            T=rdT(1-par)
            for q,gp in enumerate((5,6,9,10)): F[gp].append(T[q])
        F[22].append("s_waitcnt lgkmcnt(4)")
        F[54].append("s_waitcnt lgkmcnt(4)")
        def put(gaps_pre,gapsA,gapsB,gaps_post):
            F[gaps_pre[0]]+=["s_cmp_lt_u32 s43, 32","s_cselect_b32 s44, s40, s57"]
            F[gaps_pre[1]]+=["s_cselect_b32 s45, s41, s57","s_add_u32 m0, s42, s56"]
            for q,gp in enumerate(gapsA):
                F[gp].append(f"buffer_load_dwordx4 v4, s[4:7], s44 offen offset:{1024*q} lds" if q else "buffer_load_dwordx4 v4, s[4:7], s44 offen lds")
            for q,(gm,gp) in enumerate(gapsB):
                F[gm].append(f"s_add_u32 m0, s42, s{52+q}")
                F[gp].append(f"buffer_load_dwordx4 v{5+q}, s[8:11], s45 offen lds")
            F[gaps_post[0]]+=["s_add_u32 s43, s43, 1","s_add_u32 s40, s40, 16384"]
            F[gaps_post[1]]+=[f"s_add_u32 s41, s41, {32*7168}",f"s_add_u32 s42, s42, {SLOT}"]
            F[gaps_post[2]]+=[f"s_cmp_eq_u32 s42, {NS*SLOT}","s_cselect_b32 s42, 0, s42"]
        if dm:
            if ndma==1:
                put((13,14),(17,18,21,25),((26,29),(30,33),(34,37),(38,41)),(42,45,46))
            else:
                put((5,6),(9,10,12,13),((13,14),(14,16),(16,17),(17,18)),(20,21,24))
                put((25,26),(28,29,30,32),((32,33),(33,34),(34,36),(36,37)),(40,41,42))
        F[49]+=[f"s_add_u32 s37, s46, {SLOT}",f"s_cmp_eq_u32 s37, {NS*SLOT}"]
        F[50]+=["s_cselect_b32 s37, 0, s37","s_sub_u32 s38, s37, s46"]
        F[53]+=["s_mov_b32 s46, s37"]
        if extra:
            n=len(extra); g0,g1=4,53
            for q,x in enumerate(extra): F[g0+(q*(g1-g0))//n].append(x)
            F[22]=[x if not x.startswith("s_waitcnt lgkmcnt") else "s_waitcnt lgkmcnt(0)" for x in F[22]]
            F[54]=[x if not x.startswith("s_waitcnt lgkmcnt") else "s_waitcnt lgkmcnt(2)" for x in F[54]]
        for i in range(56):
            v,tf=divmod(i,4)
            a=acc(v,tf)
            c="0" if first else f"v[{a}:{a+3}]"
            e(f"v_mfma_f32_16x16x32_bf16 v[{a}:{a+3}], a[{WB+4*v}:{WB+4*v+3}], a[{TB+16*par+4*tf}:{TB+16*par+4*tf+3}], {c}")
            for x in F[i]: e(x)
    stage(0, first=True, ndma=2, X=20)
    stage(1, ndma=2, X=8, extra=SF)
    e("s_mov_b32 s47, 15")
    L=k.lab("MAIN")
    e(f"{L}:")
    stage(0); stage(1)
    e(f"s_sub_u32 s47, s47, 1\ns_cmp_lg_u32 s47, 0\ns_cbranch_scc1 {L}")
    if os.environ.get('K3ST') in (None,'3'): k.stamp_mid(1)
    e("s_waitcnt lgkmcnt(0)")
    k.code_prefetch("k4_down_kernel", 4096, 3, "a[0:3]", 60)
    e(f"v_and_b32 v3, 15, v2\ns_lshl_b32 s37, s33, 10\nv_lshl_add_u32 v3, v3, 4, s37\nv_add_u32 v3, {ST_OFF}, v3")
    e(f"v_lshrrev_b32 v4, 4, v2\nv_lshlrev_b32 v4, 4, v4\nv_add_u32 v4, {CS_OFF}, v4")
    e("v_lshlrev_b32 v1, 4, v2")
    e("s_lshl_b32 s37, s34, 3\ns_lshl_b32 s38, s33, 1\ns_add_u32 s37, s37, s38\ns_mul_i32 s50, s37, 224\ns_mul_i32 s51, s35, 7\ns_add_u32 s50, s50, s51\ns_lshl_b32 s50, s50, 10")
    for tp in range(2):
        e(f"ds_read_b128 v[8:11], v3 offset:{(2*tp)*256}\nds_read_b128 v[12:15], v3 offset:{(2*tp+1)*256}")
        for v in range(7):
            if v==0 and tp==0: e(f"ds_read_b128 v[24:27], v4 offset:0\nds_read_b128 v[28:31], v4 offset:448")
            e(f"s_add_u32 s38, s50, {(tp*224+v)*1024}")
            e("s_waitcnt lgkmcnt(1)" if not (v==0) else "s_waitcnt lgkmcnt(0)")
            nv=(v+1)%7
            last=(v==6 and tp==1)
            G=[acc(v,2*tp+tt) for tt in range(2)]; U=[acc(7+v,2*tp+tt) for tt in range(2)]
            P0=[f"v[{8+4*tt}:{9+4*tt}]" for tt in range(2)]; P1=[f"v[{10+4*tt}:{11+4*tt}]" for tt in range(2)]
            gp=lambda tt,h: f"v[{G[tt]+2*h}:{G[tt]+2*h+1}]"
            up=lambda tt,h: f"v[{U[tt]+2*h}:{U[tt]+2*h+1}]"
            tm=lambda tt,h: f"v[{16+4*tt+2*h}:{17+4*tt+2*h}]"
            TH=[(tt,h) for tt in range(2) for h in range(2)]
            for tt,h in TH: e(f"v_pk_fma_f32 {gp(tt,h)}, v[{24+2*h}:{25+2*h}], {P0[tt]}, {gp(tt,h)} op_sel_hi:[1,0,1]")
            if not last: e(f"ds_read_b128 v[24:27], v4 offset:{nv*64}")
            for tt,h in TH: e(f"v_pk_mul_f32 {tm(tt,h)}, {gp(tt,h)}, {gp(tt,h)}")
            for tt,h in TH: e(f"v_pk_fma_f32 {tm(tt,h)}, {tm(tt,h)}, {P1[tt]}, {P0[tt]} op_sel:[0,0,1] op_sel_hi:[1,0,1]")
            for tt,h in TH: e(f"v_pk_mul_f32 {tm(tt,h)}, {tm(tt,h)}, {gp(tt,h)}")
            for c in range(8): e(f"v_exp_f32 v{16+c}, v{16+c}")
            e("s_waitcnt lgkmcnt(1)" if not last else "s_waitcnt lgkmcnt(0)")
            for tt,h in TH: e(f"v_pk_fma_f32 {up(tt,h)}, v[{28+2*h}:{29+2*h}], {P0[tt]}, {up(tt,h)} op_sel_hi:[1,0,1]")
            if not last: e(f"ds_read_b128 v[28:31], v4 offset:{448+nv*64}")
            for tt,h in TH: e(f"v_pk_fma_f32 {tm(tt,h)}, {tm(tt,h)}, {P1[tt]}, {P1[tt]} op_sel:[0,1,1] op_sel_hi:[1,1,1]")
            for c in range(8): e(f"v_rcp_f32 v{16+c}, v{16+c}")
            for tt,h in TH: e(f"v_pk_mul_f32 {up(tt,h)}, {up(tt,h)}, {gp(tt,h)}")
            for tt,h in TH: e(f"v_pk_mul_f32 {up(tt,h)}, {up(tt,h)}, {tm(tt,h)}")
            D=G[0]
            e(f"v_cvt_pk_bf16_f32 v{D}, v{U[0]}, v{U[0]+1}\nv_cvt_pk_bf16_f32 v{D+1}, v{U[0]+2}, v{U[0]+3}")
            e(f"v_cvt_pk_bf16_f32 v{D+2}, v{U[1]}, v{U[1]+1}\nv_cvt_pk_bf16_f32 v{D+3}, v{U[1]+2}, v{U[1]+3}")
            e("s_nop 1")
            e(f"v_permlane16_swap_b32 v{D}, v{D+2}\nv_permlane16_swap_b32 v{D+1}, v{D+3}")
            e(f"buffer_store_dwordx4 v[{D}:{D+3}], v1, s[20:23], s38 offen {os.environ.get('K3STF','sc1')}")
    if os.environ.get('K3ST')=='3': k.stamp_mid(0)
    e("s_waitcnt vmcnt(0)")
    k.stamp_end(3)
    e(f"{END}:")
    e("s_endpgm")
    return k
```

```python
from base import *
import os

def dpp_reduce(k, regs):
    seq=["row_shr:1 row_mask:0xf bank_mask:0xf","row_shr:2 row_mask:0xf bank_mask:0xf",
         "row_shr:4 row_mask:0xf bank_mask:0xf","row_shr:8 row_mask:0xf bank_mask:0xf",
         "row_bcast:15 row_mask:0xa bank_mask:0xf","row_bcast:31 row_mask:0xc bank_mask:0xf"]
    for s in seq:
        k.nop(max(0,2-(len(regs)-1)))
        for r in regs:
            k.e(f"v_add_f32_dpp v{r}, v{r}, v{r} {s}")

def gen_k0():
    XL=65536; XLS=2080; RED=XL+16*XLS; DUMMY=RED+2048
    k=Kern("k0_ln_kv_kernel", 256, 256, DUMMY+4096, vgpr=140, sgpr=64)
    e=k.e
    END=k.lab("END")
    e(f"s_cmp_ge_u32 s2, 256\ns_cbranch_scc1 {END}")
    k.stamp_begin()
    k.load_ptr(4,'x'); k.load_ptr(8,'wk'); k.load_ptr(12,'wv'); k.load_ptr(24,'wq'); k.load_ptr(28,'ws')
    k.code_prefetch_all("k0_ln_kv_kernel", 124, 124, 60)
    e("v_lshrrev_b32 v1, 6, v0\nv_and_b32 v2, 63, v0")
    e("s_and_b32 s40, s2, 7\ns_lshr_b32 s41, s2, 3\ns_lshl_b32 s40, s40, 4\ns_lshr_b32 s42, s41, 1\ns_add_u32 s32, s40, s42\ns_and_b32 s43, s41, 1")
    e("v_readfirstlane_b32 s33, v1")
    e("v_lshlrev_b32 v3, 4, v2")
    e("s_lshl_b32 s40, s32, 4\ns_lshl_b32 s41, s33, 2\ns_add_u32 s40, s40, s41\ns_lshl_b32 s34, s40, 11")
    e("s_add_u32 s44, s34, 4096")
    e("s_waitcnt lgkmcnt(0)")
    k.srd(4, 2048*2048)
    for r in range(4):
        so = "s34" if r<2 else "s44"
        for j in range(2):
            e(f"buffer_load_dwordx4 v[{8+8*r+4*j}:{11+8*r+4*j}], v3, s[4:7], {so} offen offset:{(r&1)*2048+1024*j}")
    e("v_lshrrev_b32 v4, 2, v2\nv_lshlrev_b32 v4, 6, v4\nv_lshrrev_b32 v5, 5, v2\nv_lshlrev_b32 v5, 1, v5\nv_and_b32 v6, 3, v2\nv_xor_b32 v5, v5, v6\nv_lshl_add_u32 v4, v5, 4, v4")
    e("s_cmp_eq_u32 s43, 1\ns_cselect_b32 s8, s12, s8\ns_cselect_b32 s9, s13, s9")
    k.srd(8, 65536); k.srd(24, 2*MB)
    k.srd(16, 4*MB, src=28, add=WS_XN) ; k.srd(20, 64*4096, src=28, add=WS_KV); k.srd(56, 2*MB, src=28, add=WS_WQB)
    e("s_lshl_b32 s35, s33, 14")
    for g in range(4):
        e(f"s_add_u32 s36, s35, {g*4096}")
        e(f"s_mov_b32 m0, s36\ns_nop 0")
        for i in range(4):
            e(f"buffer_load_dwordx4 v4, s[8:11], s36 offen offset:{1024*i} lds")
    e("s_lshl_b32 s40, s2, 2\ns_add_u32 s40, s40, s33\ns_and_b32 s41, s40, 63\ns_lshl_b32 s41, s41, 4\ns_lshr_b32 s42, s40, 6\ns_lshl_b32 s42, s42, 7\ns_lshl_b32 s52, s40, 11")
    e("v_lshrrev_b32 v112, 3, v2\nv_add_u32 v112, s41, v112\nv_lshlrev_b32 v112, 11, v112\nv_add_u32 v112, s42, v112")
    e("v_bfe_u32 v113, v2, 4, 1\nv_lshlrev_b32 v113, 2, v113\nv_and_b32 v114, 7, v2\nv_xor_b32 v113, v113, v114\nv_lshl_add_u32 v112, v113, 4, v112")
    e("s_mov_b32 s53, 16384")
    e("buffer_load_dwordx4 v[116:119], v112, s[24:27], 0 offen\nbuffer_load_dwordx4 v[120:123], v112, s[24:27], s53 offen")
    e("s_waitcnt vmcnt(18)")
    if os.environ.get('K0ST')=='1': k.stamp_mid(0)
    X=48
    for row in range(4):
        for j in range(8):
            e(f"v_lshlrev_b32 v{X+16*row+2*j}, 16, v{8+8*row+j}")
            e(f"v_and_b32 v{X+1+16*row+2*j}, 0xffff0000, v{8+8*row+j}")
    PA=132
    pr=lambda r: f"v[{r}:{r+1}]"
    def bsel(row):
        return (pr(44+(row&2)), "op_sel_hi:[1,0]" if row%2==0 else "op_sel:[0,1] op_sel_hi:[1,1]")
    for row in range(4):
        b=X+16*row; a=PA+2*row
        e(f"v_pk_add_f32 {pr(a)}, {pr(b)}, {pr(b+2)}")
    for i in range(2,8):
        for row in range(4):
            b=X+16*row; a=PA+2*row
            e(f"v_pk_add_f32 {pr(a)}, {pr(a)}, {pr(b+2*i)}")
    for row in range(4): e(f"v_add_f32 v{40+row}, v{PA+2*row}, v{PA+2*row+1}")
    dpp_reduce(k,[40,41,42,43])
    e(f"v_mov_b32 v112, {hex(f2u(1/1024.))}\nv_mov_b32 v113, {hex(f2u(1e-5))}")
    for row in range(4): e(f"v_readlane_b32 s{48+row}, v{40+row}, 63")
    e("s_nop 0")
    for row in range(4): e(f"v_mul_f32 v{44+row}, s{48+row}, v112")
    for row in range(4):
        b=X+16*row; src,sel=bsel(row)
        for i in range(8): e(f"v_pk_add_f32 {pr(b+2*i)}, {pr(b+2*i)}, {src} {sel} neg_lo:[0,1] neg_hi:[0,1]")
    for row in range(4):
        b=X+16*row; a=PA+2*row
        e(f"v_pk_mul_f32 {pr(a)}, {pr(b)}, {pr(b)}")
    for i in range(1,8):
        for row in range(4):
            b=X+16*row; a=PA+2*row
            e(f"v_pk_fma_f32 {pr(a)}, {pr(b+2*i)}, {pr(b+2*i)}, {pr(a)}")
    for row in range(4): e(f"v_add_f32 v{40+row}, v{PA+2*row}, v{PA+2*row+1}")
    dpp_reduce(k,[40,41,42,43])
    e("s_nop 0")
    for row in range(4): e(f"v_readlane_b32 s{48+row}, v{40+row}, 63")
    e("s_nop 0")
    for row in range(4): e(f"v_fma_f32 v{44+row}, s{48+row}, v112, v113")
    for row in range(4): e(f"v_rsq_f32 v{44+row}, v{44+row}")
    e("s_nop 0")
    for row in range(4):
        b=X+16*row; src,sel=bsel(row)
        for i in range(8): e(f"v_pk_mul_f32 {pr(b+2*i)}, {pr(b+2*i)}, {src} {sel}")
    for row in range(4):
        b=X+16*row
        for j in range(8): e(f"v_cvt_pk_bf16_f32 v{8+8*row+j}, v{b+2*j}, v{b+2*j+1}")
    e(f"s_lshl_b32 s40, s33, 2\ns_mul_i32 s40, s40, {XLS}\ns_add_u32 s40, s40, {XL}")
    e("v_add_u32 v5, s40, v3")
    for r in range(4):
        e(f"ds_write_b128 v5, v[{8+8*r}:{11+8*r}] offset:{r*XLS}")
        e(f"ds_write_b128 v5, v[{12+8*r}:{15+8*r}] offset:{r*XLS+1024}")
    e("s_and_b32 s41, s33, 1\ns_lshr_b32 s42, s33, 1")
    e("v_lshrrev_b32 v6, 4, v2\nv_and_b32 v7, 15, v2\nv_lshrrev_b32 v44, 2, v7\nv_and_b32 v45, 3, v2")
    e("v_lshl_add_u32 v44, v6, 3, v44\nv_lshlrev_b32 v44, 6, v44")
    e("v_lshrrev_b32 v46, 1, v45\ns_lshl_b32 s45, s41, 1\nv_add_u32 v46, s45, v46")
    e("v_and_b32 v47, 1, v6\nv_lshlrev_b32 v47, 1, v47\nv_xor_b32 v46, v46, v47")
    e("v_lshl_add_u32 v44, v46, 4, v44")
    e("v_and_b32 v47, 1, v45\nv_lshl_add_u32 v44, v47, 3, v44")
    e("s_lshl_b32 s45, s42, 15\nv_add_u32 v44, s45, v44")
    e(f"v_mul_u32_u24 v46, {XLS}, v7\nv_lshl_add_u32 v46, v6, 4, v46\ns_lshl_b32 s45, s42, 10\ns_add_u32 s45, s45, {XL}\nv_add_u32 v45, s45, v46")
    if os.environ.get('K0ST')=='1': k.stamp_mid(1)
    e("s_waitcnt vmcnt(0) lgkmcnt(0)")
    e("buffer_store_dwordx4 v[116:119], v3, s[56:59], s52 offen sc1\nbuffer_store_dwordx4 v[120:123], v3, s[56:59], s52 offen offset:1024 sc1")
    e("s_barrier")
    if os.environ.get('K0ST')=='2':
        k.stamp_mid(0); e("s_waitcnt lgkmcnt(0)")
    e(f"s_lshl_b32 s45, s43, 4\ns_lshl_b32 s46, s33, 2\ns_add_u32 s45, s45, s46")
    e(f"v_mul_u32_u24 v46, {XLS}, v7\nv_lshl_add_u32 v46, v6, 4, v46\ns_lshl_b32 s46, s45, 6\ns_add_u32 s46, s46, {XL}\nv_add_u32 v46, s46, v46")
    for i in range(4): e(f"ds_read_b128 v[{96+4*i}:{99+4*i}], v46 offset:{64*i}")
    e("v_lshrrev_b32 v47, 1, v6\nv_lshlrev_b32 v47, 10, v47\nv_and_b32 v112, 1, v6\nv_lshl_add_u32 v47, v112, 9, v47\nv_lshl_add_u32 v47, v7, 4, v47")
    e("s_lshr_b32 s46, s32, 1\ns_lshl_b32 s46, s46, 16\ns_and_b32 s47, s32, 1\ns_lshl_b32 s47, s47, 8\ns_add_u32 s46, s46, s47\ns_lshl_b32 s47, s45, 11\ns_add_u32 s46, s46, s47")
    e("s_waitcnt lgkmcnt(0)")
    for i in range(4):
        e(f"s_add_u32 s47, s46, {i*2048}\nbuffer_store_dwordx4 v[{96+4*i}:{99+4*i}], v47, s[16:19], s47 offen {os.environ.get('K0STF','sc1')}")
    LK=k.lab("V"); LE=k.lab("EPI")
    def gemm(swap):
        D=4
        def rd(s):
            b=48+8*(s%D)
            e(f"ds_read_b64_tr_b16 v[{b}:{b+1}], v44 offset:{s*2048}")
            e(f"ds_read_b64_tr_b16 v[{b+2}:{b+3}], v44 offset:{s*2048+256}")
            e(f"ds_read_b128 v[{b+4}:{b+7}], v45 offset:{s*64}")
        for s in range(D-1): rd(s)
        for s in range(16):
            if s+D-1<16: rd(s+D-1)
            left=min(D-1,15-s)
            e(f"s_waitcnt lgkmcnt({3*left})")
            b=48+8*(s%D)
            c = "0" if s==0 else "v[40:43]"
            if not swap: e(f"v_mfma_f32_16x16x32_bf16 v[40:43], v[{b}:{b+3}], v[{b+4}:{b+7}], {c}")
            else:        e(f"v_mfma_f32_16x16x32_bf16 v[40:43], v[{b+4}:{b+7}], v[{b}:{b+3}], {c}")
        LR=k.lab("RED");
        e(f"s_lshl_b32 s45, s41, 10\ns_add_u32 s45, s45, {RED}\nv_add_u32 v46, s45, v3")
        k.nop(4)
        e(f"s_cmp_eq_u32 s42, 0\ns_cbranch_scc1 {LR}")
        e("ds_write_b128 v46, v[40:43]\ns_waitcnt lgkmcnt(0)\ns_barrier")
        e(f"s_branch {LE}")
        e(f"{LR}:")
        e("s_barrier\nds_read_b128 v[48:51], v46\ns_waitcnt lgkmcnt(0)")
        for i in range(4): e(f"v_add_f32 v{40+i}, v{40+i}, v{48+i}")
    e(f"s_cmp_eq_u32 s43, 1\ns_cbranch_scc1 {LK} ; @alt")
    gemm(False)
    e("v_bfe_u32 v64, v7, 2, 1\nv_lshrrev_b32 v65, 3, v7\nv_and_b32 v66, 3, v7")
    e("v_lshl_add_u32 v66, v64, 3, v66\nv_lshl_add_u32 v66, v65, 2, v66\ns_and_b32 s44, s32, 1\ns_lshl_b32 s44, s44, 4\nv_add_u32 v66, s44, v66")
    e("v_lshlrev_b32 v67, 6, v66")
    e("v_lshrrev_b32 v68, 1, v6\nv_lshlrev_b32 v68, 1, v68\nv_add_u32 v68, s41, v68\nv_bfe_u32 v65, v66, 2, 2\nv_xor_b32 v68, v68, v65")
    e("v_lshl_add_u32 v67, v68, 4, v67\nv_and_b32 v68, 1, v6\nv_lshl_add_u32 v67, v68, 3, v67")
    e("s_lshr_b32 s44, s32, 1\ns_lshl_b32 s44, s44, 12")
    e("v_cvt_pk_bf16_f32 v40, v40, v41\nv_cvt_pk_bf16_f32 v41, v42, v43")
    e("buffer_store_dwordx2 v[40:41], v67, s[20:23], s44 offen")
    e(f"s_branch {LE}")
    e(f"{LK}:")
    gemm(True)
    e("v_lshrrev_b32 v65, 2, v7\nv_and_b32 v66, 3, v7\nv_lshl_add_u32 v66, v65, 3, v66\ns_lshl_b32 s44, s41, 2\nv_add_u32 v66, s44, v66")
    e("v_lshlrev_b32 v67, 6, v66")
    e("v_lshlrev_b32 v65, 1, v65\nv_add_u32 v65, s41, v65\nv_and_b32 v65, 3, v65")
    e("v_lshrrev_b32 v68, 1, v6\ns_and_b32 s44, s32, 1\ns_lshl_b32 s44, s44, 1\nv_add_u32 v68, s44, v68\nv_xor_b32 v65, v68, v65")
    e("v_lshl_add_u32 v67, v65, 4, v67\nv_and_b32 v68, 1, v6\nv_lshl_add_u32 v67, v68, 3, v67")
    e("s_lshr_b32 s44, s32, 1\ns_lshl_b32 s44, s44, 12\ns_add_u32 s44, s44, 2048")
    e("v_cvt_pk_bf16_f32 v40, v40, v41\nv_cvt_pk_bf16_f32 v41, v42, v43")
    e("buffer_store_dwordx2 v[40:41], v67, s[20:23], s44 offen")
    e(f"{LE}:")
    if os.environ.get('K0ST')=='2': k.stamp_mid(1)
    e("s_waitcnt vmcnt(0)")
    k.stamp_end(0)
    e(f"{END}:")
    e("s_endpgm")
    return k
```

```python
from base import *
from gda import *
import os
VAR=os.environ.get('K1VAR','')

QSCALE = (32**-0.5)*1.4426950408889634

def gen_k1():
    k=Kern("k1_q_attn_kernel", 256, 512, 163840, vgpr=224, sgpr=96)
    e=k.e
    END=k.lab("END")
    R=dict(vA=10,vB=8,vW=14,AF=48,W=112,acc=16)
    S=dict(w=33,sA=40,sB=41,wr=42,rd=43,inc=44,wB=46,t=47)
    SS=48; KF=80; V0=88; V1=92; P=96; Q=144; O=152; Lr=168; SEL=172; AK=176; AV0=178; AV1=179; VO=180; VCR=181; VWD=182
    ONES=184; CSV=188; WDR=196; CSACC=16; CSF=104
    BBASE=98304; QX=65536; CST=98304; CSS=CST+8*7168; DUM=CSS+1792+256
    e(f"s_cmp_ge_u32 s2, 256\ns_cbranch_scc1 {END}")
    k.stamp_begin()
    k.load_ptr(28,'ws'); k.load_ptr(20,'wg'); k.load_ptr(22,'wu'); k.load_ptr(48,'wo'); k.load_ptr(52,'wd')
    e("v_lshrrev_b32 v1, 6, v0\nv_and_b32 v2, 63, v0")
    e("s_and_b32 s30, s2, 7\ns_lshr_b32 s31, s2, 3")
    if os.environ.get('K1MAP','42')=='81':
        e("s_and_b32 s32, s31, 1\ns_lshl_b32 s30, s30, 1\ns_add_u32 s34, s30, s32")
        e("s_lshr_b32 s35, s31, 1")
    else:
        e("s_lshr_b32 s32, s30, 1\ns_lshl_b32 s32, s32, 2\ns_and_b32 s34, s31, 3\ns_add_u32 s34, s34, s32")
        e("s_and_b32 s32, s30, 1\ns_lshl_b32 s32, s32, 3\ns_lshr_b32 s35, s31, 2\ns_add_u32 s35, s35, s32")
    e("v_readfirstlane_b32 s58, v1")
    e("v_lshlrev_b32 v3, 4, v2")
    e("s_and_b32 s33, s58, 3")
    e("s_lshl_b32 s37, s35, 7")
    e("s_lshl_b32 s38, s33, 13")
    MID=[k.lab(f"MID{c}") for c in range(8)]; LMD=k.lab("MD"); LG1=k.lab("G1"); LX=k.lab("X")
    WARM=[k.lab(f"W{c}") for c in range(10)]
    warm_n=[0]
    def icache_warm():
        if not os.environ.get('WARM'): return
        n=warm_n[0]; warm_n[0]+=1
        for rnd in range(2):
            B=f"WB{n}_{rnd}_{k.name}"
            e(f"s_add_u32 s30, s58, {8*rnd}\ns_mov_b32 s31, {2*n+rnd}")
            for c in range(8*rnd, min(8*rnd+8,10)):
                e(f"s_cmp_eq_u32 s30, {c}\ns_cbranch_scc1 {WARM[c]}")
            e(f"{B}:")
    def pad(c):
        if not os.environ.get('WARM'): return
        e(f"{WARM[c]}:")
        for q in range(3):
            e(f"s_cmp_eq_u32 s31, {q}\ns_cbranch_scc1 WB{q//2}_{q%2}_{k.name}")
        e(f"s_branch WB1_1_{k.name}")
    def attn_setup():
        e("v_and_b32 v4, 31, v2\nv_bfe_u32 v5, v2, 2, 2\nv_lshrrev_b32 v6, 5, v2\nv_xor_b32 v5, v5, v6")
        e(f"v_lshlrev_b32 v4, 6, v4\nv_lshl_add_u32 v{AK}, v5, 4, v4\nv_xor_b32 v5, 2, v5\nv_lshl_add_u32 v{AK+1}, v5, 4, v4")
        e(f"v_mov_b32 v{AV0}, v{AK}\nv_mov_b32 v{AV1}, v{AK+1}")
        e("v_bfe_u32 v4, v2, 2, 1\nv_bfe_u32 v5, v2, 4, 1\nv_xor_b32 v4, v4, v5\nv_and_b32 v5, 3, v2\nv_or_b32 v4, v4, v5")
        e("v_mov_b32 v5, 0x3f803f80\nv_cmp_eq_u32 vcc, 0, v4\ns_nop 1")
        e(f"v_cndmask_b32 v{SEL}, 0, v5, vcc")
        for i in range(1,4): e(f"v_mov_b32 v{SEL+i}, v{SEL}")
        e(f"s_lshl_b32 s47, s34, 2\ns_add_u32 s47, s47, s33\ns_lshl_b32 s47, s47, 6\ns_lshr_b32 s30, s58, 2\ns_lshl_b32 s31, s35, 1\ns_add_u32 s30, s30, s31\ns_lshl_b32 s30, s30, 1\ns_add_u32 s47, s47, s30\ns_lshl_b32 s47, s47, 10")
        e(f"v_add_u32 v{VO}, s47, v3")
        for i in range(16): e(f"v_mov_b32 v{O+i}, 0")
        for i in range(4): e(f"v_mov_b32 v{Lr+i}, 0")
        e("s_and_b32 s30, s2, 3\ns_lshl_b32 s30, s30, 8\ns_lshl_b32 s31, s33, 6\ns_add_u32 s30, s30, s31\ns_mul_i32 s30, s30, 7168")
        e("s_bfe_u32 s31, s2, 0x50002\ns_mul_i32 s31, s31, 224\ns_add_u32 s30, s30, s31")
        for i in range(7):
            e(f"v_add_u32 v5, {64*i}, v2\nv_mul_u32_u24 v6, 4682, v5\nv_lshrrev_b32 v6, 16, v6\nv_mul_u32_u24 v7, 14, v6\nv_sub_u32 v7, v5, v7")
            e(f"v_mul_u32_u24 v6, 7168, v6\nv_lshl_add_u32 v6, v7, 4, v6\nv_add_u32 v{CSV+i}, s30, v6")
        e(f"s_mul_i32 s56, s33, 7168\ns_add_u32 s56, s56, {CST}")
        e(f"v_lshrrev_b32 v5, 2, v2\nv_mul_u32_u24 v5, 224, v5\nv_and_b32 v6, 3, v2\nv_lshl_add_u32 v5, v6, 3, v5\nv_add_u32 v{VCR}, s56, v5")
        for i in range(4): e(f"v_mov_b32 v{ONES+i}, 0x3f803f80")
        e("s_lshr_b32 s62, s2, 3\ns_lshl_b32 s62, s62, 16\ns_lshl_b32 s63, s33, 14\ns_add_u32 s62, s62, s63")
        e("s_lshl_b32 s63, s2, 2\ns_add_u32 s63, s63, s33\ns_and_b32 s30, s63, 63\ns_mul_i32 s30, s30, 56\ns_lshr_b32 s31, s63, 6\ns_lshl_b32 s31, s31, 7\ns_mul_i32 s63, s63, 7168")
        e(f"v_lshrrev_b32 v5, 3, v2\nv_add_u32 v5, s30, v5\nv_lshlrev_b32 v5, 11, v5\nv_add_u32 v5, s31, v5")
        e(f"v_bfe_u32 v6, v2, 4, 1\nv_lshlrev_b32 v6, 2, v6\nv_and_b32 v7, 7, v2\nv_xor_b32 v6, v6, v7\nv_lshl_add_u32 v{VWD}, v6, 4, v5")

    g=GDA(k,R,S,4,8,8,16,True,8192,False,base=BBASE)
    LCONS=k.lab("CONS"); LJ=k.lab("JOIN")
    e(f"s_cmp_lt_u32 s58, 4\ns_cbranch_scc1 {LCONS} ; @alt")
    def kv_dma(c):
        for gi in range(2):
            e(f"s_add_u32 s47, s38, {c*32768+gi*4096}")
            e(f"s_add_u32 m0, s38, {(c%3)*32768+gi*4096}\ns_nop 0")
            for i in range(4):
                e(f"buffer_load_dwordx4 v3, s[12:15], s47 offen offset:{i*1024} lds")
    e("s_lshl_b32 s36, s35, 17")
    g.setup_loader(2, 60, 2048, 36)
    e("s_waitcnt lgkmcnt(0)")
    k.srd(8, 2*MB, src=28, add=WS_WQB)
    k.srd(12, 64*4096, src=28, add=WS_KV); k.srd(16, 4*MB, src=28, add=WS_O)
    g.loader(39, hooks={12:(lambda:kv_dma(0),8)}, after_first=lambda:(attn_setup(),icache_warm()))
    e("s_waitcnt vmcnt(0)\ns_barrier")
    e(f"s_lshl_b32 s47, s33, 11\ns_add_u32 s47, s47, {QX}\nv_add_u32 v4, s47, v3")
    e(f"ds_read_b128 v[{Q}:{Q+3}], v4\nds_read_b128 v[{Q+4}:{Q+7}], v4 offset:1024")
    kv_dma(1)
    e(f"s_branch {LJ}")
    e(f"{LCONS}:")
    e(f"s_lshl_b32 s36, s34, 2\ns_add_u32 s36, s36, s33\ns_lshl_b32 s36, s36, 16")
    g.setup_consumer(2, 60, 36)
    e("s_waitcnt lgkmcnt(0)")
    k.srd(4, 4*MB, src=28, add=WS_XN)
    g.a_prologue()
    attn_setup()
    icache_warm()
    k.srd(12, 64*4096, src=28, add=WS_KV); k.srd(16, 4*MB, src=28, add=WS_O)
    e("s_cmp_ge_u32 s2, 128\ns_cselect_b32 s20, s22, s20\ns_cselect_b32 s21, s23, s21")
    k.srd(20, 3584*1024*2); k.srd(48, 2*MB); k.srd(52, 3584*1024*2); k.srd(72, 3584*2048, src=28, add=WS_WDB)
    k.srd(24, 4*7168*4, src=28, add=WS_CS)
    g.consumer(39, stamp=(1 if os.environ.get('K1ST')=='1' else None))
    if os.environ.get('K1ST')=='2': k.stamp_mid(1)
    e(f"v_mov_b32 v60, {hex(f2u(QSCALE))}")
    k.nop(12)
    for i in range(32): e(f"v_mul_f32 v{R['acc']+i}, v{R['acc']+i}, v60")
    for i in range(8): e(f"v_cvt_pk_bf16_f32 v{Q+i}, v{R['acc']+2*i}, v{R['acc']+2*i+1}")
    for i in range(8): e(f"v_cvt_pk_bf16_f32 v{64+i}, v{R['acc']+16+2*i}, v{R['acc']+16+2*i+1}")
    e(f"s_lshl_b32 s47, s33, 11\ns_add_u32 s47, s47, {QX}\nv_add_u32 v4, s47, v3")
    e(f"ds_write_b128 v4, v[64:67]\nds_write_b128 v4, v[68:71] offset:1024")
    e("s_waitcnt lgkmcnt(0)\ns_barrier")
    e(f"{LJ}:")
    if not os.environ.get('K1W'): k.stamp_mid(0)
    def rdK(tl):
        for m in range(2): e(f"ds_read_b128 v[{KF+4*m}:{KF+4*m+3}], v{AK+m} offset:{tl*4096}")
    def rdV0(tl): e(f"ds_read_b128 v[{V0}:{V0+3}], v{AV0} offset:{tl*4096+2048}")
    def rdV1(tl): e(f"ds_read_b128 v[{V1}:{V1+3}], v{AV1} offset:{tl*4096+2048}")
    rdK(0); rdV0(0)
    for i in range(4): e(f"v_mov_b32 v{P+4+i}, 0\nv_mov_b32 v{V1+i}, 0")
    e("s_waitcnt lgkmcnt(0)")
    def mf(d,a,b,c=None):
        cs = c if c else f"v[{d}:{d+15}]"
        e(f"v_mfma_f32_32x32x16_bf16 v[{d}:{d+15}], v[{a}:{a+3}], v[{b}:{b+3}], {cs}")
    def rs(b): e(f"v_mfma_f32_16x16x32_bf16 v[{Lr}:{Lr+3}], v[{SEL}:{SEL+3}], v[{b}:{b+3}], v[{Lr}:{Lr+3}]")
    mf(SS,KF,Q,"0"); mf(SS,KF+4,Q+4)
    rdK(1)
    e("s_waitcnt lgkmcnt(0)")
    k.nop(10)
    PAT="W3 E0 E1 PV1p RV1 E2 E3 C0 E4 W2 QK0 E5 C1 E6 E7 RS1p C2 E8 QK1 RK C3 E9 E10 E11 W3 PV0 RV0 C4 E12 E13 C5 RS0 E14 E15 C6 C7".split()
    def slot(tl):
        par=tl&1
        Sc=SS+16*par; Sn=SS+16*(1-par)
        if 'tog' in VAR: e(f"s_setprio {par}")
        for t in PAT:
            if t[0]=='E': i=int(t[1:]); e(f"v_exp_f32 v{Sc+i}, v{Sc+i}")
            elif t[0]=='C': i=int(t[1:]); e(f"v_cvt_pk_bf16_f32 v{P+i}, v{Sc+2*i}, v{Sc+2*i+1}")
            elif t[0]=='W':
                if 'nowait' not in VAR: e(f"s_waitcnt lgkmcnt({t[1]})")
            elif t=='QK0': mf(Sn,KF,Q,"0")
            elif t=='QK1': mf(Sn,KF+4,Q+4)
            elif t=='PV0': mf(O,V0,P)
            elif t=='PV1p': mf(O,V1,P+4)
            elif t=='RS0': rs(P)
            elif t=='RS1p': rs(P+4)
            elif 'noread' in VAR: pass
            elif t=='RV1': rdV1(tl)
            elif t=='RK': rdK((tl+2)&7)
            elif t=='RV0': rdV0((tl+1)&7)
    LT0=k.lab("T0"); LT6=k.lab("T6")
    if 'sprio' in VAR:
        LP=k.lab("P"); e(f"s_cmp_lt_u32 s58, 4\ns_cbranch_scc1 {LP}\ns_setprio 1\n{LP}:")
    e("s_mov_b32 s39, 0\ns_mov_b32 s60, 0")
    e(f"s_branch {LT0}")
    e(f"{LT6}:")
    e(f"v_add_u32 v{AK}, s59, v{AK}\nv_add_u32 v{AK+1}, s59, v{AK+1}")
    slot(6)
    e(f"v_add_u32 v{AV0}, s59, v{AV0}")
    slot(7)
    e(f"v_add_u32 v{AV1}, s59, v{AV1}")
    e(f"s_cmp_eq_u32 s39, 8\ns_cbranch_scc1 {LX} ; @exit")
    e(f"{LT0}:")
    slot(0); slot(1)
    LMR=k.lab("MR")
    e(f"s_cmp_lt_u32 s58, 4\ns_cbranch_scc1 {LMD} ; @alt")
    e(f"{LMR}:")
    for tl in range(2,6): slot(tl)
    e("s_mov_b32 s59, 0xffff0000\ns_cmp_eq_u32 s60, 2\ns_cselect_b32 s59, s59, 0x8000\ns_add_u32 s61, s60, 2\ns_add_u32 s60, s60, 1\ns_cmp_eq_u32 s60, 3\ns_cselect_b32 s60, 0, s60")
    e(f"s_cmp_ge_u32 s58, 4\ns_cbranch_scc1 {LG1} ; @g1")
    LNB=k.lab("NB")
    e(f"s_cmp_eq_u32 s39, 7\ns_cbranch_scc1 {LNB}")
    e("s_barrier")
    e(f"{LNB}:")
    e(f"s_add_u32 s39, s39, 1\ns_branch {LT6}")
    pad(8)
    e(f"{LG1}:")
    LG1c=k.lab("G1c")
    e(f"s_cmp_eq_u32 s39, 7\ns_cbranch_scc1 {LG1c}")
    e("s_waitcnt vmcnt(0)\ns_barrier")
    e(f"s_cmp_ge_u32 s39, 6\ns_cbranch_scc1 {LG1c}")
    e("s_add_u32 s30, s39, 2\ns_lshl_b32 s31, s30, 15\ns_sub_u32 s30, s61, 3\ns_cmp_ge_u32 s61, 3\ns_cselect_b32 s30, s30, s61\ns_lshl_b32 s30, s30, 15\ns_add_u32 s30, s30, s38\ns_add_u32 s31, s31, s38")
    for gi in range(2):
        e(f"s_add_u32 m0, s30, {gi*4096}\ns_add_u32 s47, s31, {gi*4096}")
        for i in range(4):
            e(f"buffer_load_dwordx4 v3, s[12:15], s47 offen offset:{i*1024} lds")
    e(f"{LG1c}:")
    e(f"s_add_u32 s39, s39, 1\ns_branch {LT6}")
    def cs_dma(r):
        e(f"s_mov_b32 s30, {r*32*7168}")
        for i in range(7):
            e(f"s_add_u32 m0, s56, {i*1024+r*28672}\ns_nop 0")
            e(f"buffer_load_dwordx4 v{CSV+i}, s[20:23], s30 offen lds")
    def cs_mfma(r):
        for v in range(7):
            for t in range(2):
                e(f"ds_read_b64_tr_b16 v[{CSF+4*v+2*t}:{CSF+4*v+2*t+1}], v{VCR} offset:{v*32+t*3584+r*28672}")
        e("s_waitcnt lgkmcnt(0)")
        for v in range(7):
            a=CSACC+4*v
            c="0" if r==0 else f"v[{a}:{a+3}]"
            e(f"v_mfma_f32_16x16x32_bf16 v[{a}:{a+3}], v[{CSF+4*v}:{CSF+4*v+3}], v[{ONES}:{ONES+3}], {c}")
    def prefetch(srd, base_s, first, n):
        e(f"s_mov_b32 m0, {DUM}")
        for i in range(n):
            e(f"s_add_u32 s47, s{base_s}, {(first+i)*1024}")
            e(f"buffer_load_dwordx4 v3, s[{srd}:{srd+3}], s47 offen lds")
    side='noside' not in VAR
    SCHED=os.environ.get('K1SCHED','early')
    pad(2)
    e(f"{LMD}:")
    hooks=(0,1,3,4,5,6,7) if SCHED=='early' else (1,3,4,5,6,7)
    if side:
        for c in hooks:
            e(f"s_cmp_eq_u32 s39, {c}\ns_cbranch_scc1 {MID[c]}")
    e(f"s_branch {LMR}")
    def wd_loads():
        for i in range(7):
            e(f"s_mov_b32 s30, {i*8*2048}\nbuffer_load_dwordx4 v[{WDR+4*i}:{WDR+4*i+3}], v{VWD}, s[52:55], s30 offen")
    def wd_stores():
        for i in range(7):
            e(f"s_add_u32 s30, s63, {i*1024}\nbuffer_store_dwordx4 v[{WDR+4*i}:{WDR+4*i+3}], v3, s[72:75], s30 offen {os.environ.get('WDST','sc1')}")
    def cs_partials():
        e(f"v_lshrrev_b32 v4, 4, v2\nv_lshlrev_b32 v4, 4, v4\ns_mul_i32 s30, s33, 448\ns_add_u32 s30, s30, {CSS}\nv_add_u32 v4, s30, v4")
        e("v_and_b32 v5, 15, v2\nv_cmp_eq_u32 vcc, 0, v5\ns_and_saveexec_b64 s[66:67], vcc")
        k.nop(2)
        for v in range(7): e(f"ds_write_b128 v4, v[{CSACC+4*v}:{CSACC+4*v+3}] offset:{v*64}")
        e("s_mov_b64 exec, s[66:67]\ns_waitcnt lgkmcnt(0)")
    def cs_final():
        LS=k.lab("CSS")
        e("v_cmp_gt_u32 vcc, 112, v0\ns_and_saveexec_b64 s[66:67], vcc")
        e(f"s_cbranch_execz {LS}")
        e(f"v_lshlrev_b32 v4, 2, v0\nv_add_u32 v4, {CSS}, v4")
        for j in range(4): e(f"ds_read_b32 v{16+j}, v4 offset:{j*448}")
        e("s_and_b32 s30, s2, 3\ns_mul_i32 s30, s30, 28672\ns_lshr_b32 s31, s2, 7\ns_mul_i32 s31, s31, 14336\ns_add_u32 s30, s30, s31")
        e("s_bfe_u32 s31, s2, 0x50002\ns_mul_i32 s31, s31, 448\ns_add_u32 s30, s30, s31")
        e("v_lshlrev_b32 v4, 2, v0\ns_waitcnt lgkmcnt(0)")
        e("v_add_f32 v16, v16, v17\nv_add_f32 v18, v18, v19\nv_add_f32 v16, v16, v18")
        e("buffer_store_dword v16, v4, s[24:27], s30 offen")
        e(f"{LS}:\ns_mov_b64 exec, s[66:67]")
    for c in hooks:
        if not side: break
        pad({0:0,1:1,3:3,4:4,5:5,6:6,7:7}[c])
        e(f"{MID[c]}:")
        if SCHED=='early':
            if c==0: cs_dma(0)
            if c==1: wd_loads()
            WS_=os.environ.get('K1W')
            def wt(n,tag):
                if WS_==tag: k.stamp_mid(0); e("s_waitcnt lgkmcnt(0)")
                e(f"s_waitcnt vmcnt({n})")
                if WS_==tag: k.stamp_mid(1); e("s_waitcnt lgkmcnt(0)")
            if c==3: wt(7,'3'); cs_mfma(0); cs_dma(1)
            if c==4: wt(7,'4'); wd_stores()
            if c==5: prefetch(48,62,0,8)
            if c==6: wt(15,'6'); cs_mfma(1); cs_partials()
            if c==7:
                cs_final(); prefetch(48,62,8,8)
                k.code_prefetch("k2_wo_kernel", 4864, 4, 132, 76)
        else:
            if c==1: cs_dma(0)
            if c==3: e("s_waitcnt vmcnt(0)"); cs_mfma(0); cs_dma(1)
            if c==4: wd_loads()
            if c==5: e("s_waitcnt vmcnt(7)"); cs_mfma(1); cs_partials()
            if c==6:
                e("s_waitcnt vmcnt(0)"); wd_stores(); cs_final(); prefetch(48,62,0,8)
            if c==7:
                prefetch(48,62,8,8)
                k.code_prefetch("k2_wo_kernel", 4864, 4, 132, 76)
        e(f"s_branch {LMR}")
    pad(9)
    e(f"{LX}:")
    if os.environ.get('K1ST') not in ('1','2') and not os.environ.get('K1W'): k.stamp_mid(1)
    e("s_waitcnt lgkmcnt(0)")
    mf(O,V1,P+4); rs(P+4)
    k.nop(12)
    LFB=k.lab("FB"); LFIN=k.lab("FIN")
    e(f"v_mov_b32 v8, 0")
    for i in range(16): e(f"v_fmac_f32 v8, 0, v{O+i}")
    e(f"v_mov_b32 v9, {hex(f2u(2.0**-60))}\nv_mov_b32 v10, {hex(f2u(2.0**60))}")
    e(f"v_cmp_o_f32 s[64:65], v8, v8")
    e(f"v_cmp_le_f32 s[66:67], v9, v{Lr}")
    e(f"v_cmp_ge_f32 s[70:71], v10, v{Lr}")
    e("s_and_b64 s[64:65], s[64:65], s[66:67]\ns_and_b64 s[64:65], s[64:65], s[70:71]")
    e(f"s_cmp_eq_u64 s[64:65], exec\ns_cbranch_scc0 {LFB}")
    e(f"{LFIN}:")
    e(f"v_rcp_f32 v8, v{Lr}")
    e("s_nop 0")
    for i in range(16): e(f"v_mul_f32 v{O+i}, v{O+i}, v8")
    for i in range(8): e(f"v_cvt_pk_bf16_f32 v{16+i}, v{O+2*i}, v{O+2*i+1}")
    for j in range(2):
        e(f"buffer_store_dwordx4 v[{16+4*j}:{19+4*j}], v{VO}, s[16:19], 0 offen offset:{j*1024} {os.environ.get('K1STF','sc1')}")
    e("s_waitcnt vmcnt(0)")
    k.stamp_end(1)
    e("s_endpgm")
    e(f"{LFB}:")
    e("s_waitcnt vmcnt(0)")
    e("v_and_b32 v8, 31, v2\nv_bfe_u32 v9, v2, 2, 2\nv_lshrrev_b32 v10, 5, v2\nv_xor_b32 v9, v9, v10")
    e(f"v_lshlrev_b32 v8, 6, v8\nv_lshl_add_u32 v{AK}, v9, 4, v8\nv_xor_b32 v9, 2, v9\nv_lshl_add_u32 v{AK+1}, v9, 4, v8")
    e("v_mov_b32 v8, 0xff800000")
    F1=k.lab("F1"); F2=k.lab("F2")
    e(f"s_mov_b32 s47, 0\n{F1}:")
    for m in range(2): e(f"buffer_load_dwordx4 v[{KF+4*m}:{KF+4*m+3}], v{AK+m}, s[12:15], s47 offen")
    e("s_waitcnt vmcnt(0)")
    mf(SS,KF,Q,"0"); mf(SS,KF+4,Q+4)
    k.nop(12)
    for i in range(16): e(f"v_max_f32 v8, v8, v{SS+i}")
    e(f"s_add_u32 s47, s47, 4096\ns_cmp_lt_u32 s47, {64*4096}\ns_cbranch_scc1 {F1}")
    e("v_mov_b32 v10, v8\ns_nop 1\nv_permlane32_swap_b32 v8, v10\ns_nop 1\nv_max_f32 v8, v8, v10")
    for i in range(16): e(f"v_mov_b32 v{O+i}, 0")
    for i in range(4): e(f"v_mov_b32 v{Lr+i}, 0")
    e(f"s_mov_b32 s47, 0\n{F2}:")
    for m in range(2): e(f"buffer_load_dwordx4 v[{KF+4*m}:{KF+4*m+3}], v{AK+m}, s[12:15], s47 offen")
    e(f"buffer_load_dwordx4 v[{V0}:{V0+3}], v{AK}, s[12:15], s47 offen offset:2048")
    e(f"buffer_load_dwordx4 v[{V1}:{V1+3}], v{AK+1}, s[12:15], s47 offen offset:2048")
    e("s_waitcnt vmcnt(0)")
    mf(SS,KF,Q,"0"); mf(SS,KF+4,Q+4)
    k.nop(12)
    for i in range(16): e(f"v_sub_f32 v{SS+i}, v{SS+i}, v8")
    for i in range(16): e(f"v_exp_f32 v{SS+i}, v{SS+i}")
    e("s_nop 0")
    for i in range(8): e(f"v_cvt_pk_bf16_f32 v{P+i}, v{SS+2*i}, v{SS+2*i+1}")
    e("s_nop 1")
    mf(O,V0,P); mf(O,V1,P+4); rs(P); rs(P+4)
    k.nop(12)
    e(f"s_add_u32 s47, s47, 4096\ns_cmp_lt_u32 s47, {64*4096}\ns_cbranch_scc1 {F2}")
    e(f"s_branch {LFIN}")
    e(f"{END}:")
    e("s_endpgm")
    return k
```

```python
from base import *
from gda import *
import os
VAR=os.environ.get('K1VAR','')

QSCALE = (32**-0.5)*1.4426950408889634

def gen_k1():
    k=Kern("k1_q_attn_kernel", 256, 512, 163840, vgpr=224, sgpr=96)
    e=k.e
    END=k.lab("END")
    R=dict(vA=10,vB=8,vW=14,AF=48,W=112,acc=16)
    S=dict(w=33,sA=40,sB=41,wr=42,rd=43,inc=44,wB=46,t=47)
    SS=48; KF=80; V0=88; V1=92; P=96; Q=144; O=152; Lr=168; SEL=172; AK=176; AV0=178; AV1=179; VO=180; VCR=181; VWD=182
    ONES=184; CSV=188; WDR=196; CSACC=16; CSF=104
    BBASE=98304; QX=65536; CST=98304; CSS=CST+8*7168; DUM=CSS+1792+256
    e(f"s_cmp_ge_u32 s2, 256\ns_cbranch_scc1 {END}")
    k.stamp_begin()
    k.load_ptr(28,'ws'); k.load_ptr(20,'wg'); k.load_ptr(22,'wu'); k.load_ptr(48,'wo'); k.load_ptr(52,'wd')
    e("v_lshrrev_b32 v1, 6, v0\nv_and_b32 v2, 63, v0")
    e("s_and_b32 s30, s2, 7\ns_lshr_b32 s31, s2, 3")
    if os.environ.get('K1MAP','42')=='81':
        e("s_and_b32 s32, s31, 1\ns_lshl_b32 s30, s30, 1\ns_add_u32 s34, s30, s32")
        e("s_lshr_b32 s35, s31, 1")
    else:
        e("s_lshr_b32 s32, s30, 1\ns_lshl_b32 s32, s32, 2\ns_and_b32 s34, s31, 3\ns_add_u32 s34, s34, s32")
        e("s_and_b32 s32, s30, 1\ns_lshl_b32 s32, s32, 3\ns_lshr_b32 s35, s31, 2\ns_add_u32 s35, s35, s32")
    e("v_readfirstlane_b32 s58, v1")
    e("v_lshlrev_b32 v3, 4, v2")
    e("s_and_b32 s33, s58, 3")
    e("s_lshl_b32 s37, s35, 7")
    e("s_lshl_b32 s38, s33, 13")
    MID=[k.lab(f"MID{c}") for c in range(8)]; LMD=k.lab("MD"); LG1=k.lab("G1"); LX=k.lab("X")
    WARM=[k.lab(f"W{c}") for c in range(10)]
    warm_n=[0]
    def icache_warm():
        if not os.environ.get('WARM'): return
        n=warm_n[0]; warm_n[0]+=1
        for rnd in range(2):
            B=f"WB{n}_{rnd}_{k.name}"
            e(f"s_add_u32 s30, s58, {8*rnd}\ns_mov_b32 s31, {2*n+rnd}")
            for c in range(8*rnd, min(8*rnd+8,10)):
                e(f"s_cmp_eq_u32 s30, {c}\ns_cbranch_scc1 {WARM[c]}")
            e(f"{B}:")
    def pad(c):
        if not os.environ.get('WARM'): return
        e(f"{WARM[c]}:")
        for q in range(3):
            e(f"s_cmp_eq_u32 s31, {q}\ns_cbranch_scc1 WB{q//2}_{q%2}_{k.name}")
        e(f"s_branch WB1_1_{k.name}")
    def attn_setup():
        e("v_and_b32 v4, 31, v2\nv_bfe_u32 v5, v2, 2, 2\nv_lshrrev_b32 v6, 5, v2\nv_xor_b32 v5, v5, v6")
        e(f"v_lshlrev_b32 v4, 6, v4\nv_lshl_add_u32 v{AK}, v5, 4, v4\nv_xor_b32 v5, 2, v5\nv_lshl_add_u32 v{AK+1}, v5, 4, v4")
        e(f"v_mov_b32 v{AV0}, v{AK}\nv_mov_b32 v{AV1}, v{AK+1}")
        e("v_bfe_u32 v4, v2, 2, 1\nv_bfe_u32 v5, v2, 4, 1\nv_xor_b32 v4, v4, v5\nv_and_b32 v5, 3, v2\nv_or_b32 v4, v4, v5")
        e("v_mov_b32 v5, 0x3f803f80\nv_cmp_eq_u32 vcc, 0, v4\ns_nop 1")
        e(f"v_cndmask_b32 v{SEL}, 0, v5, vcc")
        for i in range(1,4): e(f"v_mov_b32 v{SEL+i}, v{SEL}")
        e(f"s_lshl_b32 s47, s34, 2\ns_add_u32 s47, s47, s33\ns_lshl_b32 s47, s47, 6\ns_lshr_b32 s30, s58, 2\ns_lshl_b32 s31, s35, 1\ns_add_u32 s30, s30, s31\ns_lshl_b32 s30, s30, 1\ns_add_u32 s47, s47, s30\ns_lshl_b32 s47, s47, 10")
        e(f"v_add_u32 v{VO}, s47, v3")
        for i in range(16): e(f"v_mov_b32 v{O+i}, 0")
        for i in range(4): e(f"v_mov_b32 v{Lr+i}, 0")
        e("s_and_b32 s30, s2, 3\ns_lshl_b32 s30, s30, 8\ns_lshl_b32 s31, s33, 6\ns_add_u32 s30, s30, s31\ns_mul_i32 s30, s30, 7168")
        e("s_bfe_u32 s31, s2, 0x50002\ns_mul_i32 s31, s31, 224\ns_add_u32 s30, s30, s31")
        for i in range(7):
            e(f"v_add_u32 v5, {64*i}, v2\nv_mul_u32_u24 v6, 4682, v5\nv_lshrrev_b32 v6, 16, v6\nv_mul_u32_u24 v7, 14, v6\nv_sub_u32 v7, v5, v7")
            e(f"v_mul_u32_u24 v6, 7168, v6\nv_lshl_add_u32 v6, v7, 4, v6\nv_add_u32 v{CSV+i}, s30, v6")
        e(f"s_mul_i32 s56, s33, 7168\ns_add_u32 s56, s56, {CST}")
        e(f"v_lshrrev_b32 v5, 2, v2\nv_mul_u32_u24 v5, 224, v5\nv_and_b32 v6, 3, v2\nv_lshl_add_u32 v5, v6, 3, v5\nv_add_u32 v{VCR}, s56, v5")
        for i in range(4): e(f"v_mov_b32 v{ONES+i}, 0x3f803f80")
        e("s_lshr_b32 s62, s2, 3\ns_lshl_b32 s62, s62, 16\ns_lshl_b32 s63, s33, 14\ns_add_u32 s62, s62, s63")
        e("s_lshl_b32 s63, s2, 2\ns_add_u32 s63, s63, s33\ns_and_b32 s30, s63, 63\ns_mul_i32 s30, s30, 56\ns_lshr_b32 s31, s63, 6\ns_lshl_b32 s31, s31, 7\ns_mul_i32 s63, s63, 7168")
        e(f"v_lshrrev_b32 v5, 3, v2\nv_add_u32 v5, s30, v5\nv_lshlrev_b32 v5, 11, v5\nv_add_u32 v5, s31, v5")
        e(f"v_bfe_u32 v6, v2, 4, 1\nv_lshlrev_b32 v6, 2, v6\nv_and_b32 v7, 7, v2\nv_xor_b32 v6, v6, v7\nv_lshl_add_u32 v{VWD}, v6, 4, v5")

    g=GDA(k,R,S,4,8,8,16,True,8192,False,base=BBASE)
    LCONS=k.lab("CONS"); LJ=k.lab("JOIN")
    e(f"s_cmp_lt_u32 s58, 4\ns_cbranch_scc1 {LCONS} ; @alt")
    def kv_dma(c):
        for gi in range(2):
            e(f"s_add_u32 s47, s38, {c*32768+gi*4096}")
            e(f"s_add_u32 m0, s38, {(c%3)*32768+gi*4096}\ns_nop 0")
            for i in range(4):
                e(f"buffer_load_dwordx4 v3, s[12:15], s47 offen offset:{i*1024} lds")
    e("s_lshl_b32 s36, s35, 17")
    g.setup_loader(2, 60, 2048, 36)
    e("s_waitcnt lgkmcnt(0)")
    k.srd(8, 2*MB, src=28, add=WS_WQB)
    k.srd(12, 64*4096, src=28, add=WS_KV); k.srd(16, 4*MB, src=28, add=WS_O)
    g.loader(39, hooks={12:(lambda:kv_dma(0),8)}, after_first=lambda:(attn_setup(),icache_warm()))
    e("s_waitcnt vmcnt(0)\ns_barrier")
    e(f"s_lshl_b32 s47, s33, 11\ns_add_u32 s47, s47, {QX}\nv_add_u32 v4, s47, v3")
    e(f"ds_read_b128 v[{Q}:{Q+3}], v4\nds_read_b128 v[{Q+4}:{Q+7}], v4 offset:1024")
    kv_dma(1)
    e(f"s_branch {LJ}")
    e(f"{LCONS}:")
    e(f"s_lshl_b32 s36, s34, 2\ns_add_u32 s36, s36, s33\ns_lshl_b32 s36, s36, 16")
    g.setup_consumer(2, 60, 36)
    e("s_waitcnt lgkmcnt(0)")
    k.srd(4, 4*MB, src=28, add=WS_XN)
    g.a_prologue()
    attn_setup()
    icache_warm()
    k.srd(12, 64*4096, src=28, add=WS_KV); k.srd(16, 4*MB, src=28, add=WS_O)
    e("s_cmp_ge_u32 s2, 128\ns_cselect_b32 s20, s22, s20\ns_cselect_b32 s21, s23, s21")
    k.srd(20, 3584*1024*2); k.srd(48, 2*MB); k.srd(52, 3584*1024*2); k.srd(72, 3584*2048, src=28, add=WS_WDB)
    k.srd(24, 4*7168*4, src=28, add=WS_CS)
    g.consumer(39, stamp=(1 if os.environ.get('K1ST')=='1' else None))
    if os.environ.get('K1ST')=='2': k.stamp_mid(1)
    e(f"v_mov_b32 v60, {hex(f2u(QSCALE))}")
    k.nop(12)
    for i in range(32): e(f"v_mul_f32 v{R['acc']+i}, v{R['acc']+i}, v60")
    for i in range(8): e(f"v_cvt_pk_bf16_f32 v{Q+i}, v{R['acc']+2*i}, v{R['acc']+2*i+1}")
    for i in range(8): e(f"v_cvt_pk_bf16_f32 v{64+i}, v{R['acc']+16+2*i}, v{R['acc']+16+2*i+1}")
    e(f"s_lshl_b32 s47, s33, 11\ns_add_u32 s47, s47, {QX}\nv_add_u32 v4, s47, v3")
    e(f"ds_write_b128 v4, v[64:67]\nds_write_b128 v4, v[68:71] offset:1024")
    e("s_waitcnt lgkmcnt(0)\ns_barrier")
    e(f"{LJ}:")
    if not os.environ.get('K1W'): k.stamp_mid(0)
    def rdK(tl):
        for m in range(2): e(f"ds_read_b128 v[{KF+4*m}:{KF+4*m+3}], v{AK+m} offset:{tl*4096}")
    def rdV0(tl): e(f"ds_read_b128 v[{V0}:{V0+3}], v{AV0} offset:{tl*4096+2048}")
    def rdV1(tl): e(f"ds_read_b128 v[{V1}:{V1+3}], v{AV1} offset:{tl*4096+2048}")
    rdK(0); rdV0(0)
    for i in range(4): e(f"v_mov_b32 v{P+4+i}, 0\nv_mov_b32 v{V1+i}, 0")
    e("s_waitcnt lgkmcnt(0)")
    def mf(d,a,b,c=None):
        cs = c if c else f"v[{d}:{d+15}]"
        e(f"v_mfma_f32_32x32x16_bf16 v[{d}:{d+15}], v[{a}:{a+3}], v[{b}:{b+3}], {cs}")
    def rs(b): e(f"v_mfma_f32_16x16x32_bf16 v[{Lr}:{Lr+3}], v[{SEL}:{SEL+3}], v[{b}:{b+3}], v[{Lr}:{Lr+3}]")
    mf(SS,KF,Q,"0"); mf(SS,KF+4,Q+4)
    rdK(1)
    e("s_waitcnt lgkmcnt(0)")
    k.nop(10)
    PAT="W3 E0 E1 PV1p RV1 E2 E3 C0 E4 W2 QK0 E5 C1 E6 E7 RS1p C2 E8 QK1 RK C3 E9 E10 E11 W3 PV0 RV0 C4 E12 E13 C5 RS0 E14 E15 C6 C7".split()
    def slot(tl):
        par=tl&1
        Sc=SS+16*par; Sn=SS+16*(1-par)
        if 'tog' in VAR: e(f"s_setprio {par}")
        for t in PAT:
            if t[0]=='E': i=int(t[1:]); e(f"v_exp_f32 v{Sc+i}, v{Sc+i}")
            elif t[0]=='C': i=int(t[1:]); e(f"v_cvt_pk_bf16_f32 v{P+i}, v{Sc+2*i}, v{Sc+2*i+1}")
            elif t[0]=='W':
                if 'nowait' not in VAR: e(f"s_waitcnt lgkmcnt({t[1]})")
            elif t=='QK0': mf(Sn,KF,Q,"0")
            elif t=='QK1': mf(Sn,KF+4,Q+4)
            elif t=='PV0': mf(O,V0,P)
            elif t=='PV1p': mf(O,V1,P+4)
            elif t=='RS0': rs(P)
            elif t=='RS1p': rs(P+4)
            elif 'noread' in VAR: pass
            elif t=='RV1': rdV1(tl)
            elif t=='RK': rdK((tl+2)&7)
            elif t=='RV0': rdV0((tl+1)&7)
    LT0=k.lab("T0"); LT6=k.lab("T6")
    if 'sprio' in VAR:
        LP=k.lab("P"); e(f"s_cmp_lt_u32 s58, 4\ns_cbranch_scc1 {LP}\ns_setprio 1\n{LP}:")
    e("s_mov_b32 s39, 0\ns_mov_b32 s60, 0")
    e(f"s_branch {LT0}")
    e(f"{LT6}:")
    e(f"v_add_u32 v{AK}, s59, v{AK}\nv_add_u32 v{AK+1}, s59, v{AK+1}")
    slot(6)
    e(f"v_add_u32 v{AV0}, s59, v{AV0}")
    slot(7)
    e(f"v_add_u32 v{AV1}, s59, v{AV1}")
    e(f"s_cmp_eq_u32 s39, 8\ns_cbranch_scc1 {LX} ; @exit")
    e(f"{LT0}:")
    slot(0); slot(1)
    LMR=k.lab("MR")
    e(f"s_cmp_lt_u32 s58, 4\ns_cbranch_scc1 {LMD} ; @alt")
    e(f"{LMR}:")
    for tl in range(2,6): slot(tl)
    e("s_mov_b32 s59, 0xffff0000\ns_cmp_eq_u32 s60, 2\ns_cselect_b32 s59, s59, 0x8000\ns_add_u32 s61, s60, 2\ns_add_u32 s60, s60, 1\ns_cmp_eq_u32 s60, 3\ns_cselect_b32 s60, 0, s60")
    e(f"s_cmp_ge_u32 s58, 4\ns_cbranch_scc1 {LG1} ; @g1")
    LNB=k.lab("NB")
    e(f"s_cmp_eq_u32 s39, 7\ns_cbranch_scc1 {LNB}")
    e("s_barrier")
    e(f"{LNB}:")
    e(f"s_add_u32 s39, s39, 1\ns_branch {LT6}")
    pad(8)
    e(f"{LG1}:")
    LG1c=k.lab("G1c")
    e(f"s_cmp_eq_u32 s39, 7\ns_cbranch_scc1 {LG1c}")
    e("s_waitcnt vmcnt(0)\ns_barrier")
    e(f"s_cmp_ge_u32 s39, 6\ns_cbranch_scc1 {LG1c}")
    e("s_add_u32 s30, s39, 2\ns_lshl_b32 s31, s30, 15\ns_sub_u32 s30, s61, 3\ns_cmp_ge_u32 s61, 3\ns_cselect_b32 s30, s30, s61\ns_lshl_b32 s30, s30, 15\ns_add_u32 s30, s30, s38\ns_add_u32 s31, s31, s38")
    for gi in range(2):
        e(f"s_add_u32 m0, s30, {gi*4096}\ns_add_u32 s47, s31, {gi*4096}")
        for i in range(4):
            e(f"buffer_load_dwordx4 v3, s[12:15], s47 offen offset:{i*1024} lds")
    e(f"{LG1c}:")
    e(f"s_add_u32 s39, s39, 1\ns_branch {LT6}")
    def cs_dma(r):
        if 'nocs' in VAR: return
        e(f"s_mov_b32 s30, {r*32*7168}")
        for i in range(7):
            e(f"s_add_u32 m0, s56, {i*1024+r*28672}\ns_nop 0")
            e(f"buffer_load_dwordx4 v{CSV+i}, s[20:23], s30 offen lds")
    def cs_mfma(r):
        for v in range(7):
            for t in range(2):
                e(f"ds_read_b64_tr_b16 v[{CSF+4*v+2*t}:{CSF+4*v+2*t+1}], v{VCR} offset:{v*32+t*3584+r*28672}")
        e("s_waitcnt lgkmcnt(0)")
        for v in range(7):
            a=CSACC+4*v
            c="0" if r==0 else f"v[{a}:{a+3}]"
            e(f"v_mfma_f32_16x16x32_bf16 v[{a}:{a+3}], v[{CSF+4*v}:{CSF+4*v+3}], v[{ONES}:{ONES+3}], {c}")
    def prefetch(srd, base_s, first, n):
        if 'nowo' in VAR: return
        e(f"s_mov_b32 m0, {DUM}")
        for i in range(n):
            e(f"s_add_u32 s47, s{base_s}, {(first+i)*1024}")
            e(f"buffer_load_dwordx4 v3, s[{srd}:{srd+3}], s47 offen lds")
    side='noside' not in VAR
    SCHED=os.environ.get('K1SCHED','spread')
    pad(2)
    e(f"{LMD}:")
    hooks={'early':(0,1,3,4,5,6,7),'spread':(0,2,4,5,6,7)}.get(SCHED,(1,3,4,5,6,7))
    if side:
        for c in hooks:
            e(f"s_cmp_eq_u32 s39, {c}\ns_cbranch_scc1 {MID[c]}")
    e(f"s_branch {LMR}")
    def wd_loads():
        if 'nowd' in VAR: return
        for i in range(7):
            e(f"s_mov_b32 s30, {i*8*2048}\nbuffer_load_dwordx4 v[{WDR+4*i}:{WDR+4*i+3}], v{VWD}, s[52:55], s30 offen")
    def wd_stores():
        if 'nowd' in VAR: return
        for i in range(7):
            e(f"s_add_u32 s30, s63, {i*1024}\nbuffer_store_dwordx4 v[{WDR+4*i}:{WDR+4*i+3}], v3, s[72:75], s30 offen {os.environ.get('WDST','sc1')}")
    def cs_partials():
        e(f"v_lshrrev_b32 v4, 4, v2\nv_lshlrev_b32 v4, 4, v4\ns_mul_i32 s30, s33, 448\ns_add_u32 s30, s30, {CSS}\nv_add_u32 v4, s30, v4")
        e("v_and_b32 v5, 15, v2\nv_cmp_eq_u32 vcc, 0, v5\ns_and_saveexec_b64 s[66:67], vcc")
        k.nop(2)
        for v in range(7): e(f"ds_write_b128 v4, v[{CSACC+4*v}:{CSACC+4*v+3}] offset:{v*64}")
        e("s_mov_b64 exec, s[66:67]\ns_waitcnt lgkmcnt(0)")
    def cs_final():
        LS=k.lab("CSS")
        e("v_cmp_gt_u32 vcc, 112, v0\ns_and_saveexec_b64 s[66:67], vcc")
        e(f"s_cbranch_execz {LS}")
        e(f"v_lshlrev_b32 v4, 2, v0\nv_add_u32 v4, {CSS}, v4")
        for j in range(4): e(f"ds_read_b32 v{16+j}, v4 offset:{j*448}")
        e("s_and_b32 s30, s2, 3\ns_mul_i32 s30, s30, 28672\ns_lshr_b32 s31, s2, 7\ns_mul_i32 s31, s31, 14336\ns_add_u32 s30, s30, s31")
        e("s_bfe_u32 s31, s2, 0x50002\ns_mul_i32 s31, s31, 448\ns_add_u32 s30, s30, s31")
        e("v_lshlrev_b32 v4, 2, v0\ns_waitcnt lgkmcnt(0)")
        e("v_add_f32 v16, v16, v17\nv_add_f32 v18, v18, v19\nv_add_f32 v16, v16, v18")
        e("buffer_store_dword v16, v4, s[24:27], s30 offen")
        e(f"{LS}:\ns_mov_b64 exec, s[66:67]")
    for c in hooks:
        if not side: break
        pad({0:0,1:1,2:1,3:3,4:4,5:5,6:6,7:7}[c])
        e(f"{MID[c]}:")
        if SCHED=='spread':
            if c==0: cs_dma(0)
            if c==2: e("s_waitcnt vmcnt(0)"); cs_mfma(0); cs_dma(1)
            if c==4: e("s_waitcnt vmcnt(0)"); cs_mfma(1); cs_partials(); wd_loads()
            if c==5: cs_final(); prefetch(48,62,0,8)
            if c==6: e("s_waitcnt vmcnt(8)"); wd_stores()
            if c==7:
                prefetch(48,62,8,8)
                k.code_prefetch("k2_wo_kernel", 4864, 4, 132, 76)
        elif SCHED=='early':
            if c==0: cs_dma(0)
            if c==1: wd_loads()
            if c==3: e("s_waitcnt vmcnt(7)"); cs_mfma(0); cs_dma(1)
            if c==4: e("s_waitcnt vmcnt(7)"); wd_stores()
            if c==5: prefetch(48,62,0,8)
            if c==6: e("s_waitcnt vmcnt(15)"); cs_mfma(1); cs_partials()
            if c==7:
                cs_final(); prefetch(48,62,8,8)
                k.code_prefetch("k2_wo_kernel", 4864, 4, 132, 76)
        else:
            if c==1: cs_dma(0)
            if c==3: e("s_waitcnt vmcnt(0)"); cs_mfma(0); cs_dma(1)
            if c==4: wd_loads()
            if c==5: e("s_waitcnt vmcnt(7)"); cs_mfma(1); cs_partials()
            if c==6:
                e("s_waitcnt vmcnt(0)"); wd_stores(); cs_final(); prefetch(48,62,0,8)
            if c==7:
                prefetch(48,62,8,8)
                k.code_prefetch("k2_wo_kernel", 4864, 4, 132, 76)
        e(f"s_branch {LMR}")
    pad(9)
    e(f"{LX}:")
    if os.environ.get('K1ST') not in ('1','2') and not os.environ.get('K1W'): k.stamp_mid(1)
    e("s_waitcnt lgkmcnt(0)")
    mf(O,V1,P+4); rs(P+4)
    k.nop(12)
    LFB=k.lab("FB"); LFIN=k.lab("FIN")
    e(f"v_mov_b32 v8, 0")
    for i in range(16): e(f"v_fmac_f32 v8, 0, v{O+i}")
    e(f"v_mov_b32 v9, {hex(f2u(2.0**-60))}\nv_mov_b32 v10, {hex(f2u(2.0**60))}")
    e(f"v_cmp_o_f32 s[64:65], v8, v8")
    e(f"v_cmp_le_f32 s[66:67], v9, v{Lr}")
    e(f"v_cmp_ge_f32 s[70:71], v10, v{Lr}")
    e("s_and_b64 s[64:65], s[64:65], s[66:67]\ns_and_b64 s[64:65], s[64:65], s[70:71]")
    e(f"s_cmp_eq_u64 s[64:65], exec\ns_cbranch_scc0 {LFB}")
    e(f"{LFIN}:")
    e(f"v_rcp_f32 v8, v{Lr}")
    e("s_nop 0")
    for i in range(16): e(f"v_mul_f32 v{O+i}, v{O+i}, v8")
    for i in range(8): e(f"v_cvt_pk_bf16_f32 v{16+i}, v{O+2*i}, v{O+2*i+1}")
    for j in range(2):
        e(f"buffer_store_dwordx4 v[{16+4*j}:{19+4*j}], v{VO}, s[16:19], 0 offen offset:{j*1024} {os.environ.get('K1STF','sc1')}")
    e("s_waitcnt vmcnt(0)")
    k.stamp_end(1)
    e("s_endpgm")
    e(f"{LFB}:")
    e("s_waitcnt vmcnt(0)")
    e("v_and_b32 v8, 31, v2\nv_bfe_u32 v9, v2, 2, 2\nv_lshrrev_b32 v10, 5, v2\nv_xor_b32 v9, v9, v10")
    e(f"v_lshlrev_b32 v8, 6, v8\nv_lshl_add_u32 v{AK}, v9, 4, v8\nv_xor_b32 v9, 2, v9\nv_lshl_add_u32 v{AK+1}, v9, 4, v8")
    e("v_mov_b32 v8, 0xff800000")
    F1=k.lab("F1"); F2=k.lab("F2")
    e(f"s_mov_b32 s47, 0\n{F1}:")
    for m in range(2): e(f"buffer_load_dwordx4 v[{KF+4*m}:{KF+4*m+3}], v{AK+m}, s[12:15], s47 offen")
    e("s_waitcnt vmcnt(0)")
    mf(SS,KF,Q,"0"); mf(SS,KF+4,Q+4)
    k.nop(12)
    for i in range(16): e(f"v_max_f32 v8, v8, v{SS+i}")
    e(f"s_add_u32 s47, s47, 4096\ns_cmp_lt_u32 s47, {64*4096}\ns_cbranch_scc1 {F1}")
    e("v_mov_b32 v10, v8\ns_nop 1\nv_permlane32_swap_b32 v8, v10\ns_nop 1\nv_max_f32 v8, v8, v10")
    for i in range(16): e(f"v_mov_b32 v{O+i}, 0")
    for i in range(4): e(f"v_mov_b32 v{Lr+i}, 0")
    e(f"s_mov_b32 s47, 0\n{F2}:")
    for m in range(2): e(f"buffer_load_dwordx4 v[{KF+4*m}:{KF+4*m+3}], v{AK+m}, s[12:15], s47 offen")
    e(f"buffer_load_dwordx4 v[{V0}:{V0+3}], v{AK}, s[12:15], s47 offen offset:2048")
    e(f"buffer_load_dwordx4 v[{V1}:{V1+3}], v{AK+1}, s[12:15], s47 offen offset:2048")
    e("s_waitcnt vmcnt(0)")
    mf(SS,KF,Q,"0"); mf(SS,KF+4,Q+4)
    k.nop(12)
    for i in range(16): e(f"v_sub_f32 v{SS+i}, v{SS+i}, v8")
    for i in range(16): e(f"v_exp_f32 v{SS+i}, v{SS+i}")
    e("s_nop 0")
    for i in range(8): e(f"v_cvt_pk_bf16_f32 v{P+i}, v{SS+2*i}, v{SS+2*i+1}")
    e("s_nop 1")
    mf(O,V0,P); mf(O,V1,P+4); rs(P); rs(P+4)
    k.nop(12)
    e(f"s_add_u32 s47, s47, 4096\ns_cmp_lt_u32 s47, {64*4096}\ns_cbranch_scc1 {F2}")
    e(f"s_branch {LFIN}")
    e(f"{END}:")
    e("s_endpgm")
    return k
```

```python
from base import *
import os

def dpp_reduce(k, regs):
    seq=["row_shr:1 row_mask:0xf bank_mask:0xf","row_shr:2 row_mask:0xf bank_mask:0xf",
         "row_shr:4 row_mask:0xf bank_mask:0xf","row_shr:8 row_mask:0xf bank_mask:0xf",
         "row_bcast:15 row_mask:0xa bank_mask:0xf","row_bcast:31 row_mask:0xc bank_mask:0xf"]
    for s in seq:
        k.nop(max(0,2-(len(regs)-1)))
        for r in regs:
            k.e(f"v_add_f32_dpp v{r}, v{r}, v{r} {s}")

def gen_k0():
    XL=65536; XLS=2080; RED=XL+16*XLS; DUMMY=RED+2048
    k=Kern("k0_ln_kv_kernel", 256, 256, DUMMY+4096, vgpr=140, sgpr=64)
    e=k.e
    END=k.lab("END")
    e(f"s_cmp_ge_u32 s2, 256\ns_cbranch_scc1 {END}")
    k.stamp_begin()
    k.load_ptr(4,'x'); k.load_ptr(8,'wk'); k.load_ptr(12,'wv'); k.load_ptr(24,'wq'); k.load_ptr(28,'ws')
    k.code_prefetch_all("k0_ln_kv_kernel", 124, 124, 60)
    e("v_lshrrev_b32 v1, 6, v0\nv_and_b32 v2, 63, v0")
    e("s_and_b32 s40, s2, 7\ns_lshr_b32 s41, s2, 3\ns_lshl_b32 s40, s40, 4\ns_lshr_b32 s42, s41, 1\ns_add_u32 s32, s40, s42\ns_and_b32 s43, s41, 1")
    e("v_readfirstlane_b32 s33, v1")
    e("v_lshlrev_b32 v3, 4, v2")
    e("s_lshl_b32 s40, s32, 4\ns_lshl_b32 s41, s33, 2\ns_add_u32 s40, s40, s41\ns_lshl_b32 s34, s40, 11")
    e("s_add_u32 s44, s34, 4096")
    e("s_waitcnt lgkmcnt(0)")
    k.srd(4, 2048*2048)
    for r in range(4):
        so = "s34" if r<2 else "s44"
        for j in range(2):
            e(f"buffer_load_dwordx4 v[{8+8*r+4*j}:{11+8*r+4*j}], v3, s[4:7], {so} offen offset:{(r&1)*2048+1024*j}")
    e("v_lshrrev_b32 v4, 2, v2\nv_lshlrev_b32 v4, 6, v4\nv_lshrrev_b32 v5, 5, v2\nv_lshlrev_b32 v5, 1, v5\nv_and_b32 v6, 3, v2\nv_xor_b32 v5, v5, v6\nv_lshl_add_u32 v4, v5, 4, v4")
    e("s_cmp_eq_u32 s43, 1\ns_cselect_b32 s8, s12, s8\ns_cselect_b32 s9, s13, s9")
    k.srd(8, 65536); k.srd(24, 2*MB)
    k.srd(16, 4*MB, src=28, add=WS_XN) ; k.srd(20, 64*4096, src=28, add=WS_KV); k.srd(56, 2*MB, src=28, add=WS_WQB)
    e("s_lshl_b32 s35, s33, 14")
    for g in range(4):
        e(f"s_add_u32 s36, s35, {g*4096}")
        e(f"s_mov_b32 m0, s36\ns_nop 0")
        for i in range(4):
            e(f"buffer_load_dwordx4 v4, s[8:11], s36 offen offset:{1024*i} lds")
    e("s_lshl_b32 s40, s2, 2\ns_add_u32 s40, s40, s33\ns_lshl_b32 s53, s40, 11\ns_lshl_b32 s52, s40, 7\ns_bfe_u32 s41, s40, 0x10001\ns_lshl_b32 s41, s41, 2")
    e("buffer_load_dwordx4 v[116:119], v3, s[24:27], s53 offen\nbuffer_load_dwordx4 v[120:123], v3, s[24:27], s53 offen offset:1024")
    e("v_lshrrev_b32 v114, 3, v2\nv_lshlrev_b32 v114, 17, v114\nv_and_b32 v115, 7, v2\nv_xor_b32 v115, s41, v115\nv_lshl_add_u32 v130, v115, 4, v114")
    e("s_add_u32 s54, s52, 0x100000")
    e("s_waitcnt vmcnt(18)")
    if os.environ.get('K0ST')=='1': k.stamp_mid(0)
    X=48
    for row in range(4):
        for j in range(8):
            e(f"v_lshlrev_b32 v{X+16*row+2*j}, 16, v{8+8*row+j}")
            e(f"v_and_b32 v{X+1+16*row+2*j}, 0xffff0000, v{8+8*row+j}")
    PA=132
    pr=lambda r: f"v[{r}:{r+1}]"
    def bsel(row):
        return (pr(44+(row&2)), "op_sel_hi:[1,0]" if row%2==0 else "op_sel:[0,1] op_sel_hi:[1,1]")
    for row in range(4):
        b=X+16*row; a=PA+2*row
        e(f"v_pk_add_f32 {pr(a)}, {pr(b)}, {pr(b+2)}")
    for i in range(2,8):
        for row in range(4):
            b=X+16*row; a=PA+2*row
            e(f"v_pk_add_f32 {pr(a)}, {pr(a)}, {pr(b+2*i)}")
    for row in range(4): e(f"v_add_f32 v{40+row}, v{PA+2*row}, v{PA+2*row+1}")
    dpp_reduce(k,[40,41,42,43])
    e(f"v_mov_b32 v112, {hex(f2u(1/1024.))}\nv_mov_b32 v113, {hex(f2u(1e-5))}")
    for row in range(4): e(f"v_readlane_b32 s{48+row}, v{40+row}, 63")
    e("s_nop 0")
    for row in range(4): e(f"v_mul_f32 v{44+row}, s{48+row}, v112")
    for row in range(4):
        b=X+16*row; src,sel=bsel(row)
        for i in range(8): e(f"v_pk_add_f32 {pr(b+2*i)}, {pr(b+2*i)}, {src} {sel} neg_lo:[0,1] neg_hi:[0,1]")
    for row in range(4):
        b=X+16*row; a=PA+2*row
        e(f"v_pk_mul_f32 {pr(a)}, {pr(b)}, {pr(b)}")
    for i in range(1,8):
        for row in range(4):
            b=X+16*row; a=PA+2*row
            e(f"v_pk_fma_f32 {pr(a)}, {pr(b+2*i)}, {pr(b+2*i)}, {pr(a)}")
    for row in range(4): e(f"v_add_f32 v{40+row}, v{PA+2*row}, v{PA+2*row+1}")
    dpp_reduce(k,[40,41,42,43])
    e("s_nop 0")
    for row in range(4): e(f"v_readlane_b32 s{48+row}, v{40+row}, 63")
    e("s_nop 0")
    for row in range(4): e(f"v_fma_f32 v{44+row}, s{48+row}, v112, v113")
    for row in range(4): e(f"v_rsq_f32 v{44+row}, v{44+row}")
    e("s_nop 0")
    for row in range(4):
        b=X+16*row; src,sel=bsel(row)
        for i in range(8): e(f"v_pk_mul_f32 {pr(b+2*i)}, {pr(b+2*i)}, {src} {sel}")
    for row in range(4):
        b=X+16*row
        for j in range(8): e(f"v_cvt_pk_bf16_f32 v{8+8*row+j}, v{b+2*j}, v{b+2*j+1}")
    e(f"s_lshl_b32 s40, s33, 2\ns_mul_i32 s40, s40, {XLS}\ns_add_u32 s40, s40, {XL}")
    e("v_add_u32 v5, s40, v3")
    for r in range(4):
        e(f"ds_write_b128 v5, v[{8+8*r}:{11+8*r}] offset:{r*XLS}")
        e(f"ds_write_b128 v5, v[{12+8*r}:{15+8*r}] offset:{r*XLS+1024}")
    e("s_and_b32 s41, s33, 1\ns_lshr_b32 s42, s33, 1")
    e("v_lshrrev_b32 v6, 4, v2\nv_and_b32 v7, 15, v2\nv_lshrrev_b32 v44, 2, v7\nv_and_b32 v45, 3, v2")
    e("v_lshl_add_u32 v44, v6, 3, v44\nv_lshlrev_b32 v44, 6, v44")
    e("v_lshrrev_b32 v46, 1, v45\ns_lshl_b32 s45, s41, 1\nv_add_u32 v46, s45, v46")
    e("v_and_b32 v47, 1, v6\nv_lshlrev_b32 v47, 1, v47\nv_xor_b32 v46, v46, v47")
    e("v_lshl_add_u32 v44, v46, 4, v44")
    e("v_and_b32 v47, 1, v45\nv_lshl_add_u32 v44, v47, 3, v44")
    e("s_lshl_b32 s45, s42, 15\nv_add_u32 v44, s45, v44")
    e(f"v_mul_u32_u24 v46, {XLS}, v7\nv_lshl_add_u32 v46, v6, 4, v46\ns_lshl_b32 s45, s42, 10\ns_add_u32 s45, s45, {XL}\nv_add_u32 v45, s45, v46")
    if os.environ.get('K0ST')=='1': k.stamp_mid(1)
    e("s_waitcnt vmcnt(0) lgkmcnt(0)")
    e("buffer_store_dwordx4 v[116:119], v130, s[56:59], s52 offen sc1\nbuffer_store_dwordx4 v[120:123], v130, s[56:59], s54 offen sc1")
    e("s_barrier")
    if os.environ.get('K0ST')=='2':
        k.stamp_mid(0); e("s_waitcnt lgkmcnt(0)")
    e(f"s_lshl_b32 s45, s43, 4\ns_lshl_b32 s46, s33, 2\ns_add_u32 s45, s45, s46")
    e(f"v_mul_u32_u24 v46, {XLS}, v7\nv_lshl_add_u32 v46, v6, 4, v46\ns_lshl_b32 s46, s45, 6\ns_add_u32 s46, s46, {XL}\nv_add_u32 v46, s46, v46")
    for i in range(4): e(f"ds_read_b128 v[{96+4*i}:{99+4*i}], v46 offset:{64*i}")
    e("v_lshrrev_b32 v47, 1, v6\nv_lshlrev_b32 v47, 10, v47\nv_and_b32 v112, 1, v6\nv_lshl_add_u32 v47, v112, 9, v47\nv_lshl_add_u32 v47, v7, 4, v47")
    e("s_lshr_b32 s46, s32, 1\ns_lshl_b32 s46, s46, 16\ns_and_b32 s47, s32, 1\ns_lshl_b32 s47, s47, 8\ns_add_u32 s46, s46, s47\ns_lshl_b32 s47, s45, 11\ns_add_u32 s46, s46, s47")
    e("s_waitcnt lgkmcnt(0)")
    for i in range(4):
        e(f"s_add_u32 s47, s46, {i*2048}\nbuffer_store_dwordx4 v[{96+4*i}:{99+4*i}], v47, s[16:19], s47 offen {os.environ.get('K0STF','sc1')}")
    LK=k.lab("V"); LE=k.lab("EPI")
    def gemm(swap):
        D=4
        def rd(s):
            b=48+8*(s%D)
            e(f"ds_read_b64_tr_b16 v[{b}:{b+1}], v44 offset:{s*2048}")
            e(f"ds_read_b64_tr_b16 v[{b+2}:{b+3}], v44 offset:{s*2048+256}")
            e(f"ds_read_b128 v[{b+4}:{b+7}], v45 offset:{s*64}")
        for s in range(D-1): rd(s)
        for s in range(16):
            if s+D-1<16: rd(s+D-1)
            left=min(D-1,15-s)
            e(f"s_waitcnt lgkmcnt({3*left})")
            b=48+8*(s%D)
            c = "0" if s==0 else "v[40:43]"
            if not swap: e(f"v_mfma_f32_16x16x32_bf16 v[40:43], v[{b}:{b+3}], v[{b+4}:{b+7}], {c}")
            else:        e(f"v_mfma_f32_16x16x32_bf16 v[40:43], v[{b+4}:{b+7}], v[{b}:{b+3}], {c}")
        LR=k.lab("RED");
        e(f"s_lshl_b32 s45, s41, 10\ns_add_u32 s45, s45, {RED}\nv_add_u32 v46, s45, v3")
        k.nop(4)
        e(f"s_cmp_eq_u32 s42, 0\ns_cbranch_scc1 {LR}")
        e("ds_write_b128 v46, v[40:43]\ns_waitcnt lgkmcnt(0)\ns_barrier")
        e(f"s_branch {LE}")
        e(f"{LR}:")
        e("s_barrier\nds_read_b128 v[48:51], v46\ns_waitcnt lgkmcnt(0)")
        for i in range(4): e(f"v_add_f32 v{40+i}, v{40+i}, v{48+i}")
    e(f"s_cmp_eq_u32 s43, 1\ns_cbranch_scc1 {LK} ; @alt")
    gemm(False)
    e("v_bfe_u32 v64, v7, 2, 1\nv_lshrrev_b32 v65, 3, v7\nv_and_b32 v66, 3, v7")
    e("v_lshl_add_u32 v66, v64, 3, v66\nv_lshl_add_u32 v66, v65, 2, v66\ns_and_b32 s44, s32, 1\ns_lshl_b32 s44, s44, 4\nv_add_u32 v66, s44, v66")
    e("v_lshlrev_b32 v67, 6, v66")
    e("v_lshrrev_b32 v68, 1, v6\nv_lshlrev_b32 v68, 1, v68\nv_add_u32 v68, s41, v68\nv_bfe_u32 v65, v66, 2, 2\nv_xor_b32 v68, v68, v65")
    e("v_lshl_add_u32 v67, v68, 4, v67\nv_and_b32 v68, 1, v6\nv_lshl_add_u32 v67, v68, 3, v67")
    e("s_lshr_b32 s44, s32, 1\ns_lshl_b32 s44, s44, 12")
    e("v_cvt_pk_bf16_f32 v40, v40, v41\nv_cvt_pk_bf16_f32 v41, v42, v43")
    e("buffer_store_dwordx2 v[40:41], v67, s[20:23], s44 offen")
    e(f"s_branch {LE}")
    e(f"{LK}:")
    gemm(True)
    e("v_lshrrev_b32 v65, 2, v7\nv_and_b32 v66, 3, v7\nv_lshl_add_u32 v66, v65, 3, v66\ns_lshl_b32 s44, s41, 2\nv_add_u32 v66, s44, v66")
    e("v_lshlrev_b32 v67, 6, v66")
    e("v_lshlrev_b32 v65, 1, v65\nv_add_u32 v65, s41, v65\nv_and_b32 v65, 3, v65")
    e("v_lshrrev_b32 v68, 1, v6\ns_and_b32 s44, s32, 1\ns_lshl_b32 s44, s44, 1\nv_add_u32 v68, s44, v68\nv_xor_b32 v65, v68, v65")
    e("v_lshl_add_u32 v67, v65, 4, v67\nv_and_b32 v68, 1, v6\nv_lshl_add_u32 v67, v68, 3, v67")
    e("s_lshr_b32 s44, s32, 1\ns_lshl_b32 s44, s44, 12\ns_add_u32 s44, s44, 2048")
    e("v_cvt_pk_bf16_f32 v40, v40, v41\nv_cvt_pk_bf16_f32 v41, v42, v43")
    e("buffer_store_dwordx2 v[40:41], v67, s[20:23], s44 offen")
    e(f"{LE}:")
    if os.environ.get('K0ST')=='2': k.stamp_mid(1)
    e("s_waitcnt vmcnt(0)")
    k.stamp_end(0)
    e(f"{END}:")
    e("s_endpgm")
    return k
```

```python
from base import *
from gda import *
import os
VAR=os.environ.get('K1VAR','')

QSCALE = (32**-0.5)*1.4426950408889634

def gen_k1():
    k=Kern("k1_q_attn_kernel", 256, 512, 163840, vgpr=224, sgpr=96)
    e=k.e
    END=k.lab("END")
    R=dict(vA=10,vB=8,vW=14,AF=48,W=112,acc=16)
    S=dict(w=33,sA=40,sB=41,wr=42,rd=43,inc=44,wB=46,t=47)
    SS=48; KF=80; V0=88; V1=92; P=96; Q=144; O=152; Lr=168; SEL=172; AK=176; AV0=178; AV1=179; VO=180; VCR=181; VWD=182
    ONES=184; CSV=188; WDR=196; CSACC=16; CSF=104
    BBASE=98304; QX=65536; CST=98304; CSS=CST+8*7168; DUM=CSS+1792+256
    e(f"s_cmp_ge_u32 s2, 256\ns_cbranch_scc1 {END}")
    k.stamp_begin()
    k.load_ptr(28,'ws'); k.load_ptr(20,'wg'); k.load_ptr(22,'wu'); k.load_ptr(48,'wo'); k.load_ptr(52,'wd')
    e("v_lshrrev_b32 v1, 6, v0\nv_and_b32 v2, 63, v0")
    e("s_and_b32 s30, s2, 7\ns_lshr_b32 s31, s2, 3")
    if os.environ.get('K1MAP','42')=='81':
        e("s_and_b32 s32, s31, 1\ns_lshl_b32 s30, s30, 1\ns_add_u32 s34, s30, s32")
        e("s_lshr_b32 s35, s31, 1")
    else:
        e("s_lshr_b32 s32, s30, 1\ns_lshl_b32 s32, s32, 2\ns_and_b32 s34, s31, 3\ns_add_u32 s34, s34, s32")
        e("s_and_b32 s32, s30, 1\ns_lshl_b32 s32, s32, 3\ns_lshr_b32 s35, s31, 2\ns_add_u32 s35, s35, s32")
    e("v_readfirstlane_b32 s58, v1")
    e("v_lshlrev_b32 v3, 4, v2")
    e("s_and_b32 s33, s58, 3")
    e("s_lshl_b32 s37, s35, 7")
    e("s_lshl_b32 s38, s33, 13")
    MID=[k.lab(f"MID{c}") for c in range(8)]; LMD=k.lab("MD"); LG1=k.lab("G1"); LX=k.lab("X")
    WARM=[k.lab(f"W{c}") for c in range(10)]
    warm_n=[0]
    def icache_warm():
        if not os.environ.get('WARM'): return
        n=warm_n[0]; warm_n[0]+=1
        for rnd in range(2):
            B=f"WB{n}_{rnd}_{k.name}"
            e(f"s_add_u32 s30, s58, {8*rnd}\ns_mov_b32 s31, {2*n+rnd}")
            for c in range(8*rnd, min(8*rnd+8,10)):
                e(f"s_cmp_eq_u32 s30, {c}\ns_cbranch_scc1 {WARM[c]}")
            e(f"{B}:")
    def pad(c):
        if not os.environ.get('WARM'): return
        e(f"{WARM[c]}:")
        for q in range(3):
            e(f"s_cmp_eq_u32 s31, {q}\ns_cbranch_scc1 WB{q//2}_{q%2}_{k.name}")
        e(f"s_branch WB1_1_{k.name}")
    def attn_setup():
        e("v_and_b32 v4, 31, v2\nv_bfe_u32 v5, v2, 2, 2\nv_lshrrev_b32 v6, 5, v2\nv_xor_b32 v5, v5, v6")
        e(f"v_lshlrev_b32 v4, 6, v4\nv_lshl_add_u32 v{AK}, v5, 4, v4\nv_xor_b32 v5, 2, v5\nv_lshl_add_u32 v{AK+1}, v5, 4, v4")
        e(f"v_mov_b32 v{AV0}, v{AK}\nv_mov_b32 v{AV1}, v{AK+1}")
        e("v_bfe_u32 v4, v2, 2, 1\nv_bfe_u32 v5, v2, 4, 1\nv_xor_b32 v4, v4, v5\nv_and_b32 v5, 3, v2\nv_or_b32 v4, v4, v5")
        e("v_mov_b32 v5, 0x3f803f80\nv_cmp_eq_u32 vcc, 0, v4\ns_nop 1")
        e(f"v_cndmask_b32 v{SEL}, 0, v5, vcc")
        for i in range(1,4): e(f"v_mov_b32 v{SEL+i}, v{SEL}")
        e(f"s_lshl_b32 s47, s34, 2\ns_add_u32 s47, s47, s33\ns_lshl_b32 s47, s47, 6\ns_lshr_b32 s30, s58, 2\ns_lshl_b32 s31, s35, 1\ns_add_u32 s30, s30, s31\ns_lshl_b32 s30, s30, 1\ns_add_u32 s47, s47, s30\ns_lshl_b32 s47, s47, 10")
        e(f"v_add_u32 v{VO}, s47, v3")
        for i in range(16): e(f"v_mov_b32 v{O+i}, 0")
        for i in range(4): e(f"v_mov_b32 v{Lr+i}, 0")
        e("s_and_b32 s30, s2, 3\ns_lshl_b32 s30, s30, 8\ns_lshl_b32 s31, s33, 6\ns_add_u32 s30, s30, s31\ns_mul_i32 s30, s30, 7168")
        e("s_bfe_u32 s31, s2, 0x50002\ns_mul_i32 s31, s31, 224\ns_add_u32 s30, s30, s31")
        for i in range(7):
            e(f"v_add_u32 v5, {64*i}, v2\nv_mul_u32_u24 v6, 4682, v5\nv_lshrrev_b32 v6, 16, v6\nv_mul_u32_u24 v7, 14, v6\nv_sub_u32 v7, v5, v7")
            e(f"v_mul_u32_u24 v6, 7168, v6\nv_lshl_add_u32 v6, v7, 4, v6\nv_add_u32 v{CSV+i}, s30, v6")
        e(f"s_mul_i32 s56, s33, 7168\ns_add_u32 s56, s56, {CST}")
        e(f"v_lshrrev_b32 v5, 2, v2\nv_mul_u32_u24 v5, 224, v5\nv_and_b32 v6, 3, v2\nv_lshl_add_u32 v5, v6, 3, v5\nv_add_u32 v{VCR}, s56, v5")
        for i in range(4): e(f"v_mov_b32 v{ONES+i}, 0x3f803f80")
        e("s_lshr_b32 s62, s2, 3\ns_lshl_b32 s62, s62, 16\ns_lshl_b32 s63, s33, 14\ns_add_u32 s62, s62, s63")
        e("s_lshl_b32 s63, s2, 2\ns_add_u32 s63, s63, s33\ns_mul_i32 s63, s63, 7")
        e(f"v_lshrrev_b32 v5, 3, v2\ns_mov_b32 s30, 458752\nv_mul_lo_u32 v{VWD}, v5, s30")
    g=GDA(k,R,S,4,8,8,16,True,8192,False,base=BBASE)
    LCONS=k.lab("CONS"); LJ=k.lab("JOIN")
    e(f"s_cmp_lt_u32 s58, 4\ns_cbranch_scc1 {LCONS} ; @alt")
    def kv_dma(c):
        for gi in range(2):
            e(f"s_add_u32 s47, s38, {c*32768+gi*4096}")
            e(f"s_add_u32 m0, s38, {(c%3)*32768+gi*4096}\ns_nop 0")
            for i in range(4):
                e(f"buffer_load_dwordx4 v3, s[12:15], s47 offen offset:{i*1024} lds")
    e("s_lshl_b32 s36, s35, 17")
    g.setup_loader(2, 60, 2048, 36)
    e("s_waitcnt lgkmcnt(0)")
    k.srd(8, 2*MB, src=28, add=WS_WQB)
    k.srd(12, 64*4096, src=28, add=WS_KV); k.srd(16, 4*MB, src=28, add=WS_O)
    g.loader(39, hooks={12:(lambda:kv_dma(0),8)}, after_first=lambda:(attn_setup(),icache_warm()))
    e("s_waitcnt vmcnt(0)\ns_barrier")
    e(f"s_lshl_b32 s47, s33, 11\ns_add_u32 s47, s47, {QX}\nv_add_u32 v4, s47, v3")
    e(f"ds_read_b128 v[{Q}:{Q+3}], v4\nds_read_b128 v[{Q+4}:{Q+7}], v4 offset:1024")
    kv_dma(1)
    e(f"s_branch {LJ}")
    e(f"{LCONS}:")
    e(f"s_lshl_b32 s36, s34, 2\ns_add_u32 s36, s36, s33\ns_lshl_b32 s36, s36, 16")
    g.setup_consumer(2, 60, 36)
    e("s_waitcnt lgkmcnt(0)")
    k.srd(4, 4*MB, src=28, add=WS_XN)
    g.a_prologue()
    attn_setup()
    icache_warm()
    k.srd(12, 64*4096, src=28, add=WS_KV); k.srd(16, 4*MB, src=28, add=WS_O)
    e("s_cmp_ge_u32 s2, 128\ns_cselect_b32 s20, s22, s20\ns_cselect_b32 s21, s23, s21")
    k.srd(20, 3584*1024*2); k.srd(48, 2*MB); k.srd(52, 3584*1024*2); k.srd(72, 3584*2048, src=28, add=WS_WDB)
    k.srd(24, 4*7168*4, src=28, add=WS_CS)
    g.consumer(39, stamp=(1 if os.environ.get('K1ST')=='1' else None))
    if os.environ.get('K1ST')=='2': k.stamp_mid(1)
    e(f"v_mov_b32 v60, {hex(f2u(QSCALE))}")
    k.nop(12)
    for i in range(32): e(f"v_mul_f32 v{R['acc']+i}, v{R['acc']+i}, v60")
    for i in range(8): e(f"v_cvt_pk_bf16_f32 v{Q+i}, v{R['acc']+2*i}, v{R['acc']+2*i+1}")
    for i in range(8): e(f"v_cvt_pk_bf16_f32 v{64+i}, v{R['acc']+16+2*i}, v{R['acc']+16+2*i+1}")
    e(f"s_lshl_b32 s47, s33, 11\ns_add_u32 s47, s47, {QX}\nv_add_u32 v4, s47, v3")
    e(f"ds_write_b128 v4, v[64:67]\nds_write_b128 v4, v[68:71] offset:1024")
    e("s_waitcnt lgkmcnt(0)\ns_barrier")
    e(f"{LJ}:")
    if not os.environ.get('K1W'): k.stamp_mid(0)
    def rdK(tl):
        for m in range(2): e(f"ds_read_b128 v[{KF+4*m}:{KF+4*m+3}], v{AK+m} offset:{tl*4096}")
    def rdV0(tl): e(f"ds_read_b128 v[{V0}:{V0+3}], v{AV0} offset:{tl*4096+2048}")
    def rdV1(tl): e(f"ds_read_b128 v[{V1}:{V1+3}], v{AV1} offset:{tl*4096+2048}")
    rdK(0); rdV0(0)
    for i in range(4): e(f"v_mov_b32 v{P+4+i}, 0\nv_mov_b32 v{V1+i}, 0")
    e("s_waitcnt lgkmcnt(0)")
    def mf(d,a,b,c=None):
        cs = c if c else f"v[{d}:{d+15}]"
        e(f"v_mfma_f32_32x32x16_bf16 v[{d}:{d+15}], v[{a}:{a+3}], v[{b}:{b+3}], {cs}")
    def rs(b): e(f"v_mfma_f32_16x16x32_bf16 v[{Lr}:{Lr+3}], v[{SEL}:{SEL+3}], v[{b}:{b+3}], v[{Lr}:{Lr+3}]")
    mf(SS,KF,Q,"0"); mf(SS,KF+4,Q+4)
    rdK(1)
    e("s_waitcnt lgkmcnt(0)")
    k.nop(10)
    PAT="W3 E0 E1 PV1p RV1 E2 E3 C0 E4 W2 QK0 E5 C1 E6 E7 RS1p C2 E8 QK1 RK C3 E9 E10 E11 W3 PV0 RV0 C4 E12 E13 C5 RS0 E14 E15 C6 C7".split()
    def slot(tl):
        par=tl&1
        Sc=SS+16*par; Sn=SS+16*(1-par)
        if 'tog' in VAR: e(f"s_setprio {par}")
        for t in PAT:
            if t[0]=='E': i=int(t[1:]); e(f"v_exp_f32 v{Sc+i}, v{Sc+i}")
            elif t[0]=='C': i=int(t[1:]); e(f"v_cvt_pk_bf16_f32 v{P+i}, v{Sc+2*i}, v{Sc+2*i+1}")
            elif t[0]=='W':
                if 'nowait' not in VAR: e(f"s_waitcnt lgkmcnt({t[1]})")
            elif t=='QK0': mf(Sn,KF,Q,"0")
            elif t=='QK1': mf(Sn,KF+4,Q+4)
            elif t=='PV0': mf(O,V0,P)
            elif t=='PV1p': mf(O,V1,P+4)
            elif t=='RS0': rs(P)
            elif t=='RS1p': rs(P+4)
            elif 'noread' in VAR: pass
            elif t=='RV1': rdV1(tl)
            elif t=='RK': rdK((tl+2)&7)
            elif t=='RV0': rdV0((tl+1)&7)
    LT0=k.lab("T0"); LT6=k.lab("T6")
    if 'sprio' in VAR:
        LP=k.lab("P"); e(f"s_cmp_lt_u32 s58, 4\ns_cbranch_scc1 {LP}\ns_setprio 1\n{LP}:")
    e("s_mov_b32 s39, 0\ns_mov_b32 s60, 0")
    e(f"s_branch {LT0}")
    e(f"{LT6}:")
    e(f"v_add_u32 v{AK}, s59, v{AK}\nv_add_u32 v{AK+1}, s59, v{AK+1}")
    slot(6)
    e(f"v_add_u32 v{AV0}, s59, v{AV0}")
    slot(7)
    e(f"v_add_u32 v{AV1}, s59, v{AV1}")
    e(f"s_cmp_eq_u32 s39, 8\ns_cbranch_scc1 {LX} ; @exit")
    e(f"{LT0}:")
    slot(0); slot(1)
    LMR=k.lab("MR")
    e(f"s_cmp_lt_u32 s58, 4\ns_cbranch_scc1 {LMD} ; @alt")
    e(f"{LMR}:")
    for tl in range(2,6): slot(tl)
    e("s_mov_b32 s59, 0xffff0000\ns_cmp_eq_u32 s60, 2\ns_cselect_b32 s59, s59, 0x8000\ns_add_u32 s61, s60, 2\ns_add_u32 s60, s60, 1\ns_cmp_eq_u32 s60, 3\ns_cselect_b32 s60, 0, s60")
    e(f"s_cmp_ge_u32 s58, 4\ns_cbranch_scc1 {LG1} ; @g1")
    LNB=k.lab("NB")
    e(f"s_cmp_eq_u32 s39, 7\ns_cbranch_scc1 {LNB}")
    e("s_barrier")
    e(f"{LNB}:")
    e(f"s_add_u32 s39, s39, 1\ns_branch {LT6}")
    pad(8)
    e(f"{LG1}:")
    LG1c=k.lab("G1c")
    e(f"s_cmp_eq_u32 s39, 7\ns_cbranch_scc1 {LG1c}")
    e("s_waitcnt vmcnt(0)\ns_barrier")
    e(f"s_cmp_ge_u32 s39, 6\ns_cbranch_scc1 {LG1c}")
    e("s_add_u32 s30, s39, 2\ns_lshl_b32 s31, s30, 15\ns_sub_u32 s30, s61, 3\ns_cmp_ge_u32 s61, 3\ns_cselect_b32 s30, s30, s61\ns_lshl_b32 s30, s30, 15\ns_add_u32 s30, s30, s38\ns_add_u32 s31, s31, s38")
    for gi in range(2):
        e(f"s_add_u32 m0, s30, {gi*4096}\ns_add_u32 s47, s31, {gi*4096}")
        for i in range(4):
            e(f"buffer_load_dwordx4 v3, s[12:15], s47 offen offset:{i*1024} lds")
    e(f"{LG1c}:")
    e(f"s_add_u32 s39, s39, 1\ns_branch {LT6}")
    def cs_dma(r):
        if 'nocs' in VAR: return
        e(f"s_mov_b32 s30, {r*32*7168}")
        for i in range(7):
            e(f"s_add_u32 m0, s56, {i*1024+r*28672}\ns_nop 0")
            e(f"buffer_load_dwordx4 v{CSV+i}, s[20:23], s30 offen lds")
    def cs_mfma(r):
        for v in range(7):
            for t in range(2):
                e(f"ds_read_b64_tr_b16 v[{CSF+4*v+2*t}:{CSF+4*v+2*t+1}], v{VCR} offset:{v*32+t*3584+r*28672}")
        e("s_waitcnt lgkmcnt(0)")
        for v in range(7):
            a=CSACC+4*v
            c="0" if r==0 else f"v[{a}:{a+3}]"
            e(f"v_mfma_f32_16x16x32_bf16 v[{a}:{a+3}], v[{CSF+4*v}:{CSF+4*v+3}], v[{ONES}:{ONES+3}], {c}")
    def prefetch(srd, base_s, first, n):
        if 'nowo' in VAR: return
        e(f"s_mov_b32 m0, {DUM}")
        for i in range(n):
            e(f"s_add_u32 s47, s{base_s}, {(first+i)*1024}")
            e(f"buffer_load_dwordx4 v3, s[{srd}:{srd+3}], s47 offen lds")
    side='noside' not in VAR
    SCHED=os.environ.get('K1SCHED','spread')
    pad(2)
    e(f"{LMD}:")
    hooks={'early':(0,1,3,4,5,6,7),'spread':(0,2,4,5,6,7)}.get(SCHED,(1,3,4,5,6,7))
    if side:
        for c in hooks:
            e(f"s_cmp_eq_u32 s39, {c}\ns_cbranch_scc1 {MID[c]}")
    e(f"s_branch {LMR}")
    def wd_loads():
        if 'nowd' in VAR: return
        e("s_lshl_b32 s30, s63, 10")
        for i in range(7):
            e(f"buffer_load_dwordx4 v[{WDR+4*i}:{WDR+4*i+3}], v3, s[52:55], s30 offen" + (f" offset:{(i&3)*1024}" if i&3 else ""))
            if i==3: e("s_add_u32 s30, s30, 4096")
    def wd_stores():
        if 'nowd' in VAR: return
        e("v_and_b32 v5, 7, v2")
        for i in range(7):
            e(f"s_add_u32 s30, s63, {i}\ns_lshr_b32 s31, s30, 1\ns_and_b32 s30, s30, 1\ns_mul_i32 s30, s30, {8*458752}\ns_bfe_u32 s47, s31, 0x10001\ns_lshl_b32 s47, s47, 2\ns_lshl_b32 s31, s31, 7\ns_add_u32 s30, s30, s31")
            e(f"v_xor_b32 v4, s47, v5\nv_lshl_add_u32 v4, v4, 4, v{VWD}")
            e(f"buffer_store_dwordx4 v[{WDR+4*i}:{WDR+4*i+3}], v4, s[72:75], s30 offen {os.environ.get('WDST','sc1')}")
    def cs_partials():
        e(f"v_lshrrev_b32 v4, 4, v2\nv_lshlrev_b32 v4, 4, v4\ns_mul_i32 s30, s33, 448\ns_add_u32 s30, s30, {CSS}\nv_add_u32 v4, s30, v4")
        e("v_and_b32 v5, 15, v2\nv_cmp_eq_u32 vcc, 0, v5\ns_and_saveexec_b64 s[66:67], vcc")
        k.nop(2)
        for v in range(7): e(f"ds_write_b128 v4, v[{CSACC+4*v}:{CSACC+4*v+3}] offset:{v*64}")
        e("s_mov_b64 exec, s[66:67]\ns_waitcnt lgkmcnt(0)")
    def cs_final():
        LS=k.lab("CSS")
        e("v_cmp_gt_u32 vcc, 112, v0\ns_and_saveexec_b64 s[66:67], vcc")
        e(f"s_cbranch_execz {LS}")
        e(f"v_lshlrev_b32 v4, 2, v0\nv_add_u32 v4, {CSS}, v4")
        for j in range(4): e(f"ds_read_b32 v{16+j}, v4 offset:{j*448}")
        e("s_and_b32 s30, s2, 3\ns_mul_i32 s30, s30, 28672\ns_lshr_b32 s31, s2, 7\ns_mul_i32 s31, s31, 14336\ns_add_u32 s30, s30, s31")
        e("s_bfe_u32 s31, s2, 0x50002\ns_mul_i32 s31, s31, 448\ns_add_u32 s30, s30, s31")
        e("v_lshlrev_b32 v4, 2, v0\ns_waitcnt lgkmcnt(0)")
        e("v_add_f32 v16, v16, v17\nv_add_f32 v18, v18, v19\nv_add_f32 v16, v16, v18")
        e("buffer_store_dword v16, v4, s[24:27], s30 offen")
        e(f"{LS}:\ns_mov_b64 exec, s[66:67]")
    for c in hooks:
        if not side: break
        pad({0:0,1:1,2:1,3:3,4:4,5:5,6:6,7:7}[c])
        e(f"{MID[c]}:")
        if SCHED=='spread':
            if c==0: cs_dma(0)
            if c==2: e("s_waitcnt vmcnt(0)"); cs_mfma(0); cs_dma(1)
            if c==4: e("s_waitcnt vmcnt(0)"); cs_mfma(1); cs_partials(); wd_loads()
            if c==5: cs_final(); prefetch(48,62,0,8)
            if c==6: e("s_waitcnt vmcnt(8)"); wd_stores()
            if c==7:
                prefetch(48,62,8,8)
                k.code_prefetch("k2_wo_kernel", 4864, 4, 132, 76)
        elif SCHED=='early':
            if c==0: cs_dma(0)
            if c==1: wd_loads()
            if c==3: e("s_waitcnt vmcnt(7)"); cs_mfma(0); cs_dma(1)
            if c==4: e("s_waitcnt vmcnt(7)"); wd_stores()
            if c==5: prefetch(48,62,0,8)
            if c==6: e("s_waitcnt vmcnt(15)"); cs_mfma(1); cs_partials()
            if c==7:
                cs_final(); prefetch(48,62,8,8)
                k.code_prefetch("k2_wo_kernel", 4864, 4, 132, 76)
        else:
            if c==1: cs_dma(0)
            if c==3: e("s_waitcnt vmcnt(0)"); cs_mfma(0); cs_dma(1)
            if c==4: wd_loads()
            if c==5: e("s_waitcnt vmcnt(7)"); cs_mfma(1); cs_partials()
            if c==6:
                e("s_waitcnt vmcnt(0)"); wd_stores(); cs_final(); prefetch(48,62,0,8)
            if c==7:
                prefetch(48,62,8,8)
                k.code_prefetch("k2_wo_kernel", 4864, 4, 132, 76)
        e(f"s_branch {LMR}")
    pad(9)
    e(f"{LX}:")
    if os.environ.get('K1ST') not in ('1','2') and not os.environ.get('K1W'): k.stamp_mid(1)
    e("s_waitcnt lgkmcnt(0)")
    mf(O,V1,P+4); rs(P+4)
    k.nop(12)
    LFB=k.lab("FB"); LFIN=k.lab("FIN")
    e(f"v_mov_b32 v8, 0")
    for i in range(16): e(f"v_fmac_f32 v8, 0, v{O+i}")
    e(f"v_mov_b32 v9, {hex(f2u(2.0**-60))}\nv_mov_b32 v10, {hex(f2u(2.0**60))}")
    e(f"v_cmp_o_f32 s[64:65], v8, v8")
    e(f"v_cmp_le_f32 s[66:67], v9, v{Lr}")
    e(f"v_cmp_ge_f32 s[70:71], v10, v{Lr}")
    e("s_and_b64 s[64:65], s[64:65], s[66:67]\ns_and_b64 s[64:65], s[64:65], s[70:71]")
    e(f"s_cmp_eq_u64 s[64:65], exec\ns_cbranch_scc0 {LFB}")
    e(f"{LFIN}:")
    e(f"v_rcp_f32 v8, v{Lr}")
    e("s_nop 0")
    for i in range(16): e(f"v_mul_f32 v{O+i}, v{O+i}, v8")
    for i in range(8): e(f"v_cvt_pk_bf16_f32 v{16+i}, v{O+2*i}, v{O+2*i+1}")
    for j in range(2):
        e(f"buffer_store_dwordx4 v[{16+4*j}:{19+4*j}], v{VO}, s[16:19], 0 offen offset:{j*1024} {os.environ.get('K1STF','sc1')}")
    e("s_waitcnt vmcnt(0)")
    k.stamp_end(1)
    e("s_endpgm")
    e(f"{LFB}:")
    e("s_waitcnt vmcnt(0)")
    e("v_and_b32 v8, 31, v2\nv_bfe_u32 v9, v2, 2, 2\nv_lshrrev_b32 v10, 5, v2\nv_xor_b32 v9, v9, v10")
    e(f"v_lshlrev_b32 v8, 6, v8\nv_lshl_add_u32 v{AK}, v9, 4, v8\nv_xor_b32 v9, 2, v9\nv_lshl_add_u32 v{AK+1}, v9, 4, v8")
    e("v_mov_b32 v8, 0xff800000")
    F1=k.lab("F1"); F2=k.lab("F2")
    e(f"s_mov_b32 s47, 0\n{F1}:")
    for m in range(2): e(f"buffer_load_dwordx4 v[{KF+4*m}:{KF+4*m+3}], v{AK+m}, s[12:15], s47 offen")
    e("s_waitcnt vmcnt(0)")
    mf(SS,KF,Q,"0"); mf(SS,KF+4,Q+4)
    k.nop(12)
    for i in range(16): e(f"v_max_f32 v8, v8, v{SS+i}")
    e(f"s_add_u32 s47, s47, 4096\ns_cmp_lt_u32 s47, {64*4096}\ns_cbranch_scc1 {F1}")
    e("v_mov_b32 v10, v8\ns_nop 1\nv_permlane32_swap_b32 v8, v10\ns_nop 1\nv_max_f32 v8, v8, v10")
    for i in range(16): e(f"v_mov_b32 v{O+i}, 0")
    for i in range(4): e(f"v_mov_b32 v{Lr+i}, 0")
    e(f"s_mov_b32 s47, 0\n{F2}:")
    for m in range(2): e(f"buffer_load_dwordx4 v[{KF+4*m}:{KF+4*m+3}], v{AK+m}, s[12:15], s47 offen")
    e(f"buffer_load_dwordx4 v[{V0}:{V0+3}], v{AK}, s[12:15], s47 offen offset:2048")
    e(f"buffer_load_dwordx4 v[{V1}:{V1+3}], v{AK+1}, s[12:15], s47 offen offset:2048")
    e("s_waitcnt vmcnt(0)")
    mf(SS,KF,Q,"0"); mf(SS,KF+4,Q+4)
    k.nop(12)
    for i in range(16): e(f"v_sub_f32 v{SS+i}, v{SS+i}, v8")
    for i in range(16): e(f"v_exp_f32 v{SS+i}, v{SS+i}")
    e("s_nop 0")
    for i in range(8): e(f"v_cvt_pk_bf16_f32 v{P+i}, v{SS+2*i}, v{SS+2*i+1}")
    e("s_nop 1")
    mf(O,V0,P); mf(O,V1,P+4); rs(P); rs(P+4)
    k.nop(12)
    e(f"s_add_u32 s47, s47, 4096\ns_cmp_lt_u32 s47, {64*4096}\ns_cbranch_scc1 {F2}")
    e(f"s_branch {LFIN}")
    e(f"{END}:")
    e("s_endpgm")
    return k
```

```python
from base import *
import os

def dpp_reduce(k, regs):
    seq=["row_shr:1 row_mask:0xf bank_mask:0xf","row_shr:2 row_mask:0xf bank_mask:0xf",
         "row_shr:4 row_mask:0xf bank_mask:0xf","row_shr:8 row_mask:0xf bank_mask:0xf",
         "row_bcast:15 row_mask:0xa bank_mask:0xf","row_bcast:31 row_mask:0xc bank_mask:0xf"]
    for s in seq:
        k.nop(max(0,2-(len(regs)-1)))
        for r in regs:
            k.e(f"v_add_f32_dpp v{r}, v{r}, v{r} {s}")

def gen_k0():
    XL=65536; XLS=2080; RED=XL+16*XLS; DUMMY=RED+2048
    k=Kern("k0_ln_kv_kernel", 256, 256, DUMMY+4096, vgpr=140, sgpr=64)
    e=k.e
    END=k.lab("END")
    e(f"s_cmp_ge_u32 s2, 256\ns_cbranch_scc1 {END}")
    k.stamp_begin()
    k.load_ptr(4,'x'); k.load_ptr(8,'wk'); k.load_ptr(12,'wv'); k.load_ptr(24,'wq'); k.load_ptr(28,'ws')
    k.code_prefetch_all("k0_ln_kv_kernel", 124, 124, 60)
    k.kd_prefetch(128, 129, 60)
    e("v_lshrrev_b32 v1, 6, v0\nv_and_b32 v2, 63, v0")
    e("s_and_b32 s40, s2, 7\ns_lshr_b32 s41, s2, 3\ns_lshl_b32 s40, s40, 4\ns_lshr_b32 s42, s41, 1\ns_add_u32 s32, s40, s42\ns_and_b32 s43, s41, 1")
    e("v_readfirstlane_b32 s33, v1")
    e("v_lshlrev_b32 v3, 4, v2")
    e("s_lshl_b32 s40, s32, 4\ns_lshl_b32 s41, s33, 2\ns_add_u32 s40, s40, s41\ns_lshl_b32 s34, s40, 11")
    e("s_add_u32 s44, s34, 4096")
    e("s_waitcnt lgkmcnt(0)")
    k.srd(4, 2048*2048)
    for r in range(4):
        so = "s34" if r<2 else "s44"
        for j in range(2):
            e(f"buffer_load_dwordx4 v[{8+8*r+4*j}:{11+8*r+4*j}], v3, s[4:7], {so} offen offset:{(r&1)*2048+1024*j}")
    e("v_lshrrev_b32 v4, 2, v2\nv_lshlrev_b32 v4, 6, v4\nv_lshrrev_b32 v5, 5, v2\nv_lshlrev_b32 v5, 1, v5\nv_and_b32 v6, 3, v2\nv_xor_b32 v5, v5, v6\nv_lshl_add_u32 v4, v5, 4, v4")
    e("s_cmp_eq_u32 s43, 1\ns_cselect_b32 s8, s12, s8\ns_cselect_b32 s9, s13, s9")
    k.srd(8, 65536); k.srd(24, 2*MB)
    k.srd(16, 4*MB, src=28, add=WS_XN) ; k.srd(20, 64*4096, src=28, add=WS_KV); k.srd(56, 2*MB, src=28, add=WS_WQB)
    e("s_lshl_b32 s35, s33, 14")
    for g in range(4):
        e(f"s_add_u32 s36, s35, {g*4096}")
        e(f"s_mov_b32 m0, s36\ns_nop 0")
        for i in range(4):
            e(f"buffer_load_dwordx4 v4, s[8:11], s36 offen offset:{1024*i} lds")
    LIN=os.environ.get('REPACK','str')=='lin'
    if LIN:
        e("s_lshl_b32 s40, s2, 2\ns_add_u32 s40, s40, s33\ns_lshl_b32 s53, s40, 11\ns_lshl_b32 s52, s40, 7\ns_bfe_u32 s41, s40, 0x10001\ns_lshl_b32 s41, s41, 2")
        e("buffer_load_dwordx4 v[116:119], v3, s[24:27], s53 offen\nbuffer_load_dwordx4 v[120:123], v3, s[24:27], s53 offen offset:1024")
        e("v_lshrrev_b32 v114, 3, v2\nv_lshlrev_b32 v114, 17, v114\nv_and_b32 v115, 7, v2\nv_xor_b32 v115, s41, v115\nv_lshl_add_u32 v130, v115, 4, v114")
        e("s_add_u32 s54, s52, 0x100000")
    else:
        e("s_lshl_b32 s40, s2, 2\ns_add_u32 s40, s40, s33\ns_and_b32 s41, s40, 63\ns_lshl_b32 s41, s41, 4\ns_lshr_b32 s42, s40, 6\ns_lshl_b32 s42, s42, 7\ns_lshl_b32 s52, s40, 11")
        e("v_lshrrev_b32 v112, 3, v2\nv_add_u32 v112, s41, v112\nv_lshlrev_b32 v112, 11, v112\nv_add_u32 v112, s42, v112")
        e("v_bfe_u32 v113, v2, 4, 1\nv_lshlrev_b32 v113, 2, v113\nv_and_b32 v114, 7, v2\nv_xor_b32 v113, v113, v114\nv_lshl_add_u32 v112, v113, 4, v112")
        e("s_mov_b32 s53, 16384")
        e("buffer_load_dwordx4 v[116:119], v112, s[24:27], 0 offen\nbuffer_load_dwordx4 v[120:123], v112, s[24:27], s53 offen")
    e("s_waitcnt vmcnt(18)")
    if os.environ.get('K0ST')=='1': k.stamp_mid(0)
    X=48
    for row in range(4):
        for j in range(8):
            e(f"v_lshlrev_b32 v{X+16*row+2*j}, 16, v{8+8*row+j}")
            e(f"v_and_b32 v{X+1+16*row+2*j}, 0xffff0000, v{8+8*row+j}")
    PA=132
    pr=lambda r: f"v[{r}:{r+1}]"
    def bsel(row):
        return (pr(44+(row&2)), "op_sel_hi:[1,0]" if row%2==0 else "op_sel:[0,1] op_sel_hi:[1,1]")
    for row in range(4):
        b=X+16*row; a=PA+2*row
        e(f"v_pk_add_f32 {pr(a)}, {pr(b)}, {pr(b+2)}")
    for i in range(2,8):
        for row in range(4):
            b=X+16*row; a=PA+2*row
            e(f"v_pk_add_f32 {pr(a)}, {pr(a)}, {pr(b+2*i)}")
    for row in range(4): e(f"v_add_f32 v{40+row}, v{PA+2*row}, v{PA+2*row+1}")
    dpp_reduce(k,[40,41,42,43])
    e(f"v_mov_b32 v112, {hex(f2u(1/1024.))}\nv_mov_b32 v113, {hex(f2u(1e-5))}")
    for row in range(4): e(f"v_readlane_b32 s{48+row}, v{40+row}, 63")
    e("s_nop 0")
    for row in range(4): e(f"v_mul_f32 v{44+row}, s{48+row}, v112")
    for row in range(4):
        b=X+16*row; src,sel=bsel(row)
        for i in range(8): e(f"v_pk_add_f32 {pr(b+2*i)}, {pr(b+2*i)}, {src} {sel} neg_lo:[0,1] neg_hi:[0,1]")
    for row in range(4):
        b=X+16*row; a=PA+2*row
        e(f"v_pk_mul_f32 {pr(a)}, {pr(b)}, {pr(b)}")
    for i in range(1,8):
        for row in range(4):
            b=X+16*row; a=PA+2*row
            e(f"v_pk_fma_f32 {pr(a)}, {pr(b+2*i)}, {pr(b+2*i)}, {pr(a)}")
    for row in range(4): e(f"v_add_f32 v{40+row}, v{PA+2*row}, v{PA+2*row+1}")
    dpp_reduce(k,[40,41,42,43])
    e("s_nop 0")
    for row in range(4): e(f"v_readlane_b32 s{48+row}, v{40+row}, 63")
    e("s_nop 0")
    for row in range(4): e(f"v_fma_f32 v{44+row}, s{48+row}, v112, v113")
    for row in range(4): e(f"v_rsq_f32 v{44+row}, v{44+row}")
    e("s_nop 0")
    for row in range(4):
        b=X+16*row; src,sel=bsel(row)
        for i in range(8): e(f"v_pk_mul_f32 {pr(b+2*i)}, {pr(b+2*i)}, {src} {sel}")
    for row in range(4):
        b=X+16*row
        for j in range(8): e(f"v_cvt_pk_bf16_f32 v{8+8*row+j}, v{b+2*j}, v{b+2*j+1}")
    e(f"s_lshl_b32 s40, s33, 2\ns_mul_i32 s40, s40, {XLS}\ns_add_u32 s40, s40, {XL}")
    e("v_add_u32 v5, s40, v3")
    for r in range(4):
        e(f"ds_write_b128 v5, v[{8+8*r}:{11+8*r}] offset:{r*XLS}")
        e(f"ds_write_b128 v5, v[{12+8*r}:{15+8*r}] offset:{r*XLS+1024}")
    e("s_and_b32 s41, s33, 1\ns_lshr_b32 s42, s33, 1")
    e("v_lshrrev_b32 v6, 4, v2\nv_and_b32 v7, 15, v2\nv_lshrrev_b32 v44, 2, v7\nv_and_b32 v45, 3, v2")
    e("v_lshl_add_u32 v44, v6, 3, v44\nv_lshlrev_b32 v44, 6, v44")
    e("v_lshrrev_b32 v46, 1, v45\ns_lshl_b32 s45, s41, 1\nv_add_u32 v46, s45, v46")
    e("v_and_b32 v47, 1, v6\nv_lshlrev_b32 v47, 1, v47\nv_xor_b32 v46, v46, v47")
    e("v_lshl_add_u32 v44, v46, 4, v44")
    e("v_and_b32 v47, 1, v45\nv_lshl_add_u32 v44, v47, 3, v44")
    e("s_lshl_b32 s45, s42, 15\nv_add_u32 v44, s45, v44")
    e(f"v_mul_u32_u24 v46, {XLS}, v7\nv_lshl_add_u32 v46, v6, 4, v46\ns_lshl_b32 s45, s42, 10\ns_add_u32 s45, s45, {XL}\nv_add_u32 v45, s45, v46")
    if os.environ.get('K0ST')=='1': k.stamp_mid(1)
    e("s_waitcnt vmcnt(0) lgkmcnt(0)")
    if LIN: e("buffer_store_dwordx4 v[116:119], v130, s[56:59], s52 offen sc1\nbuffer_store_dwordx4 v[120:123], v130, s[56:59], s54 offen sc1")
    else:   e("buffer_store_dwordx4 v[116:119], v3, s[56:59], s52 offen sc1\nbuffer_store_dwordx4 v[120:123], v3, s[56:59], s52 offen offset:1024 sc1")
    e("s_barrier")
    if os.environ.get('K0ST')=='2':
        k.stamp_mid(0); e("s_waitcnt lgkmcnt(0)")
    e(f"s_lshl_b32 s45, s43, 4\ns_lshl_b32 s46, s33, 2\ns_add_u32 s45, s45, s46")
    e(f"v_mul_u32_u24 v46, {XLS}, v7\nv_lshl_add_u32 v46, v6, 4, v46\ns_lshl_b32 s46, s45, 6\ns_add_u32 s46, s46, {XL}\nv_add_u32 v46, s46, v46")
    for i in range(4): e(f"ds_read_b128 v[{96+4*i}:{99+4*i}], v46 offset:{64*i}")
    e("v_lshrrev_b32 v47, 1, v6\nv_lshlrev_b32 v47, 10, v47\nv_and_b32 v112, 1, v6\nv_lshl_add_u32 v47, v112, 9, v47\nv_lshl_add_u32 v47, v7, 4, v47")
    e("s_lshr_b32 s46, s32, 1\ns_lshl_b32 s46, s46, 16\ns_and_b32 s47, s32, 1\ns_lshl_b32 s47, s47, 8\ns_add_u32 s46, s46, s47\ns_lshl_b32 s47, s45, 11\ns_add_u32 s46, s46, s47")
    e("s_waitcnt lgkmcnt(0)")
    for i in range(4):
        e(f"s_add_u32 s47, s46, {i*2048}\nbuffer_store_dwordx4 v[{96+4*i}:{99+4*i}], v47, s[16:19], s47 offen {os.environ.get('K0STF','sc1')}")
    LK=k.lab("V"); LE=k.lab("EPI")
    def gemm(swap):
        D=4
        def rd(s):
            b=48+8*(s%D)
            e(f"ds_read_b64_tr_b16 v[{b}:{b+1}], v44 offset:{s*2048}")
            e(f"ds_read_b64_tr_b16 v[{b+2}:{b+3}], v44 offset:{s*2048+256}")
            e(f"ds_read_b128 v[{b+4}:{b+7}], v45 offset:{s*64}")
        for s in range(D-1): rd(s)
        for s in range(16):
            if s+D-1<16: rd(s+D-1)
            left=min(D-1,15-s)
            e(f"s_waitcnt lgkmcnt({3*left})")
            b=48+8*(s%D)
            c = "0" if s==0 else "v[40:43]"
            if not swap: e(f"v_mfma_f32_16x16x32_bf16 v[40:43], v[{b}:{b+3}], v[{b+4}:{b+7}], {c}")
            else:        e(f"v_mfma_f32_16x16x32_bf16 v[40:43], v[{b+4}:{b+7}], v[{b}:{b+3}], {c}")
        LR=k.lab("RED");
        e(f"s_lshl_b32 s45, s41, 10\ns_add_u32 s45, s45, {RED}\nv_add_u32 v46, s45, v3")
        k.nop(4)
        e(f"s_cmp_eq_u32 s42, 0\ns_cbranch_scc1 {LR}")
        e("ds_write_b128 v46, v[40:43]\ns_waitcnt lgkmcnt(0)\ns_barrier")
        e(f"s_branch {LE}")
        e(f"{LR}:")
        e("s_barrier\nds_read_b128 v[48:51], v46\ns_waitcnt lgkmcnt(0)")
        for i in range(4): e(f"v_add_f32 v{40+i}, v{40+i}, v{48+i}")
    e(f"s_cmp_eq_u32 s43, 1\ns_cbranch_scc1 {LK} ; @alt")
    gemm(False)
    e("v_bfe_u32 v64, v7, 2, 1\nv_lshrrev_b32 v65, 3, v7\nv_and_b32 v66, 3, v7")
    e("v_lshl_add_u32 v66, v64, 3, v66\nv_lshl_add_u32 v66, v65, 2, v66\ns_and_b32 s44, s32, 1\ns_lshl_b32 s44, s44, 4\nv_add_u32 v66, s44, v66")
    e("v_lshlrev_b32 v67, 6, v66")
    e("v_lshrrev_b32 v68, 1, v6\nv_lshlrev_b32 v68, 1, v68\nv_add_u32 v68, s41, v68\nv_bfe_u32 v65, v66, 2, 2\nv_xor_b32 v68, v68, v65")
    e("v_lshl_add_u32 v67, v68, 4, v67\nv_and_b32 v68, 1, v6\nv_lshl_add_u32 v67, v68, 3, v67")
    e("s_lshr_b32 s44, s32, 1\ns_lshl_b32 s44, s44, 12")
    e("v_cvt_pk_bf16_f32 v40, v40, v41\nv_cvt_pk_bf16_f32 v41, v42, v43")
    e("buffer_store_dwordx2 v[40:41], v67, s[20:23], s44 offen")
    e(f"s_branch {LE}")
    e(f"{LK}:")
    gemm(True)
    e("v_lshrrev_b32 v65, 2, v7\nv_and_b32 v66, 3, v7\nv_lshl_add_u32 v66, v65, 3, v66\ns_lshl_b32 s44, s41, 2\nv_add_u32 v66, s44, v66")
    e("v_lshlrev_b32 v67, 6, v66")
    e("v_lshlrev_b32 v65, 1, v65\nv_add_u32 v65, s41, v65\nv_and_b32 v65, 3, v65")
    e("v_lshrrev_b32 v68, 1, v6\ns_and_b32 s44, s32, 1\ns_lshl_b32 s44, s44, 1\nv_add_u32 v68, s44, v68\nv_xor_b32 v65, v68, v65")
    e("v_lshl_add_u32 v67, v65, 4, v67\nv_and_b32 v68, 1, v6\nv_lshl_add_u32 v67, v68, 3, v67")
    e("s_lshr_b32 s44, s32, 1\ns_lshl_b32 s44, s44, 12\ns_add_u32 s44, s44, 2048")
    e("v_cvt_pk_bf16_f32 v40, v40, v41\nv_cvt_pk_bf16_f32 v41, v42, v43")
    e("buffer_store_dwordx2 v[40:41], v67, s[20:23], s44 offen")
    e(f"{LE}:")
    if os.environ.get('K0ST')=='2': k.stamp_mid(1)
    e("s_waitcnt vmcnt(0)")
    k.stamp_end(0)
    e(f"{END}:")
    e("s_endpgm")
    return k
```

```python
from base import *
from gda import *
import os
VAR=os.environ.get('K1VAR','')

QSCALE = (32**-0.5)*1.4426950408889634

def gen_k1():
    k=Kern("k1_q_attn_kernel", 256, 512, 163840, vgpr=224, sgpr=96)
    e=k.e
    END=k.lab("END")
    R=dict(vA=10,vB=8,vW=14,AF=48,W=112,acc=16)
    S=dict(w=33,sA=40,sB=41,wr=42,rd=43,inc=44,wB=46,t=47)
    SS=48; KF=80; V0=88; V1=92; P=96; Q=144; O=152; Lr=168; SEL=172; AK=176; AV0=178; AV1=179; VO=180; VCR=181; VWD=182
    ONES=184; CSV=188; WDR=196; CSACC=16; CSF=104
    BBASE=98304; QX=65536; CST=98304; CSS=CST+8*7168; DUM=CSS+1792+256
    e(f"s_cmp_ge_u32 s2, 256\ns_cbranch_scc1 {END}")
    k.stamp_begin()
    k.load_ptr(28,'ws'); k.load_ptr(20,'wg'); k.load_ptr(22,'wu'); k.load_ptr(48,'wo'); k.load_ptr(52,'wd')
    e("v_lshrrev_b32 v1, 6, v0\nv_and_b32 v2, 63, v0")
    e("s_and_b32 s30, s2, 7\ns_lshr_b32 s31, s2, 3")
    if os.environ.get('K1MAP','42')=='81':
        e("s_and_b32 s32, s31, 1\ns_lshl_b32 s30, s30, 1\ns_add_u32 s34, s30, s32")
        e("s_lshr_b32 s35, s31, 1")
    else:
        e("s_lshr_b32 s32, s30, 1\ns_lshl_b32 s32, s32, 2\ns_and_b32 s34, s31, 3\ns_add_u32 s34, s34, s32")
        e("s_and_b32 s32, s30, 1\ns_lshl_b32 s32, s32, 3\ns_lshr_b32 s35, s31, 2\ns_add_u32 s35, s35, s32")
    e("v_readfirstlane_b32 s58, v1")
    e("v_lshlrev_b32 v3, 4, v2")
    e("s_and_b32 s33, s58, 3")
    e("s_lshl_b32 s37, s35, 7")
    e("s_lshl_b32 s38, s33, 13")
    MID=[k.lab(f"MID{c}") for c in range(8)]; LMD=k.lab("MD"); LG1=k.lab("G1"); LX=k.lab("X")
    WARM=[k.lab(f"W{c}") for c in range(10)]
    warm_n=[0]
    def icache_warm():
        if not os.environ.get('WARM'): return
        n=warm_n[0]; warm_n[0]+=1
        for rnd in range(2):
            B=f"WB{n}_{rnd}_{k.name}"
            e(f"s_add_u32 s30, s58, {8*rnd}\ns_mov_b32 s31, {2*n+rnd}")
            for c in range(8*rnd, min(8*rnd+8,10)):
                e(f"s_cmp_eq_u32 s30, {c}\ns_cbranch_scc1 {WARM[c]}")
            e(f"{B}:")
    def pad(c):
        if not os.environ.get('WARM'): return
        e(f"{WARM[c]}:")
        for q in range(3):
            e(f"s_cmp_eq_u32 s31, {q}\ns_cbranch_scc1 WB{q//2}_{q%2}_{k.name}")
        e(f"s_branch WB1_1_{k.name}")
    LIN=os.environ.get('REPACK','str')=='lin'
    def attn_setup():
        e("v_and_b32 v4, 31, v2\nv_bfe_u32 v5, v2, 2, 2\nv_lshrrev_b32 v6, 5, v2\nv_xor_b32 v5, v5, v6")
        e(f"v_lshlrev_b32 v4, 6, v4\nv_lshl_add_u32 v{AK}, v5, 4, v4\nv_xor_b32 v5, 2, v5\nv_lshl_add_u32 v{AK+1}, v5, 4, v4")
        e(f"v_mov_b32 v{AV0}, v{AK}\nv_mov_b32 v{AV1}, v{AK+1}")
        e("v_bfe_u32 v4, v2, 2, 1\nv_bfe_u32 v5, v2, 4, 1\nv_xor_b32 v4, v4, v5\nv_and_b32 v5, 3, v2\nv_or_b32 v4, v4, v5")
        e("v_mov_b32 v5, 0x3f803f80\nv_cmp_eq_u32 vcc, 0, v4\ns_nop 1")
        e(f"v_cndmask_b32 v{SEL}, 0, v5, vcc")
        for i in range(1,4): e(f"v_mov_b32 v{SEL+i}, v{SEL}")
        e(f"s_lshl_b32 s47, s34, 2\ns_add_u32 s47, s47, s33\ns_lshl_b32 s47, s47, 6\ns_lshr_b32 s30, s58, 2\ns_lshl_b32 s31, s35, 1\ns_add_u32 s30, s30, s31\ns_lshl_b32 s30, s30, 1\ns_add_u32 s47, s47, s30\ns_lshl_b32 s47, s47, 10")
        e(f"v_add_u32 v{VO}, s47, v3")
        for i in range(16): e(f"v_mov_b32 v{O+i}, 0")
        for i in range(4): e(f"v_mov_b32 v{Lr+i}, 0")
        e("s_and_b32 s30, s2, 3\ns_lshl_b32 s30, s30, 8\ns_lshl_b32 s31, s33, 6\ns_add_u32 s30, s30, s31\ns_mul_i32 s30, s30, 7168")
        e("s_bfe_u32 s31, s2, 0x50002\ns_mul_i32 s31, s31, 224\ns_add_u32 s30, s30, s31")
        for i in range(7):
            e(f"v_add_u32 v5, {64*i}, v2\nv_mul_u32_u24 v6, 4682, v5\nv_lshrrev_b32 v6, 16, v6\nv_mul_u32_u24 v7, 14, v6\nv_sub_u32 v7, v5, v7")
            e(f"v_mul_u32_u24 v6, 7168, v6\nv_lshl_add_u32 v6, v7, 4, v6\nv_add_u32 v{CSV+i}, s30, v6")
        e(f"s_mul_i32 s56, s33, 7168\ns_add_u32 s56, s56, {CST}")
        e(f"v_lshrrev_b32 v5, 2, v2\nv_mul_u32_u24 v5, 224, v5\nv_and_b32 v6, 3, v2\nv_lshl_add_u32 v5, v6, 3, v5\nv_add_u32 v{VCR}, s56, v5")
        for i in range(4): e(f"v_mov_b32 v{ONES+i}, 0x3f803f80")
        e("s_lshr_b32 s62, s2, 3\ns_lshl_b32 s62, s62, 16\ns_lshl_b32 s63, s33, 14\ns_add_u32 s62, s62, s63")
        if LIN:
            e("s_lshl_b32 s63, s2, 2\ns_add_u32 s63, s63, s33\ns_mul_i32 s63, s63, 7")
            e(f"v_lshrrev_b32 v5, 3, v2\ns_mov_b32 s30, 458752\nv_mul_lo_u32 v{VWD}, v5, s30")
        else:
            e("s_lshl_b32 s63, s2, 2\ns_add_u32 s63, s63, s33\ns_and_b32 s30, s63, 63\ns_mul_i32 s30, s30, 56\ns_lshr_b32 s31, s63, 6\ns_lshl_b32 s31, s31, 7\ns_mul_i32 s63, s63, 7168")
            e(f"v_lshrrev_b32 v5, 3, v2\nv_add_u32 v5, s30, v5\nv_lshlrev_b32 v5, 11, v5\nv_add_u32 v5, s31, v5")
            e(f"v_bfe_u32 v6, v2, 4, 1\nv_lshlrev_b32 v6, 2, v6\nv_and_b32 v7, 7, v2\nv_xor_b32 v6, v6, v7\nv_lshl_add_u32 v{VWD}, v6, 4, v5")
    g=GDA(k,R,S,4,8,8,16,True,8192,False,base=BBASE)
    LCONS=k.lab("CONS"); LJ=k.lab("JOIN")
    e(f"s_cmp_lt_u32 s58, 4\ns_cbranch_scc1 {LCONS} ; @alt")
    def kv_dma(c):
        for gi in range(2):
            e(f"s_add_u32 s47, s38, {c*32768+gi*4096}")
            e(f"s_add_u32 m0, s38, {(c%3)*32768+gi*4096}\ns_nop 0")
            for i in range(4):
                e(f"buffer_load_dwordx4 v3, s[12:15], s47 offen offset:{i*1024} lds")
    e("s_lshl_b32 s36, s35, 17")
    g.setup_loader(2, 60, 2048, 36)
    e("s_waitcnt lgkmcnt(0)")
    k.srd(8, 2*MB, src=28, add=WS_WQB)
    k.srd(12, 64*4096, src=28, add=WS_KV); k.srd(16, 4*MB, src=28, add=WS_O)
    g.loader(39, hooks={12:(lambda:kv_dma(0),8)}, after_first=lambda:(attn_setup(),icache_warm()))
    e("s_waitcnt vmcnt(0)\ns_barrier")
    e(f"s_lshl_b32 s47, s33, 11\ns_add_u32 s47, s47, {QX}\nv_add_u32 v4, s47, v3")
    e(f"ds_read_b128 v[{Q}:{Q+3}], v4\nds_read_b128 v[{Q+4}:{Q+7}], v4 offset:1024")
    kv_dma(1)
    e(f"s_branch {LJ}")
    e(f"{LCONS}:")
    e(f"s_lshl_b32 s36, s34, 2\ns_add_u32 s36, s36, s33\ns_lshl_b32 s36, s36, 16")
    g.setup_consumer(2, 60, 36)
    e("s_waitcnt lgkmcnt(0)")
    k.srd(4, 4*MB, src=28, add=WS_XN)
    g.a_prologue()
    attn_setup()
    icache_warm()
    k.srd(12, 64*4096, src=28, add=WS_KV); k.srd(16, 4*MB, src=28, add=WS_O)
    e("s_cmp_ge_u32 s2, 128\ns_cselect_b32 s20, s22, s20\ns_cselect_b32 s21, s23, s21")
    k.srd(20, 3584*1024*2); k.srd(48, 2*MB); k.srd(52, 3584*1024*2); k.srd(72, 3584*2048, src=28, add=WS_WDB)
    k.srd(24, 4*7168*4, src=28, add=WS_CS)
    g.consumer(39, stamp=(1 if os.environ.get('K1ST')=='1' else None))
    if os.environ.get('K1ST')=='2': k.stamp_mid(1)
    e(f"v_mov_b32 v60, {hex(f2u(QSCALE))}")
    k.nop(12)
    for i in range(32): e(f"v_mul_f32 v{R['acc']+i}, v{R['acc']+i}, v60")
    for i in range(8): e(f"v_cvt_pk_bf16_f32 v{Q+i}, v{R['acc']+2*i}, v{R['acc']+2*i+1}")
    for i in range(8): e(f"v_cvt_pk_bf16_f32 v{64+i}, v{R['acc']+16+2*i}, v{R['acc']+16+2*i+1}")
    e(f"s_lshl_b32 s47, s33, 11\ns_add_u32 s47, s47, {QX}\nv_add_u32 v4, s47, v3")
    e(f"ds_write_b128 v4, v[64:67]\nds_write_b128 v4, v[68:71] offset:1024")
    e("s_waitcnt lgkmcnt(0)\ns_barrier")
    e(f"{LJ}:")
    if not os.environ.get('K1W'): k.stamp_mid(0)
    def rdK(tl):
        for m in range(2): e(f"ds_read_b128 v[{KF+4*m}:{KF+4*m+3}], v{AK+m} offset:{tl*4096}")
    def rdV0(tl): e(f"ds_read_b128 v[{V0}:{V0+3}], v{AV0} offset:{tl*4096+2048}")
    def rdV1(tl): e(f"ds_read_b128 v[{V1}:{V1+3}], v{AV1} offset:{tl*4096+2048}")
    rdK(0); rdV0(0)
    for i in range(4): e(f"v_mov_b32 v{P+4+i}, 0\nv_mov_b32 v{V1+i}, 0")
    e("s_waitcnt lgkmcnt(0)")
    def mf(d,a,b,c=None):
        cs = c if c else f"v[{d}:{d+15}]"
        e(f"v_mfma_f32_32x32x16_bf16 v[{d}:{d+15}], v[{a}:{a+3}], v[{b}:{b+3}], {cs}")
    def rs(b): e(f"v_mfma_f32_16x16x32_bf16 v[{Lr}:{Lr+3}], v[{SEL}:{SEL+3}], v[{b}:{b+3}], v[{Lr}:{Lr+3}]")
    mf(SS,KF,Q,"0"); mf(SS,KF+4,Q+4)
    rdK(1)
    e("s_waitcnt lgkmcnt(0)")
    k.nop(10)
    PAT="W3 E0 E1 PV1p RV1 E2 E3 C0 E4 W2 QK0 E5 C1 E6 E7 RS1p C2 E8 QK1 RK C3 E9 E10 E11 W3 PV0 RV0 C4 E12 E13 C5 RS0 E14 E15 C6 C7".split()
    def slot(tl):
        par=tl&1
        Sc=SS+16*par; Sn=SS+16*(1-par)
        if 'tog' in VAR: e(f"s_setprio {par}")
        for t in PAT:
            if t[0]=='E': i=int(t[1:]); e(f"v_exp_f32 v{Sc+i}, v{Sc+i}")
            elif t[0]=='C': i=int(t[1:]); e(f"v_cvt_pk_bf16_f32 v{P+i}, v{Sc+2*i}, v{Sc+2*i+1}")
            elif t[0]=='W':
                if 'nowait' not in VAR: e(f"s_waitcnt lgkmcnt({t[1]})")
            elif t=='QK0': mf(Sn,KF,Q,"0")
            elif t=='QK1': mf(Sn,KF+4,Q+4)
            elif t=='PV0': mf(O,V0,P)
            elif t=='PV1p': mf(O,V1,P+4)
            elif t=='RS0': rs(P)
            elif t=='RS1p': rs(P+4)
            elif 'noread' in VAR: pass
            elif t=='RV1': rdV1(tl)
            elif t=='RK': rdK((tl+2)&7)
            elif t=='RV0': rdV0((tl+1)&7)
    LT0=k.lab("T0"); LT6=k.lab("T6")
    if 'sprio' in VAR:
        LP=k.lab("P"); e(f"s_cmp_lt_u32 s58, 4\ns_cbranch_scc1 {LP}\ns_setprio 1\n{LP}:")
    e("s_mov_b32 s39, 0\ns_mov_b32 s60, 0")
    e(f"s_branch {LT0}")
    e(f"{LT6}:")
    e(f"v_add_u32 v{AK}, s59, v{AK}\nv_add_u32 v{AK+1}, s59, v{AK+1}")
    slot(6)
    e(f"v_add_u32 v{AV0}, s59, v{AV0}")
    slot(7)
    e(f"v_add_u32 v{AV1}, s59, v{AV1}")
    e(f"s_cmp_eq_u32 s39, 8\ns_cbranch_scc1 {LX} ; @exit")
    e(f"{LT0}:")
    slot(0); slot(1)
    LMR=k.lab("MR")
    e(f"s_cmp_lt_u32 s58, 4\ns_cbranch_scc1 {LMD} ; @alt")
    e(f"{LMR}:")
    for tl in range(2,6): slot(tl)
    e("s_mov_b32 s59, 0xffff0000\ns_cmp_eq_u32 s60, 2\ns_cselect_b32 s59, s59, 0x8000\ns_add_u32 s61, s60, 2\ns_add_u32 s60, s60, 1\ns_cmp_eq_u32 s60, 3\ns_cselect_b32 s60, 0, s60")
    e(f"s_cmp_ge_u32 s58, 4\ns_cbranch_scc1 {LG1} ; @g1")
    LNB=k.lab("NB")
    e(f"s_cmp_eq_u32 s39, 7\ns_cbranch_scc1 {LNB}")
    e("s_barrier")
    e(f"{LNB}:")
    e(f"s_add_u32 s39, s39, 1\ns_branch {LT6}")
    pad(8)
    e(f"{LG1}:")
    LG1c=k.lab("G1c")
    e(f"s_cmp_eq_u32 s39, 7\ns_cbranch_scc1 {LG1c}")
    e("s_waitcnt vmcnt(0)\ns_barrier")
    e(f"s_cmp_ge_u32 s39, 6\ns_cbranch_scc1 {LG1c}")
    e("s_add_u32 s30, s39, 2\ns_lshl_b32 s31, s30, 15\ns_sub_u32 s30, s61, 3\ns_cmp_ge_u32 s61, 3\ns_cselect_b32 s30, s30, s61\ns_lshl_b32 s30, s30, 15\ns_add_u32 s30, s30, s38\ns_add_u32 s31, s31, s38")
    for gi in range(2):
        e(f"s_add_u32 m0, s30, {gi*4096}\ns_add_u32 s47, s31, {gi*4096}")
        for i in range(4):
            e(f"buffer_load_dwordx4 v3, s[12:15], s47 offen offset:{i*1024} lds")
    e(f"{LG1c}:")
    e(f"s_add_u32 s39, s39, 1\ns_branch {LT6}")
    def cs_dma(r):
        if 'nocs' in VAR: return
        e(f"s_mov_b32 s30, {r*32*7168}")
        for i in range(7):
            e(f"s_add_u32 m0, s56, {i*1024+r*28672}\ns_nop 0")
            e(f"buffer_load_dwordx4 v{CSV+i}, s[20:23], s30 offen lds")
    def cs_mfma(r):
        for v in range(7):
            for t in range(2):
                e(f"ds_read_b64_tr_b16 v[{CSF+4*v+2*t}:{CSF+4*v+2*t+1}], v{VCR} offset:{v*32+t*3584+r*28672}")
        e("s_waitcnt lgkmcnt(0)")
        for v in range(7):
            a=CSACC+4*v
            c="0" if r==0 else f"v[{a}:{a+3}]"
            e(f"v_mfma_f32_16x16x32_bf16 v[{a}:{a+3}], v[{CSF+4*v}:{CSF+4*v+3}], v[{ONES}:{ONES+3}], {c}")
    def prefetch(srd, base_s, first, n):
        if 'nowo' in VAR: return
        e(f"s_mov_b32 m0, {DUM}")
        for i in range(n):
            e(f"s_add_u32 s47, s{base_s}, {(first+i)*1024}")
            e(f"buffer_load_dwordx4 v3, s[{srd}:{srd+3}], s47 offen lds")
    side='noside' not in VAR
    SCHED=os.environ.get('K1SCHED','spread')
    pad(2)
    e(f"{LMD}:")
    hooks={'early':(0,1,3,4,5,6,7),'spread':(0,2,4,5,6,7)}.get(SCHED,(1,3,4,5,6,7))
    if side:
        for c in hooks:
            e(f"s_cmp_eq_u32 s39, {c}\ns_cbranch_scc1 {MID[c]}")
    e(f"s_branch {LMR}")
    def wd_loads():
        if 'nowd' in VAR: return
        if not LIN:
            for i in range(7):
                e(f"s_mov_b32 s30, {i*8*2048}\nbuffer_load_dwordx4 v[{WDR+4*i}:{WDR+4*i+3}], v{VWD}, s[52:55], s30 offen")
            return
        e("s_lshl_b32 s30, s63, 10")
        for i in range(7):
            e(f"buffer_load_dwordx4 v[{WDR+4*i}:{WDR+4*i+3}], v3, s[52:55], s30 offen" + (f" offset:{(i&3)*1024}" if i&3 else ""))
            if i==3: e("s_add_u32 s30, s30, 4096")
    def wd_stores():
        if 'nowd' in VAR: return
        if not LIN:
            for i in range(7):
                e(f"s_add_u32 s30, s63, {i*1024}\nbuffer_store_dwordx4 v[{WDR+4*i}:{WDR+4*i+3}], v3, s[72:75], s30 offen {os.environ.get('WDST','sc1')}")
            return
        e("v_and_b32 v5, 7, v2")
        for i in range(7):
            e(f"s_add_u32 s30, s63, {i}\ns_lshr_b32 s31, s30, 1\ns_and_b32 s30, s30, 1\ns_mul_i32 s30, s30, {8*458752}\ns_bfe_u32 s47, s31, 0x10001\ns_lshl_b32 s47, s47, 2\ns_lshl_b32 s31, s31, 7\ns_add_u32 s30, s30, s31")
            e(f"v_xor_b32 v4, s47, v5\nv_lshl_add_u32 v4, v4, 4, v{VWD}")
            e(f"buffer_store_dwordx4 v[{WDR+4*i}:{WDR+4*i+3}], v4, s[72:75], s30 offen {os.environ.get('WDST','sc1')}")
    def cs_partials():
        e(f"v_lshrrev_b32 v4, 4, v2\nv_lshlrev_b32 v4, 4, v4\ns_mul_i32 s30, s33, 448\ns_add_u32 s30, s30, {CSS}\nv_add_u32 v4, s30, v4")
        e("v_and_b32 v5, 15, v2\nv_cmp_eq_u32 vcc, 0, v5\ns_and_saveexec_b64 s[66:67], vcc")
        k.nop(2)
        for v in range(7): e(f"ds_write_b128 v4, v[{CSACC+4*v}:{CSACC+4*v+3}] offset:{v*64}")
        e("s_mov_b64 exec, s[66:67]\ns_waitcnt lgkmcnt(0)")
    def cs_final():
        LS=k.lab("CSS")
        e("v_cmp_gt_u32 vcc, 112, v0\ns_and_saveexec_b64 s[66:67], vcc")
        e(f"s_cbranch_execz {LS}")
        e(f"v_lshlrev_b32 v4, 2, v0\nv_add_u32 v4, {CSS}, v4")
        for j in range(4): e(f"ds_read_b32 v{16+j}, v4 offset:{j*448}")
        e("s_and_b32 s30, s2, 3\ns_mul_i32 s30, s30, 28672\ns_lshr_b32 s31, s2, 7\ns_mul_i32 s31, s31, 14336\ns_add_u32 s30, s30, s31")
        e("s_bfe_u32 s31, s2, 0x50002\ns_mul_i32 s31, s31, 448\ns_add_u32 s30, s30, s31")
        e("v_lshlrev_b32 v4, 2, v0\ns_waitcnt lgkmcnt(0)")
        e("v_add_f32 v16, v16, v17\nv_add_f32 v18, v18, v19\nv_add_f32 v16, v16, v18")
        e("buffer_store_dword v16, v4, s[24:27], s30 offen")
        e(f"{LS}:\ns_mov_b64 exec, s[66:67]")
    for c in hooks:
        if not side: break
        pad({0:0,1:1,2:1,3:3,4:4,5:5,6:6,7:7}[c])
        e(f"{MID[c]}:")
        if SCHED=='spread':
            if c==0: cs_dma(0)
            if c==2: e("s_waitcnt vmcnt(0)"); cs_mfma(0); cs_dma(1)
            if c==4: e("s_waitcnt vmcnt(0)"); cs_mfma(1); cs_partials(); wd_loads()
            if c==5: cs_final(); prefetch(48,62,0,8)
            if c==6: e("s_waitcnt vmcnt(8)"); wd_stores()
            if c==7:
                prefetch(48,62,8,8)
                k.code_prefetch("k2_wo_kernel", 4864, 4, 132, 76)
        elif SCHED=='early':
            if c==0: cs_dma(0)
            if c==1: wd_loads()
            if c==3: e("s_waitcnt vmcnt(7)"); cs_mfma(0); cs_dma(1)
            if c==4: e("s_waitcnt vmcnt(7)"); wd_stores()
            if c==5: prefetch(48,62,0,8)
            if c==6: e("s_waitcnt vmcnt(15)"); cs_mfma(1); cs_partials()
            if c==7:
                cs_final(); prefetch(48,62,8,8)
                k.code_prefetch("k2_wo_kernel", 4864, 4, 132, 76)
        else:
            if c==1: cs_dma(0)
            if c==3: e("s_waitcnt vmcnt(0)"); cs_mfma(0); cs_dma(1)
            if c==4: wd_loads()
            if c==5: e("s_waitcnt vmcnt(7)"); cs_mfma(1); cs_partials()
            if c==6:
                e("s_waitcnt vmcnt(0)"); wd_stores(); cs_final(); prefetch(48,62,0,8)
            if c==7:
                prefetch(48,62,8,8)
                k.code_prefetch("k2_wo_kernel", 4864, 4, 132, 76)
        e(f"s_branch {LMR}")
    pad(9)
    e(f"{LX}:")
    if os.environ.get('K1ST') not in ('1','2') and not os.environ.get('K1W'): k.stamp_mid(1)
    e("s_waitcnt lgkmcnt(0)")
    mf(O,V1,P+4); rs(P+4)
    k.nop(12)
    LFB=k.lab("FB"); LFIN=k.lab("FIN")
    e(f"v_mov_b32 v8, 0")
    for i in range(16): e(f"v_fmac_f32 v8, 0, v{O+i}")
    e(f"v_mov_b32 v9, {hex(f2u(2.0**-60))}\nv_mov_b32 v10, {hex(f2u(2.0**60))}")
    e(f"v_cmp_o_f32 s[64:65], v8, v8")
    e(f"v_cmp_le_f32 s[66:67], v9, v{Lr}")
    e(f"v_cmp_ge_f32 s[70:71], v10, v{Lr}")
    e("s_and_b64 s[64:65], s[64:65], s[66:67]\ns_and_b64 s[64:65], s[64:65], s[70:71]")
    e(f"s_cmp_eq_u64 s[64:65], exec\ns_cbranch_scc0 {LFB}")
    e(f"{LFIN}:")
    e(f"v_rcp_f32 v8, v{Lr}")
    e("s_nop 0")
    for i in range(16): e(f"v_mul_f32 v{O+i}, v{O+i}, v8")
    for i in range(8): e(f"v_cvt_pk_bf16_f32 v{16+i}, v{O+2*i}, v{O+2*i+1}")
    for j in range(2):
        e(f"buffer_store_dwordx4 v[{16+4*j}:{19+4*j}], v{VO}, s[16:19], 0 offen offset:{j*1024} {os.environ.get('K1STF','sc1')}")
    e("s_waitcnt vmcnt(0)")
    k.stamp_end(1)
    e("s_endpgm")
    e(f"{LFB}:")
    e("s_waitcnt vmcnt(0)")
    e("v_and_b32 v8, 31, v2\nv_bfe_u32 v9, v2, 2, 2\nv_lshrrev_b32 v10, 5, v2\nv_xor_b32 v9, v9, v10")
    e(f"v_lshlrev_b32 v8, 6, v8\nv_lshl_add_u32 v{AK}, v9, 4, v8\nv_xor_b32 v9, 2, v9\nv_lshl_add_u32 v{AK+1}, v9, 4, v8")
    e("v_mov_b32 v8, 0xff800000")
    F1=k.lab("F1"); F2=k.lab("F2")
    e(f"s_mov_b32 s47, 0\n{F1}:")
    for m in range(2): e(f"buffer_load_dwordx4 v[{KF+4*m}:{KF+4*m+3}], v{AK+m}, s[12:15], s47 offen")
    e("s_waitcnt vmcnt(0)")
    mf(SS,KF,Q,"0"); mf(SS,KF+4,Q+4)
    k.nop(12)
    for i in range(16): e(f"v_max_f32 v8, v8, v{SS+i}")
    e(f"s_add_u32 s47, s47, 4096\ns_cmp_lt_u32 s47, {64*4096}\ns_cbranch_scc1 {F1}")
    e("v_mov_b32 v10, v8\ns_nop 1\nv_permlane32_swap_b32 v8, v10\ns_nop 1\nv_max_f32 v8, v8, v10")
    for i in range(16): e(f"v_mov_b32 v{O+i}, 0")
    for i in range(4): e(f"v_mov_b32 v{Lr+i}, 0")
    e(f"s_mov_b32 s47, 0\n{F2}:")
    for m in range(2): e(f"buffer_load_dwordx4 v[{KF+4*m}:{KF+4*m+3}], v{AK+m}, s[12:15], s47 offen")
    e(f"buffer_load_dwordx4 v[{V0}:{V0+3}], v{AK}, s[12:15], s47 offen offset:2048")
    e(f"buffer_load_dwordx4 v[{V1}:{V1+3}], v{AK+1}, s[12:15], s47 offen offset:2048")
    e("s_waitcnt vmcnt(0)")
    mf(SS,KF,Q,"0"); mf(SS,KF+4,Q+4)
    k.nop(12)
    for i in range(16): e(f"v_sub_f32 v{SS+i}, v{SS+i}, v8")
    for i in range(16): e(f"v_exp_f32 v{SS+i}, v{SS+i}")
    e("s_nop 0")
    for i in range(8): e(f"v_cvt_pk_bf16_f32 v{P+i}, v{SS+2*i}, v{SS+2*i+1}")
    e("s_nop 1")
    mf(O,V0,P); mf(O,V1,P+4); rs(P); rs(P+4)
    k.nop(12)
    e(f"s_add_u32 s47, s47, 4096\ns_cmp_lt_u32 s47, {64*4096}\ns_cbranch_scc1 {F2}")
    e(f"s_branch {LFIN}")
    e(f"{END}:")
    e("s_endpgm")
    return k
```

```python
from base import *
from gda import *
import os

def common(name, kidx, nst, NS):
    k=Kern(name, 256, 512, NS*BST+(0 if name.startswith('k2') else 16384), vgpr=208, sgpr=80)
    return k

def h_addr(k, vdst, t, s_m, s_n, s_w):
    e=k.e
    e(f"s_lshr_b32 s30, s{s_m}, 1\ns_lshl_b32 s30, s30, 5\ns_lshl_b32 s31, s{s_n}, 1\ns_add_u32 s30, s30, s31\ns_lshl_b32 s30, s30, 14")
    e(f"s_and_b32 s31, s{s_m}, 1\ns_lshl_b32 s31, s31, 13\ns_add_u32 s30, s30, s31\ns_lshl_b32 s31, s{s_w}, 11\ns_add_u32 s30, s30, s31")
    e(f"v_bfe_u32 v{t}, v2, 4, 1\nv_lshlrev_b32 v{t}, 10, v{t}\nv_and_b32 v{t+1}, 15, v2\nv_lshl_add_u32 v{t}, v{t+1}, 4, v{t}")
    e(f"v_lshrrev_b32 v{t+1}, 5, v2\nv_lshl_add_u32 v{t}, v{t+1}, 3, v{t}\nv_add_u32 v{vdst}, s30, v{t}")
    for g in range(1,4): e(f"v_add_u32 v{vdst+g}, {256*g}, v{vdst}")

def gen_gemm(kind):
    isWo = kind=='wo'
    nst = 16 if isWo else 56
    NS=int(os.environ.get('GNS','10'))
    name = "k2_wo_kernel" if isWo else "k4_down_kernel"
    kidx = 2 if isWo else 4
    k=common(name,kidx,nst,NS); e=k.e
    END=k.lab("END")
    R=dict(vA=4,vB=8,vW=14,AF=128,W=96,acc=40)
    S=dict(w=33,sA=40,sB=41,wr=42,rd=43,inc=44,wB=46,t=47,big=52,st=53,ea=54)
    RES=72; VH=88; VOUT=92; VST=93
    e(f"s_cmp_ge_u32 s2, 256\ns_cbranch_scc1 {END}")
    k.stamp_begin()
    k.load_ptr(28,'ws')
    if isWo: k.load_ptr(8,'wo')
    k.load_ptr(20,'x' if isWo else 'out')
    e("v_lshrrev_b32 v1, 6, v0\nv_and_b32 v2, 63, v0")
    e("s_and_b32 s30, s2, 7\ns_lshr_b32 s31, s2, 3")
    if isWo:
        e("s_and_b32 s32, s31, 1\ns_lshl_b32 s30, s30, 1\ns_add_u32 s34, s30, s32\ns_lshr_b32 s35, s31, 1")
    else:
        e("s_lshr_b32 s32, s30, 1\ns_lshl_b32 s32, s32, 2\ns_and_b32 s34, s31, 3\ns_add_u32 s34, s34, s32")
        e("s_and_b32 s32, s30, 1\ns_lshl_b32 s32, s32, 3\ns_lshr_b32 s35, s31, 2\ns_add_u32 s35, s35, s32")
    e("v_readfirstlane_b32 s58, v1")
    e("s_lshl_b32 s37, s35, 7")
    if not isWo: e(f"s_mul_i32 s38, s35, {3584*128}")
    NKS=64 if isWo else 224
    e("s_and_b32 s33, s58, 3")
    if isWo: g=GDA(k,R,S,4,8,NS,nst,False,64*2048,True)
    else:    g=GDA(k,R,S,4,8,NS,nst,True,8192,False)
    LCONS=k.lab("CONS")
    e(f"s_cmp_lt_u32 s58, 4\ns_cbranch_scc1 {LCONS} ; @alt")
    g.setup_loader(2, 60, 2048, 37 if isWo else 38)
    e("s_waitcnt lgkmcnt(0)")
    if isWo: k.srd(8, 2*MB)
    else:    k.srd(8, 3584*2048, src=28, add=WS_WDB)
    g.loader(39)
    if isWo: k.code_prefetch("k3_gateup_kernel", 12288, 4, 12, 56)
    if os.environ.get('LDST'): k.stamp_end(kidx, 256)
    e("s_endpgm")
    e(f"{LCONS}:")
    h_addr(k, VH, 60, 34, 35, 33)
    e(f"s_lshl_b32 s30, s34, 7\ns_lshl_b32 s31, s33, 5\ns_add_u32 s30, s30, s31\nv_and_b32 v60, 31, v2\nv_add_u32 v61, s30, v60\nv_lshlrev_b32 v60, 11, v61")
    e(f"v_lshrrev_b32 v62, 5, v2\nv_lshl_add_u32 v60, v62, 5, v60\nv_add_u32 v{VOUT}, s37, v60")
    e("s_mov_b32 s48, 16384")
    if isWo: e(f"v_lshlrev_b32 v61, 3, v61\ns_lshl_b32 s30, s35, 14\nv_add_u32 v{VST}, s30, v61")
    e(f"s_lshl_b32 s36, s34, 2\ns_add_u32 s36, s36, s33\ns_mul_i32 s36, s36, {NKS*1024}")
    g.setup_consumer(2, 60, 36)
    e("s_waitcnt lgkmcnt(0)")
    if isWo: k.srd(4, 4*MB, src=28, add=WS_O)
    else:    k.srd(4, 2048*3584*2, src=28, add=WS_ACT)
    k.srd(12, 4*MB, src=28, add=WS_H)
    k.srd(20, 4*MB)
    if isWo: k.srd(16, 2048*128, src=28, add=WS_ST)
    def res_loads():
        if isWo:
            for f in range(2):
                for j in range(2):
                    e(f"buffer_load_dwordx4 v[{RES+8*f+4*j}:{RES+8*f+4*j+3}], v{VOUT}, s[20:23], 0 offen offset:{f*64+j*16}")
        else:
            for f in range(2):
                so = "0" if f==0 else "s48"
                for g4 in range(4):
                    e(f"buffer_load_dwordx2 v[{RES+8*f+2*g4}:{RES+8*f+2*g4+1}], v{VH+g4}, s[12:15], {so} offen")
    if os.environ.get('LAT'):
        k.stamp_mid(0); e("s_waitcnt lgkmcnt(0)")
        g.aload(0,0,S['sA']); e("s_waitcnt vmcnt(0)"); k.stamp_mid(1); e("s_waitcnt lgkmcnt(0)")
    g.a_prologue()
    g.consumer(39, stamp=(None if os.environ.get('LAT') else 0), res_hook=res_loads, nres=4 if isWo else 8)
    if not os.environ.get('LAT'): k.stamp_mid(1)
    A=R['acc']
    e("s_waitcnt vmcnt(0)")
    for f in range(2):
        for j in range(8):
            e(f"v_lshlrev_b32 v{16+2*j}, 16, v{RES+8*f+j}\nv_and_b32 v{17+2*j}, 0xffff0000, v{RES+8*f+j}")
        if f==0: k.nop(2)
        for i in range(8): e(f"v_pk_add_f32 v[{A+16*f+2*i}:{A+16*f+2*i+1}], v[{A+16*f+2*i}:{A+16*f+2*i+1}], v[{16+2*i}:{17+2*i}]")
    for f in range(2):
        for j in range(8): e(f"v_cvt_pk_bf16_f32 v{RES+8*f+j}, v{A+16*f+2*j}, v{A+16*f+2*j+1}")
    if isWo:
        for f in range(2):
            so = "0" if f==0 else "s48"
            for g4 in range(4):
                e(f"buffer_store_dwordx2 v[{RES+8*f+2*g4}:{RES+8*f+2*g4+1}], v{VH+g4}, s[12:15], {so} offen {os.environ.get('K2STF','sc1')}")
        pr=lambda r: f"v[{r}:{r+1}]"
        e(f"v_pk_add_f32 v[18:19], {pr(A)}, {pr(A+2)}\nv_pk_add_f32 v[20:21], {pr(A+4)}, {pr(A+6)}")
        for i in range(4,16,2):
            e(f"v_pk_add_f32 v[18:19], v[18:19], {pr(A+2*i)}\nv_pk_add_f32 v[20:21], v[20:21], {pr(A+2*i+2)}")
        e("v_pk_add_f32 v[18:19], v[18:19], v[20:21]\nv_add_f32 v16, v18, v19")
        e("v_mov_b32 v17, v16\ns_nop 1\nv_permlane32_swap_b32 v16, v17\ns_nop 1\nv_add_f32 v16, v16, v17")
        e(f"v_mul_f32 v18, {hex(f2u(1/64.))}, v16")
        for i in range(16): e(f"v_pk_add_f32 {pr(A+2*i)}, {pr(A+2*i)}, v[18:19] op_sel_hi:[1,0] neg_lo:[0,1] neg_hi:[0,1]")
        e(f"v_pk_mul_f32 v[20:21], {pr(A)}, {pr(A)}\nv_pk_mul_f32 v[22:23], {pr(A+2)}, {pr(A+2)}")
        for i in range(2,16,2):
            e(f"v_pk_fma_f32 v[20:21], {pr(A+2*i)}, {pr(A+2*i)}, v[20:21]\nv_pk_fma_f32 v[22:23], {pr(A+2*i+2)}, {pr(A+2*i+2)}, v[22:23]")
        e("v_pk_add_f32 v[20:21], v[20:21], v[22:23]\nv_add_f32 v17, v20, v21")
        e("v_mov_b32 v19, v17\ns_nop 1\nv_permlane32_swap_b32 v17, v19\ns_nop 1\nv_add_f32 v17, v17, v19")
        e("v_cmp_gt_u32 vcc, 32, v2\ns_and_saveexec_b64 s[50:51], vcc")
        e(f"buffer_store_dwordx2 v[16:17], v{VST}, s[16:19], 0 offen")
        e("s_mov_b64 exec, s[50:51]")
    else:
        TB=NS*BST
        e(f"s_lshl_b32 s30, s33, 12\ns_add_u32 s30, s30, {TB}")
        e("v_and_b32 v16, 31, v2\nv_lshlrev_b32 v17, 7, v16\nv_add_u32 v17, s30, v17")
        e("v_lshrrev_b32 v18, 5, v2\nv_lshlrev_b32 v18, 1, v18\nv_and_b32 v19, 7, v2")
        for f in range(2):
            for j in range(2):
                e(f"v_or_b32 v20, {4*f+j}, v18\nv_xor_b32 v20, v20, v19\nv_lshl_add_u32 v20, v20, 4, v17")
                e(f"ds_write_b128 v20, v[{RES+8*f+4*j}:{RES+8*f+4*j+3}]")
        e("v_lshrrev_b32 v16, 3, v2\nv_and_b32 v18, 7, v2\nv_xor_b32 v19, v18, v16\nv_lshlrev_b32 v17, 7, v16\nv_lshl_add_u32 v17, v19, 4, v17\nv_add_u32 v17, s30, v17")
        e("s_lshl_b32 s30, s34, 7\ns_lshl_b32 s31, s33, 5\ns_add_u32 s30, s30, s31\nv_add_u32 v16, s30, v16\nv_lshlrev_b32 v16, 11, v16\nv_lshl_add_u32 v16, v18, 4, v16\nv_add_u32 v16, s37, v16")
        e("s_waitcnt lgkmcnt(0)")
        for i in range(4): e(f"ds_read_b128 v[{24+4*i}:{27+4*i}], v17 offset:{i*1024}")
        for i in range(4):
            e(f"s_waitcnt lgkmcnt({3-i})\ns_mov_b32 s31, {i*8*2048}")
            e(f"buffer_store_dwordx4 v[{24+4*i}:{27+4*i}], v16, s[20:23], s31 offen {os.environ.get('K4STF','sc1')}")
    e("s_waitcnt vmcnt(0)")
    if not os.environ.get('LDST'): k.stamp_end(kidx)
    e(f"{END}:")
    e("s_endpgm")
    return k
def gen_k2(): return gen_gemm('wo')
def gen_k4(): return gen_gemm('down')
```

```python
import math

KA = dict(x=0, wq=8, wk=16, wv=24, wo=32, bx=40, wg=48, wu=56, wd=64, out=72, dbg=80, ws=88)

MB = 1 << 20
WS_XN  = 0
WS_KV  = 4*MB
WS_O   = 5*MB
WS_H   = 9*MB
WS_ST  = 13*MB
WS_CS  = 13*MB + 512*1024
WS_ACT = 14*MB
WS_END = 30*MB
WS_STAMP = 31*MB
WS_WQB = 40*MB
WS_WDB = 32*MB
import os
STAMP = os.environ.get('STAMP','0')=='1'

class Kern:
    def __init__(self, name, grid, block, lds, vgpr, agpr=0, sgpr=102):
        self.name=name; self.grid=grid; self.block=block; self.lds=lds
        self.vgpr=vgpr; self.agpr=agpr; self.sgpr=sgpr
        self.L=[]; self._lab=0
    def e(self, s):
        for l in s.split('\n'):
            l=l.strip()
            if l: self.L.append(l)
    def c(self, s): self.L.append('; '+s)
    def lab(self, p='L'):
        self._lab+=1; return f"{p}_{self.name}_{self._lab}"
    def nop(self, n):
        while n>0:
            k=min(n,16); self.e(f"s_nop {k-1}"); n-=k
    def text(self):
        acc = (self.vgpr+3)//4*4
        hdr=f".globl {self.name}\n.p2align 8\n.type {self.name},@function\n{self.name}:\nLcode_{self.name}:\n"
        return hdr+"\n".join(("    "+l if not l.endswith(':') else l) for l in self.L)+"\n"
    def desc(self):
        acc=(self.vgpr+3)//4*4
        nfv = acc+self.agpr if self.agpr else self.vgpr
        return f""".p2align 6
.amdhsa_kernel {self.name}
  .amdhsa_next_free_vgpr {nfv}
  .amdhsa_next_free_sgpr {self.sgpr}
  .amdhsa_accum_offset {acc}
  .amdhsa_group_segment_fixed_size 0
  .amdhsa_kernarg_size 96
  .amdhsa_user_sgpr_count 2
  .amdhsa_user_sgpr_kernarg_segment_ptr 1
  .amdhsa_system_sgpr_workgroup_id_x 1
{'' if os.environ.get('NODENORM') else '  .amdhsa_float_denorm_mode_32 3'}
.end_amdhsa_kernel
"""
    def stamp_begin(self):
        if STAMP:
            self.sgpr=102
            self.e("s_memrealtime s[88:89]\ns_memtime s[90:91]")
    def stamp_mid(self, idx):
        if STAMP: self.e(f"s_memtime s[{96+2*idx}:{97+2*idx}]")
    def stamp_end(self, kidx, tid=0):
        if not STAMP: return
        e=self.e
        L=self.lab("STMP")
        e("s_waitcnt vmcnt(0) lgkmcnt(0)")
        e("s_memrealtime s[92:93]\ns_memtime s[94:95]")
        e(f"s_load_dwordx2 s[86:87], s[0:1], {KA['ws']}")
        e("s_waitcnt lgkmcnt(0)")
        e(f"s_add_u32 s86, s86, {WS_STAMP+kidx*8192}\ns_addc_u32 s87, s87, 0")
        e(f"s_mov_b32 s83, {tid}\nv_cmp_eq_u32 vcc, s83, v0\ns_and_saveexec_b64 s[84:85], vcc")
        e(f"s_cbranch_execz {L}")
        e("s_lshl_b32 s83, s2, 5\nv_mov_b32 v1, s83")
        e("v_mov_b32 v4, s88\nv_mov_b32 v5, s92\nv_mov_b32 v6, s90\nv_mov_b32 v7, s94")
        e("global_store_dwordx4 v1, v[4:7], s[86:87]")
        e("s_getreg_b32 s82, hwreg(HW_REG_XCC_ID)\ns_getreg_b32 s81, hwreg(HW_REG_HW_ID)")
        e("v_mov_b32 v8, s96\nv_mov_b32 v9, s98\nv_mov_b32 v10, s82\nv_mov_b32 v11, s81")
        e("global_store_dwordx4 v1, v[8:11], s[86:87] offset:16")
        e("s_waitcnt vmcnt(0)")
        e(f"{L}:")
    def code_prefetch(self, target, nbytes, vtmp, vdst, stmp):
        if os.environ.get('NOCPF'): return
        e=self.e; L=self.lab("PC")
        e(f"s_getpc_b64 s[{stmp}:{stmp+1}]\n{L}:")
        e(f"s_add_u32 s{stmp}, s{stmp}, Lcode_{target}-{L}\ns_addc_u32 s{stmp+1}, s{stmp+1}, 0")
        e(f"s_lshr_b32 s{stmp+2}, s2, 3\ns_lshl_b32 s{stmp+2}, s{stmp+2}, 10\ns_min_u32 s{stmp+2}, s{stmp+2}, {(nbytes-1)//1024*1024}")
        e(f"v_and_b32 v{vtmp}, 63, v0\nv_lshlrev_b32 v{vtmp}, 4, v{vtmp}\nv_add_u32 v{vtmp}, s{stmp+2}, v{vtmp}")
        dst = vdst if isinstance(vdst,str) else f"v[{vdst}:{vdst+3}]"
        e(f"global_load_dwordx4 {dst}, v{vtmp}, s[{stmp}:{stmp+1}] ; @pf")
    def code_prefetch_all(self, first, vtmp, vdst, stmp):
        if os.environ.get('NOCPF') or os.environ.get('NOCPFA'): return
        e=self.e; L=self.lab("PC")
        e(f"s_getpc_b64 s[{stmp}:{stmp+1}]\n{L}:")
        e(f"s_sub_u32 s{stmp}, s{stmp}, {L}-Lcode_{first}\ns_subb_u32 s{stmp+1}, s{stmp+1}, 0")
        e(f"s_lshr_b32 s{stmp+2}, s2, 3\ns_lshl_b32 s{stmp+2}, s{stmp+2}, 12")
        e(f"v_and_b32 v{vtmp}, 0xc0, v0\nv_lshlrev_b32 v{vtmp}, 4, v{vtmp}\nv_add_u32 v{vtmp}, s{stmp+2}, v{vtmp}\nv_min_u32 v{vtmp}, Lcode_end-Lcode_{first}-1024, v{vtmp}")
        e(f"v_and_b32 v{vtmp+1}, 63, v0\nv_lshl_add_u32 v{vtmp}, v{vtmp+1}, 4, v{vtmp}")
        e(f"global_load_dwordx4 v[{vdst}:{vdst+3}], v{vtmp}, s[{stmp}:{stmp+1}] ; @pf")
    def kd_prefetch(self, vtmp, vdst, stmp):
        if os.environ.get('KDPF','0')!='1': return
        e=self.e
        e(f"s_getpc_b64 s[{stmp}:{stmp+1}]")
        e(f"s_add_u32 s{stmp}, s{stmp}, Lkd_first@rel32@lo+4\ns_addc_u32 s{stmp+1}, s{stmp+1}, Lkd_first@rel32@hi+12")
        e(f"v_and_b32 v{vtmp}, 63, v0\nv_lshlrev_b32 v{vtmp}, 2, v{vtmp}\nv_min_u32 v{vtmp}, 316, v{vtmp}")
        e(f"global_load_dword v{vdst}, v{vtmp}, s[{stmp}:{stmp+1}] ; @pf")
    def load_ptr(self, sreg, name):
        self.e(f"s_load_dwordx2 s[{sreg}:{sreg+1}], s[0:1], {KA[name]}")
    def srd(self, s, nbytes, src=None, add=0):
        if src is None: src=s
        if add:
            self.e(f"s_add_u32 s{s}, s{src}, {add}")
            self.e(f"s_addc_u32 s{s+1}, s{src+1}, 0")
        elif src!=s:
            self.e(f"s_mov_b32 s{s}, s{src}\ns_mov_b32 s{s+1}, s{src+1}")
        self.e(f"s_mov_b32 s{s+2}, {nbytes}")
        self.e(f"s_mov_b32 s{s+3}, 0x20000")

def vr(a,n=1): return f"v{a}" if n==1 else f"v[{a}:{a+n-1}]"
def ar(a,n=1): return f"a{a}" if n==1 else f"a[{a}:{a+n-1}]"
def sr(a,n=1): return f"s{a}" if n==1 else f"s[{a}:{a+n-1}]"

def build(kernels, header_comments):
    out=list(header_comments)
    for k in kernels:
        out.append(f"; @launch kernel={k.name} grid=({k.grid},1,1) block=({k.block},1,1) lds={k.lds}")
    out.append('.amdgcn_target "amdgcn-amd-amdhsa--gfx950"')
    out.append('.text')
    seen=[]
    for k in kernels:
        if k.name in seen: continue
        seen.append(k.name); out.append(k.text())
    out.append('Lcode_end:')
    out.append('.section .rodata,"a"')
    out.append('.p2align 6')
    out.append('Lkd_first:')
    seen=[]
    for k in kernels:
        if k.name in seen: continue
        seen.append(k.name); out.append(k.desc())
    return "\n".join(out)+"\n"

def f2u(x):
    import struct
    return struct.unpack('<I',struct.pack('<f',x))[0]
```

```python
import sys
from base import *
import k0
from chk import check
HDR=[
"; out = h + down(gelu(LN(h) Wg) * (LN(h) Wu)),  h = x + MQA(LN(x)) Wo      (S=2048, D=1024, 32 heads x 32, one KV head, F=3584)",
"; Hand-written gfx950 assembly, emitted by my own generator scripts. Five launches, 256 workgroups each (one per CU):",
";  k0  LayerNorm(x) (two-pass, f32) -> xn in MFMA fragment order; K and V^T tiles; Wq repacked into column tiles.",
";  k1  Q = xn Wq (scaled by 32^-0.5*log2 e) kept in registers, then attention S^T = K Q^T, P = exp2(S), O^T = V^T P^T, row sums by MFMA.",
";      P is formed without the row maximum; afterwards every wave checks 2^-60 <= rowsum <= 2^60 and that O is finite, and any wave",
";      that fails recomputes its tile in two passes with the true row maximum. Side jobs: column sums of Wg/Wu, Wd repacked, Wo prefetched.",
";  k2  h = x + O Wo, plus per-row (sum, M2) partials of every 64-column tile (merged exactly with Chan's formula in k3).",
";  k3  gate/up GEMM on h with LayerNorm applied to the accumulators: LN(h) W = rstd * (h W - mean * colsum(W)); tanh-GELU * up.",
";  k4  out = h + act Wd.",
"; Workspace hand-offs are all written earlier in the same list; stores that feed the next launch are write-through (sc1).",
"; Each launch also loads the next launch's instructions as data so that they are in the L2 when it starts.",
]
def make(which):
    import k1,k2,k3
    def gen_kz():
        k=Kern("kz_empty_kernel", 256, 256, 0, vgpr=8, sgpr=16)
        k.e("s_endpgm")
        return k
    G={'kz':gen_kz,'k0':k0.gen_k0,'k1':k1.gen_k1,'k2':k2.gen_k2,'k3':k3.gen_k3,'k4':k2.gen_k4}
    cache={}; ks=[]
    for w in which:
        if w not in cache: cache[w]=G[w]()
        ks.append(cache[w])
    return ks
if __name__=='__main__':
    out=sys.argv[1]; which=sys.argv[2].split(',')
    ks=make(which)
    txt=build(ks,HDR)
    for k in dict.fromkeys(ks):
        print(k.name, end=': '); check("\n".join(k.L))
    open(out,'w').write(txt)
```

```python
from base import *
import os

def dpp_reduce(k, regs):
    seq=["row_shr:1 row_mask:0xf bank_mask:0xf","row_shr:2 row_mask:0xf bank_mask:0xf",
         "row_shr:4 row_mask:0xf bank_mask:0xf","row_shr:8 row_mask:0xf bank_mask:0xf",
         "row_bcast:15 row_mask:0xa bank_mask:0xf","row_bcast:31 row_mask:0xc bank_mask:0xf"]
    for s in seq:
        k.nop(max(0,2-(len(regs)-1)))
        for r in regs:
            k.e(f"v_add_f32_dpp v{r}, v{r}, v{r} {s}")

def gen_k0():
    XL=65536; XLS=2080; RED=XL+16*XLS; DUMMY=RED+2048
    NW=int(os.environ.get("K0W","4")); RPW=16//NW; KS=NW//2; LW={4:2,8:3}[NW]
    k=Kern("k0_ln_kv_kernel", 256, 64*NW, RED+6144, vgpr=140, sgpr=64)
    e=k.e
    END=k.lab("END")
    e(f"s_cmp_ge_u32 s2, 256\ns_cbranch_scc1 {END}")
    k.stamp_begin()
    k.load_ptr(4,'x'); k.load_ptr(8,'wk'); k.load_ptr(12,'wv'); k.load_ptr(24,'wq'); k.load_ptr(28,'ws')
    k.code_prefetch_all("k0_ln_kv_kernel", 124, 124, 60)
    k.kd_prefetch(128, 129, 60)
    e("v_lshrrev_b32 v1, 6, v0\nv_and_b32 v2, 63, v0")
    e("s_and_b32 s40, s2, 7\ns_lshr_b32 s41, s2, 3\ns_lshl_b32 s40, s40, 4\ns_lshr_b32 s42, s41, 1\ns_add_u32 s32, s40, s42\ns_and_b32 s43, s41, 1")
    e("v_readfirstlane_b32 s33, v1")
    e("v_lshlrev_b32 v3, 4, v2")
    e(f"s_lshl_b32 s40, s32, 4\ns_mul_i32 s41, s33, {RPW}\ns_add_u32 s40, s40, s41\ns_lshl_b32 s34, s40, 11")
    e("s_add_u32 s44, s34, 4096")
    e("s_waitcnt lgkmcnt(0)")
    k.srd(4, 2048*2048)
    for r in range(RPW):
        so = "s34" if r<2 else "s44"
        for j in range(2):
            e(f"buffer_load_dwordx4 v[{8+8*r+4*j}:{11+8*r+4*j}], v3, s[4:7], {so} offen offset:{(r&1)*2048+1024*j}")
    e("v_lshrrev_b32 v4, 2, v2\nv_lshlrev_b32 v4, 6, v4\nv_lshrrev_b32 v5, 5, v2\nv_lshlrev_b32 v5, 1, v5\nv_and_b32 v6, 3, v2\nv_xor_b32 v5, v5, v6\nv_lshl_add_u32 v4, v5, 4, v4")
    e("s_cmp_eq_u32 s43, 1\ns_cselect_b32 s8, s12, s8\ns_cselect_b32 s9, s13, s9")
    k.srd(8, 65536); k.srd(24, 2*MB)
    k.srd(16, 4*MB, src=28, add=WS_XN) ; k.srd(20, 64*4096, src=28, add=WS_KV); k.srd(56, 2*MB, src=28, add=WS_WQB)
    e(f"s_mul_i32 s35, s33, {65536//NW}")
    for g in range(16//NW):
        e(f"s_add_u32 s36, s35, {g*4096}")
        e(f"s_mov_b32 m0, s36\ns_nop 0")
        for i in range(4):
            e(f"buffer_load_dwordx4 v4, s[8:11], s36 offen offset:{1024*i} lds")
    NR=64//NW; NI=NR//8
    e(f"s_mul_i32 s40, s2, {NW}\ns_add_u32 s40, s40, s33\ns_and_b32 s41, s40, {1024//NR-1}\ns_mul_i32 s41, s41, {NR}\ns_lshr_b32 s42, s40, {(1024//NR).bit_length()-1}\ns_lshl_b32 s42, s42, 7\ns_mul_i32 s52, s40, {NR*128}")
    e("v_lshrrev_b32 v112, 3, v2\nv_add_u32 v112, s41, v112\nv_lshlrev_b32 v112, 11, v112\nv_add_u32 v112, s42, v112")
    e("v_bfe_u32 v113, v2, 4, 1\nv_lshlrev_b32 v113, 2, v113\nv_and_b32 v114, 7, v2\nv_xor_b32 v113, v113, v114\nv_lshl_add_u32 v112, v113, 4, v112")
    e("s_mov_b32 s53, 16384")
    e("buffer_load_dwordx4 v[116:119], v112, s[24:27], 0 offen")
    if NI==2: e("buffer_load_dwordx4 v[120:123], v112, s[24:27], s53 offen")
    e(f"s_waitcnt vmcnt({64//NW+NI})")
    if os.environ.get('K0ST')=='1': k.stamp_mid(0)
    X=48
    for row in range(RPW):
        for j in range(8):
            e(f"v_lshlrev_b32 v{X+16*row+2*j}, 16, v{8+8*row+j}")
            e(f"v_and_b32 v{X+1+16*row+2*j}, 0xffff0000, v{8+8*row+j}")
    PA=132
    pr=lambda r: f"v[{r}:{r+1}]"
    def bsel(row):
        return (pr(44+(row&2)), "op_sel_hi:[1,0]" if row%2==0 else "op_sel:[0,1] op_sel_hi:[1,1]")
    for row in range(RPW):
        b=X+16*row; a=PA+2*row
        e(f"v_pk_add_f32 {pr(a)}, {pr(b)}, {pr(b+2)}")
    for i in range(2,8):
        for row in range(RPW):
            b=X+16*row; a=PA+2*row
            e(f"v_pk_add_f32 {pr(a)}, {pr(a)}, {pr(b+2*i)}")
    for row in range(RPW): e(f"v_add_f32 v{40+row}, v{PA+2*row}, v{PA+2*row+1}")
    dpp_reduce(k,list(range(40,40+RPW)))
    e(f"v_mov_b32 v112, {hex(f2u(1/1024.))}\nv_mov_b32 v113, {hex(f2u(1e-5))}")
    for row in range(RPW): e(f"v_readlane_b32 s{48+row}, v{40+row}, 63")
    e("s_nop 1")
    for row in range(RPW): e(f"v_mul_f32 v{44+row}, s{48+row}, v112")
    for row in range(RPW):
        b=X+16*row; src,sel=bsel(row)
        for i in range(8): e(f"v_pk_add_f32 {pr(b+2*i)}, {pr(b+2*i)}, {src} {sel} neg_lo:[0,1] neg_hi:[0,1]")
    for row in range(RPW):
        b=X+16*row; a=PA+2*row
        e(f"v_pk_mul_f32 {pr(a)}, {pr(b)}, {pr(b)}")
    for i in range(1,8):
        for row in range(RPW):
            b=X+16*row; a=PA+2*row
            e(f"v_pk_fma_f32 {pr(a)}, {pr(b+2*i)}, {pr(b+2*i)}, {pr(a)}")
    for row in range(RPW): e(f"v_add_f32 v{40+row}, v{PA+2*row}, v{PA+2*row+1}")
    dpp_reduce(k,list(range(40,40+RPW)))
    e("s_nop 0")
    for row in range(RPW): e(f"v_readlane_b32 s{48+row}, v{40+row}, 63")
    e("s_nop 1")
    for row in range(RPW): e(f"v_fma_f32 v{44+row}, s{48+row}, v112, v113")
    for row in range(RPW): e(f"v_rsq_f32 v{44+row}, v{44+row}")
    e("s_nop 0")
    for row in range(RPW):
        b=X+16*row; src,sel=bsel(row)
        for i in range(8): e(f"v_pk_mul_f32 {pr(b+2*i)}, {pr(b+2*i)}, {src} {sel}")
    for row in range(RPW):
        b=X+16*row
        for j in range(8): e(f"v_cvt_pk_bf16_f32 v{8+8*row+j}, v{b+2*j}, v{b+2*j+1}")
    e(f"s_mul_i32 s40, s33, {RPW*XLS}\ns_add_u32 s40, s40, {XL}")
    e("v_add_u32 v5, s40, v3")
    for r in range(RPW):
        e(f"ds_write_b128 v5, v[{8+8*r}:{11+8*r}] offset:{r*XLS}")
        e(f"ds_write_b128 v5, v[{12+8*r}:{15+8*r}] offset:{r*XLS+1024}")
    e("s_and_b32 s41, s33, 1\ns_lshr_b32 s42, s33, 1")
    e("v_lshrrev_b32 v6, 4, v2\nv_and_b32 v7, 15, v2\nv_lshrrev_b32 v44, 2, v7\nv_and_b32 v45, 3, v2")
    e("v_lshl_add_u32 v44, v6, 3, v44\nv_lshlrev_b32 v44, 6, v44")
    e("v_lshrrev_b32 v46, 1, v45\ns_lshl_b32 s45, s41, 1\nv_add_u32 v46, s45, v46")
    e("v_and_b32 v47, 1, v6\nv_lshlrev_b32 v47, 1, v47\nv_xor_b32 v46, v46, v47")
    e("v_lshl_add_u32 v44, v46, 4, v44")
    e("v_and_b32 v47, 1, v45\nv_lshl_add_u32 v44, v47, 3, v44")
    e(f"s_mul_i32 s45, s42, {65536//KS}\nv_add_u32 v44, s45, v44")
    e(f"v_mul_u32_u24 v46, {XLS}, v7\nv_lshl_add_u32 v46, v6, 4, v46\ns_mul_i32 s45, s42, {2048//KS}\ns_add_u32 s45, s45, {XL}\nv_add_u32 v45, s45, v46")
    if os.environ.get('K0ST')=='1': k.stamp_mid(1)
    e("s_waitcnt vmcnt(0) lgkmcnt(0)")
    e("buffer_store_dwordx4 v[116:119], v3, s[56:59], s52 offen sc1")
    if NI==2: e("buffer_store_dwordx4 v[120:123], v3, s[56:59], s52 offen offset:1024 sc1")
    e("s_barrier")
    if os.environ.get('K0ST')=='2':
        k.stamp_mid(0); e("s_waitcnt lgkmcnt(0)")
    NX=16//NW
    e(f"s_lshl_b32 s45, s43, 4\ns_mul_i32 s46, s33, {NX}\ns_add_u32 s45, s45, s46")
    e(f"v_mul_u32_u24 v46, {XLS}, v7\nv_lshl_add_u32 v46, v6, 4, v46\ns_lshl_b32 s46, s45, 6\ns_add_u32 s46, s46, {XL}\nv_add_u32 v46, s46, v46")
    for i in range(NX): e(f"ds_read_b128 v[{96+4*i}:{99+4*i}], v46 offset:{64*i}")
    e("v_lshrrev_b32 v47, 1, v6\nv_lshlrev_b32 v47, 10, v47\nv_and_b32 v112, 1, v6\nv_lshl_add_u32 v47, v112, 9, v47\nv_lshl_add_u32 v47, v7, 4, v47")
    e("s_lshr_b32 s46, s32, 1\ns_lshl_b32 s46, s46, 16\ns_and_b32 s47, s32, 1\ns_lshl_b32 s47, s47, 8\ns_add_u32 s46, s46, s47\ns_lshl_b32 s47, s45, 11\ns_add_u32 s46, s46, s47")
    e("s_waitcnt lgkmcnt(0)")
    for i in range(NX):
        e(f"s_add_u32 s47, s46, {i*2048}\nbuffer_store_dwordx4 v[{96+4*i}:{99+4*i}], v47, s[16:19], s47 offen {os.environ.get('K0STF','sc1')}")
    LK=k.lab("V"); LE=k.lab("EPI")
    def gemm(swap):
        D=4; NS_=32//KS
        def rd(s):
            b=48+8*(s%D)
            e(f"ds_read_b64_tr_b16 v[{b}:{b+1}], v44 offset:{s*2048}")
            e(f"ds_read_b64_tr_b16 v[{b+2}:{b+3}], v44 offset:{s*2048+256}")
            e(f"ds_read_b128 v[{b+4}:{b+7}], v45 offset:{s*64}")
        for s in range(D-1): rd(s)
        for s in range(NS_):
            if s+D-1<NS_: rd(s+D-1)
            left=min(D-1,NS_-1-s)
            e(f"s_waitcnt lgkmcnt({3*left})")
            b=48+8*(s%D)
            c = "0" if s==0 else "v[40:43]"
            if not swap: e(f"v_mfma_f32_16x16x32_bf16 v[40:43], v[{b}:{b+3}], v[{b+4}:{b+7}], {c}")
            else:        e(f"v_mfma_f32_16x16x32_bf16 v[40:43], v[{b+4}:{b+7}], v[{b}:{b+3}], {c}")
        LR=k.lab("RED")
        e(f"s_lshl_b32 s45, s42, 1\ns_add_u32 s45, s45, s41\ns_lshl_b32 s45, s45, 10\ns_add_u32 s45, s45, {RED-2048}\nv_add_u32 v46, s45, v3")
        k.nop(4)
        e(f"s_cmp_eq_u32 s42, 0\ns_cbranch_scc1 {LR}")
        e("ds_write_b128 v46, v[40:43]\ns_waitcnt lgkmcnt(0)\ns_barrier")
        e(f"s_branch {LE}")
        e(f"{LR}:")
        e("s_barrier")
        for q in range(KS-1): e(f"ds_read_b128 v[{48+4*q}:{51+4*q}], v46 offset:{2048*(q+1)}")
        e("s_waitcnt lgkmcnt(0)")
        for q in range(KS-1):
            for i in range(4): e(f"v_add_f32 v{40+i}, v{40+i}, v{48+4*q+i}")
    e(f"s_cmp_eq_u32 s43, 1\ns_cbranch_scc1 {LK} ; @alt")
    gemm(False)
    e("v_bfe_u32 v64, v7, 2, 1\nv_lshrrev_b32 v65, 3, v7\nv_and_b32 v66, 3, v7")
    e("v_lshl_add_u32 v66, v64, 3, v66\nv_lshl_add_u32 v66, v65, 2, v66\ns_and_b32 s44, s32, 1\ns_lshl_b32 s44, s44, 4\nv_add_u32 v66, s44, v66")
    e("v_lshlrev_b32 v67, 6, v66")
    e("v_lshrrev_b32 v68, 1, v6\nv_lshlrev_b32 v68, 1, v68\nv_add_u32 v68, s41, v68\nv_bfe_u32 v65, v66, 2, 2\nv_xor_b32 v68, v68, v65")
    e("v_lshl_add_u32 v67, v68, 4, v67\nv_and_b32 v68, 1, v6\nv_lshl_add_u32 v67, v68, 3, v67")
    e("s_lshr_b32 s44, s32, 1\ns_lshl_b32 s44, s44, 12")
    e("v_cvt_pk_bf16_f32 v40, v40, v41\nv_cvt_pk_bf16_f32 v41, v42, v43")
    e("buffer_store_dwordx2 v[40:41], v67, s[20:23], s44 offen")
    e(f"s_branch {LE}")
    e(f"{LK}:")
    gemm(True)
    e("v_lshrrev_b32 v65, 2, v7\nv_and_b32 v66, 3, v7\nv_lshl_add_u32 v66, v65, 3, v66\ns_lshl_b32 s44, s41, 2\nv_add_u32 v66, s44, v66")
    e("v_lshlrev_b32 v67, 6, v66")
    e("v_lshlrev_b32 v65, 1, v65\nv_add_u32 v65, s41, v65\nv_and_b32 v65, 3, v65")
    e("v_lshrrev_b32 v68, 1, v6\ns_and_b32 s44, s32, 1\ns_lshl_b32 s44, s44, 1\nv_add_u32 v68, s44, v68\nv_xor_b32 v65, v68, v65")
    e("v_lshl_add_u32 v67, v65, 4, v67\nv_and_b32 v68, 1, v6\nv_lshl_add_u32 v67, v68, 3, v67")
    e("s_lshr_b32 s44, s32, 1\ns_lshl_b32 s44, s44, 12\ns_add_u32 s44, s44, 2048")
    e("v_cvt_pk_bf16_f32 v40, v40, v41\nv_cvt_pk_bf16_f32 v41, v42, v43")
    e("buffer_store_dwordx2 v[40:41], v67, s[20:23], s44 offen")
    e(f"{LE}:")
    if os.environ.get('K0ST')=='2': k.stamp_mid(1)
    e("s_waitcnt vmcnt(0)")
    k.stamp_end(0)
    e(f"{END}:")
    e("s_endpgm")
    return k
```

```python
from base import *
import os, math
VAR=os.environ.get('K3VAR','')
SLOT=30720; NS=5
ST_OFF=NS*SLOT
CS_OFF=ST_OFF+4096
C0=-2.0*1.4426950408889634*math.sqrt(2.0/math.pi)
C1=C0*0.044715

def gen_k3():
    k=Kern("k3_gateup_kernel", 256, 256, CS_OFF+1024, vgpr=256, agpr=120, sgpr=96)
    e=k.e
    END=k.lab("END")
    ACC=32; TB=0; WB=32
    def acc(v,tf): return ACC+4*(4*v+tf)
    e(f"s_cmp_ge_u32 s2, 256\ns_cbranch_scc1 {END}")
    k.stamp_begin()
    k.load_ptr(28,'ws'); k.load_ptr(8,'wg'); k.load_ptr(10,'wu')
    e("v_lshrrev_b32 v1, 6, v0\nv_and_b32 v2, 63, v0")
    e("s_and_b32 s30, s2, 7\ns_lshr_b32 s31, s2, 3")
    e("s_and_b32 s32, s30, 1\ns_lshl_b32 s32, s32, 2\ns_and_b32 s34, s31, 3\ns_add_u32 s34, s34, s32")
    e("s_lshr_b32 s32, s30, 1\ns_lshl_b32 s32, s32, 3\ns_lshr_b32 s35, s31, 2\ns_add_u32 s35, s35, s32")
    e("v_readfirstlane_b32 s33, v1")
    e("s_lshl_b32 s40, s34, 19")
    e("s_lshl_b32 s56, s33, 12\nv_lshlrev_b32 v10, 4, v2\nv_add_u32 v4, s56, v10")
    e("s_mov_b32 s41, 0\ns_mov_b32 s42, 0\ns_mov_b32 s43, 0")
    e("s_mov_b32 s57, 0x7ff00000")
    e("s_and_b32 s37, s33, 1\ns_lshl_b32 s37, s37, 2\ns_mul_i32 s38, s35, 224")
    for i in range(4):
        e(f"s_add_u32 s39, s37, {i}\ns_min_u32 s39, s39, 6\ns_lshl_b32 s{52+i}, s39, 10\ns_lshl_b32 s39, s39, 6")
        e(f"v_add_u32 v10, s39, v2\nv_mul_u32_u24 v11, 4682, v10\nv_lshrrev_b32 v11, 16, v11\nv_mul_u32_u24 v12, 14, v11\nv_sub_u32 v12, v10, v12")
        e(f"v_mul_u32_u24 v11, 7168, v11\nv_lshl_add_u32 v11, v12, 4, v11\nv_add_u32 v{5+i}, s38, v11")
    e("s_lshr_b32 s39, s33, 1\ns_mul_i32 s39, s39, 7168\ns_add_u32 s39, s39, 16384")
    for i in range(4): e(f"s_add_u32 s{52+i}, s{52+i}, s39")
    e("s_waitcnt lgkmcnt(0)")
    e("s_cmp_ge_u32 s33, 2\ns_cselect_b32 s8, s10, s8\ns_cselect_b32 s9, s11, s9")
    k.srd(8, 1024*7168)
    k.srd(4, 4*MB, src=28, add=WS_H)
    def late_setup():
        k.srd(12, 2048*128, src=28, add=WS_ST); k.srd(16, 4*7168*4, src=28, add=WS_CS)
        k.srd(20, 2048*3584*2, src=28, add=WS_ACT)
        e("s_lshl_b32 s36, s34, 11\nv_lshlrev_b32 v3, 3, v0")
        e("v_min_u32 v11, 223, v0\nv_cmp_le_u32 vcc, 112, v11")
        e("v_mov_b32 v13, 3472\nv_mov_b32 v12, 0\nv_cndmask_b32 v12, v12, v13, vcc\nv_add_u32 v12, v12, v11\ns_mul_i32 s37, s35, 112\nv_add_u32 v12, s37, v12\nv_lshlrev_b32 v28, 2, v12")
        e("v_mov_b32 v9, v4")
        e("v_lshrrev_b32 v10, 2, v2\nv_mul_u32_u24 v10, 224, v10\nv_and_b32 v11, 3, v2\nv_lshl_add_u32 v10, v11, 3, v10\nv_add_u32 v10, 16384, v10")
    def dma_list():
        G=[]
        pre=["s_cmp_lt_u32 s43, 32","s_cselect_b32 s44, s40, s57","s_cselect_b32 s45, s41, s57","s_add_u32 m0, s42, s56"]
        G.append(pre+["s_add_u32 s43, s43, 1","buffer_load_dwordx4 v4, s[4:7], s44 offen lds"])
        for i in range(1,4): G.append([f"buffer_load_dwordx4 v4, s[4:7], s44 offen offset:{1024*i} lds"])
        for i in range(4):
            g=[f"s_add_u32 m0, s42, s{52+i}","s_nop 0",f"buffer_load_dwordx4 v{5+i}, s[8:11], s45 offen lds"]
            if i==3:
                g+=["s_add_u32 s40, s40, 16384",f"s_add_u32 s41, s41, {32*7168}",
                    f"s_add_u32 s42, s42, {SLOT}",f"s_cmp_eq_u32 s42, {NS*SLOT}","s_cselect_b32 s42, 0, s42"]
            G.append(g)
        return G
    for g in dma_list(): e("\n".join(g))
    for g in dma_list(): e("\n".join(g))
    late_setup()
    STA=88
    SF=[]
    a=SF.append
    a("v_add_f32 v24, v24, v25"); a("v_add_f32 v26, v26, v27"); a(f"v_lshlrev_b32 v25, 2, v0"); a("v_add_f32 v24, v24, v26")
    a(f"v_add_u32 v25, {CS_OFF}, v25"); a("ds_write_b32 v25, v24")
    a(f"v_accvgpr_read_b32 v12, a{STA}")
    for j in range(1,16): a(f"v_accvgpr_read_b32 v13, a{STA+2*j}"); a("v_add_f32 v12, v12, v13")
    a(f"v_mul_f32 v12, {hex(f2u(1/1024.))}, v12")
    a(f"v_mov_b32 v16, {hex(f2u(1/64.))}"); a(f"v_mov_b32 v17, {hex(f2u(64.))}"); a("v_mov_b32 v14, 0"); a("v_mov_b32 v18, 0")
    for j in range(16):
        a(f"v_accvgpr_read_b32 v13, a{STA+2*j}"); a(f"v_accvgpr_read_b32 v15, a{STA+2*j+1}")
        a("v_fma_f32 v13, v13, v16, -v12"); a("v_add_f32 v14, v14, v15"); a("v_fmac_f32 v18, v13, v13")
    a("v_fmac_f32 v14, v18, v17")
    a(f"v_mov_b32 v16, {hex(f2u(1/1024.))}"); a(f"v_mov_b32 v17, {hex(f2u(1e-5))}"); a("v_fma_f32 v14, v14, v16, v17")
    a("v_rsq_f32 v15, v14"); a("v_sub_f32 v20, 0, v12")
    a(f"v_mul_f32 v21, {hex(f2u(C0))}, v15")
    a("v_mul_f32 v22, v15, v15"); a("v_mul_f32 v22, v22, v15"); a(f"v_mul_f32 v22, {hex(f2u(C1))}, v22")
    a("v_mov_b32 v23, v14")
    a("v_lshlrev_b32 v13, 4, v0"); a(f"v_add_u32 v13, {ST_OFF}, v13"); a("ds_write_b128 v13, v[20:23]")
    e("s_waitcnt vmcnt(8)\ns_barrier")
    def rdT(buf):
        return [f"ds_read_b128 a[{TB+16*buf+4*tf}:{TB+16*buf+4*tf+3}], v9 offset:{tf*1024}" for tf in range(4)]
    def rdW(v):
        off=(v%7)*32+(v//7)*7168
        return [f"ds_read_b64_tr_b16 a[{WB+4*v+2*t}:{WB+4*v+2*t+1}], v10 offset:{off+t*3584}" for t in range(2)]
    e("\n".join(rdT(0)))
    for v in range(14):
        e("\n".join(rdW(v)))
        if v==5: e("s_waitcnt lgkmcnt(4)")
    SL=[]
    for i in range(16):
        SL.append([f"buffer_load_dwordx2 a[{STA+2*i}:{STA+2*i+1}], v3, s[12:15], s36 offen"]+(["s_add_u32 s36, s36, 16384"] if i<15 else []))
    for q in range(4):
        SL.append([f"s_mov_b32 s39, {q*28672}", f"buffer_load_dword v{24+q}, v28, s[16:19], s39 offen"])
    for x in SL: e("\n".join(x))
    e(f"s_mov_b32 s46, {SLOT}\ns_mov_b32 s38, {SLOT}")
    if os.environ.get('K3ST')!='3': k.stamp_mid(0)
    e("s_waitcnt lgkmcnt(0)")
    def stage(par, first=False, ndma=1, X=8*(NS-3), extra=None, loads=None):
        F={i:[] for i in range(56)}
        rd='nord' not in VAR; dm='nodma' not in VAR
        F[0].append("v_add_u32 v9, s38, v9")
        F[1].append("v_add_u32 v10, s38, v10")
        F[2].append(f"s_waitcnt vmcnt({X})")
        F[3].append("s_barrier")
        if rd:
            for v in range(14):
                a,b=rdW(v)
                F[4*v+3].append(a)
                if v<13: F[4*v+4].append(b)
                else: F[55].append(b)
            T=rdT(1-par)
            for q,gp in enumerate((5,6,9,10)): F[gp].append(T[q])
        F[22].append("s_waitcnt lgkmcnt(4)")
        F[54].append("s_waitcnt lgkmcnt(4)")
        def put(gaps_pre,gapsA,gapsB,gaps_post):
            F[gaps_pre[0]]+=["s_cmp_lt_u32 s43, 32","s_cselect_b32 s44, s40, s57"]
            F[gaps_pre[1]]+=["s_cselect_b32 s45, s41, s57","s_add_u32 m0, s42, s56"]
            for q,gp in enumerate(gapsA):
                F[gp].append(f"buffer_load_dwordx4 v4, s[4:7], s44 offen offset:{1024*q} lds" if q else "buffer_load_dwordx4 v4, s[4:7], s44 offen lds")
            for q,(gm,gp) in enumerate(gapsB):
                F[gm].append(f"s_add_u32 m0, s42, s{52+q}")
                F[gp].append(f"buffer_load_dwordx4 v{5+q}, s[8:11], s45 offen lds")
            F[gaps_post[0]]+=["s_add_u32 s43, s43, 1","s_add_u32 s40, s40, 16384"]
            F[gaps_post[1]]+=[f"s_add_u32 s41, s41, {32*7168}",f"s_add_u32 s42, s42, {SLOT}"]
            F[gaps_post[2]]+=[f"s_cmp_eq_u32 s42, {NS*SLOT}","s_cselect_b32 s42, 0, s42"]
        if dm:
            if ndma==1:
                put((13,14),(17,18,21,25),((26,29),(30,33),(34,37),(38,41)),(42,45,46))
            elif loads:
                for q,x in enumerate(loads): F[4+q//2]+=x
                put((14,15),(17,18,20,21),((21,22),(22,24),(24,25),(25,26)),(27,28,29))
                put((30,31),(33,34,36,37),((37,38),(38,40),(40,41),(41,42)),(44,45,46))
            else:
                put((5,6),(9,10,12,13),((13,14),(14,16),(16,17),(17,18)),(20,21,24))
                put((25,26),(28,29,30,32),((32,33),(33,34),(34,36),(36,37)),(40,41,42))
        F[49]+=[f"s_add_u32 s37, s46, {SLOT}",f"s_cmp_eq_u32 s37, {NS*SLOT}"]
        F[50]+=["s_cselect_b32 s37, 0, s37","s_sub_u32 s38, s37, s46"]
        F[53]+=["s_mov_b32 s46, s37"]
        if extra:
            n=len(extra); g0,g1=4,53
            for q,x in enumerate(extra): F[g0+(q*(g1-g0))//n].append(x)
            F[22]=[x if not x.startswith("s_waitcnt lgkmcnt") else "s_waitcnt lgkmcnt(0)" for x in F[22]]
            F[54]=[x if not x.startswith("s_waitcnt lgkmcnt") else "s_waitcnt lgkmcnt(2)" for x in F[54]]
        for i in range(56):
            v,tf=divmod(i,4)
            a=acc(v,tf)
            c="0" if first else f"v[{a}:{a+3}]"
            e(f"v_mfma_f32_16x16x32_bf16 v[{a}:{a+3}], a[{WB+4*v}:{WB+4*v+3}], a[{TB+16*par+4*tf}:{TB+16*par+4*tf+3}], {c}")
            for x in F[i]: e(x)
    stage(0, first=True, ndma=2, X=20)
    stage(1, ndma=2, X=8, extra=SF)
    e("s_mov_b32 s47, 15")
    L=k.lab("MAIN")
    e(f"{L}:")
    stage(0); stage(1)
    e(f"s_sub_u32 s47, s47, 1\ns_cmp_lg_u32 s47, 0\ns_cbranch_scc1 {L}")
    if os.environ.get('K3ST') in (None,'3'): k.stamp_mid(1)
    e("s_waitcnt lgkmcnt(0)")
    k.code_prefetch("k4_down_kernel", 4096, 3, "a[0:3]", 60)
    e(f"v_and_b32 v3, 15, v2\ns_lshl_b32 s37, s33, 10\nv_lshl_add_u32 v3, v3, 4, s37\nv_add_u32 v3, {ST_OFF}, v3")
    e(f"v_lshrrev_b32 v4, 4, v2\nv_lshlrev_b32 v4, 4, v4\nv_add_u32 v4, {CS_OFF}, v4")
    e("v_lshlrev_b32 v1, 4, v2")
    e("s_lshl_b32 s37, s34, 3\ns_lshl_b32 s38, s33, 1\ns_add_u32 s37, s37, s38\ns_mul_i32 s50, s37, 224\ns_mul_i32 s51, s35, 7\ns_add_u32 s50, s50, s51\ns_lshl_b32 s50, s50, 10")
    for tp in range(2):
        e(f"ds_read_b128 v[8:11], v3 offset:{(2*tp)*256}\nds_read_b128 v[12:15], v3 offset:{(2*tp+1)*256}")
        for v in range(7):
            if v==0 and tp==0: e(f"ds_read_b128 v[24:27], v4 offset:0\nds_read_b128 v[28:31], v4 offset:448")
            e(f"s_add_u32 s38, s50, {(tp*224+v)*1024}")
            e("s_waitcnt lgkmcnt(1)" if not (v==0) else "s_waitcnt lgkmcnt(0)")
            nv=(v+1)%7
            last=(v==6 and tp==1)
            G=[acc(v,2*tp+tt) for tt in range(2)]; U=[acc(7+v,2*tp+tt) for tt in range(2)]
            P0=[f"v[{8+4*tt}:{9+4*tt}]" for tt in range(2)]; P1=[f"v[{10+4*tt}:{11+4*tt}]" for tt in range(2)]
            gp=lambda tt,h: f"v[{G[tt]+2*h}:{G[tt]+2*h+1}]"
            up=lambda tt,h: f"v[{U[tt]+2*h}:{U[tt]+2*h+1}]"
            tm=lambda tt,h: f"v[{16+4*tt+2*h}:{17+4*tt+2*h}]"
            TH=[(tt,h) for tt in range(2) for h in range(2)]
            for tt,h in TH: e(f"v_pk_fma_f32 {gp(tt,h)}, v[{24+2*h}:{25+2*h}], {P0[tt]}, {gp(tt,h)} op_sel_hi:[1,0,1]")
            if not last: e(f"ds_read_b128 v[24:27], v4 offset:{nv*64}")
            for tt,h in TH: e(f"v_pk_mul_f32 {tm(tt,h)}, {gp(tt,h)}, {gp(tt,h)}")
            for tt,h in TH: e(f"v_pk_fma_f32 {tm(tt,h)}, {tm(tt,h)}, {P1[tt]}, {P0[tt]} op_sel:[0,0,1] op_sel_hi:[1,0,1]")
            for tt,h in TH: e(f"v_pk_mul_f32 {tm(tt,h)}, {tm(tt,h)}, {gp(tt,h)}")
            for c in range(8): e(f"v_exp_f32 v{16+c}, v{16+c}")
            e("s_waitcnt lgkmcnt(1)" if not last else "s_waitcnt lgkmcnt(0)")
            for tt,h in TH: e(f"v_pk_fma_f32 {up(tt,h)}, v[{28+2*h}:{29+2*h}], {P0[tt]}, {up(tt,h)} op_sel_hi:[1,0,1]")
            if not last: e(f"ds_read_b128 v[28:31], v4 offset:{448+nv*64}")
            for tt,h in TH: e(f"v_pk_fma_f32 {tm(tt,h)}, {tm(tt,h)}, {P1[tt]}, {P1[tt]} op_sel:[0,1,1] op_sel_hi:[1,1,1]")
            for c in range(8): e(f"v_rcp_f32 v{16+c}, v{16+c}")
            for tt,h in TH: e(f"v_pk_mul_f32 {up(tt,h)}, {up(tt,h)}, {gp(tt,h)}")
            for tt,h in TH: e(f"v_pk_mul_f32 {up(tt,h)}, {up(tt,h)}, {tm(tt,h)}")
            D=G[0]
            e(f"v_cvt_pk_bf16_f32 v{D}, v{U[0]}, v{U[0]+1}\nv_cvt_pk_bf16_f32 v{D+1}, v{U[0]+2}, v{U[0]+3}")
            e(f"v_cvt_pk_bf16_f32 v{D+2}, v{U[1]}, v{U[1]+1}\nv_cvt_pk_bf16_f32 v{D+3}, v{U[1]+2}, v{U[1]+3}")
            e("s_nop 1")
            e(f"v_permlane16_swap_b32 v{D}, v{D+2}\nv_permlane16_swap_b32 v{D+1}, v{D+3}")
            e(f"buffer_store_dwordx4 v[{D}:{D+3}], v1, s[20:23], s38 offen {os.environ.get('K3STF','sc1')}")
    if os.environ.get('K3ST')=='3': k.stamp_mid(0)
    e("s_waitcnt vmcnt(0)")
    k.stamp_end(3)
    e(f"{END}:")
    e("s_endpgm")
    return k
```
